```python
import torch

def _softmax(x, axis=-1):
    return torch.softmax(x, dim=axis)
def _gelu(x):
    return torch.nn.functional.gelu(x, approximate="tanh")
def _silu(x):
    return torch.nn.functional.silu(x)
def _sigmoid(x):
    return torch.sigmoid(x)
def _layernorm(x, axis=-1, eps=1e-5):
    m = x.mean(dim=axis, keepdim=True)
    v = x.var(dim=axis, keepdim=True, unbiased=False)
    return (x - m) / torch.sqrt(v + eps)
def _scatter_add(tgt, idx, src, axis=0):
    return tgt.clone().index_add_(axis, idx, src)
def _segment_sum(src, seg, n):
    out = torch.zeros((n,) + src.shape[1:], dtype=src.dtype)
    return out.index_add_(0, seg, src)
def _pad(x, pw):
    flat = tuple(v for pair in reversed(pw) for v in pair)
    return torch.nn.functional.pad(x, flat)

kernel_name = 'standalone__cheap_equivariant_egnn__graph'

def setup_inputs():

    _w = (lambda a: (lambda t: t.to(torch.bfloat16) if t.is_floating_point() else t)(torch.as_tensor(a)))
    N, deg, D, De = 25000, 32, 64, max(4, 1)
    E = N * deg
    return {
        "h": _w((lambda *s: torch.randn(*s, dtype=torch.bfloat16) * 0.2)(N, D)),
        "pos": _w((lambda *s: torch.randn(*s, dtype=torch.bfloat16) * 0.8)(N, 3)),
        "e_attr": _w((lambda *s: torch.randn(*s, dtype=torch.bfloat16) * 0.8)(E, De)),
        "src": _w((lambda lo, hi, *s: torch.randint(lo, hi, s))(0, N, E).to(torch.int64)),
        "dst": _w((lambda lo, hi, *s: torch.randint(lo, hi, s))(0, N, E).to(torch.int64)),
        "w_e": _w(0.1 * (lambda *s: torch.randn(*s, dtype=torch.bfloat16) * 0.8)(2 * D + 1 + De, D)),
        "w_x": _w(0.1 * (lambda *s: torch.randn(*s, dtype=torch.bfloat16) * 0.2)(D, 1)),
        "w_h": _w(0.1 * (lambda *s: torch.randn(*s, dtype=torch.bfloat16) * 0.2)(2 * D, D)),
    }

def reference(h, pos, e_attr, src, dst, w_e, w_x, w_h):
    N, D = h.shape[0], h.shape[1]
    diff = pos[dst] - pos[src]
    dist2 = torch.sum(diff * diff, axis=-1, keepdims=True)
    e_in = torch.concatenate([h[dst], h[src], dist2, e_attr], axis=-1)
    m_ij = _silu(e_in @ w_e)
    coord_scale = m_ij @ w_x
    pos_new = pos + _segment_sum(diff * coord_scale, dst, N)
    m_i = _segment_sum(m_ij, dst, N)
    h_new = h + _silu(torch.concatenate([h, m_i], axis=-1) @ w_h)
    return h_new, pos_new
```

```python
N = 25000
E = 800000
P = 250
CH = 3200
SBN = 49
BN = 98
NB = 256
WS_REC = 0
WS_IDX = 0xC80000
WS_TAB = 0x1000000
TAB_STRIDE = 1040
WS_WIMG = 0x1100000
WS_SIZE = 268435456

class Asm:
    def __init__(self):
        self.lines = []
    def __call__(self, s):
        for l in s.strip("\n").split("\n"):
            self.lines.append("    " + l.strip() if not l.strip().endswith(":") else l.strip())
    def label(self, name):
        self.lines.append(name + ":")
    def text(self):
        return "\n".join(self.lines) + "\n"
```

```python
from common import *

K1_THREADS = 832
K1_GRID = 253
K1_LDS_HIST = 0
K1_LDS_REC = 4096
K1_LDS_IDX = 4096 + CH*16
K1_LDS = K1_LDS_IDX + CH*4

def gen_k1(name):
    a = Asm()
    a(f"""
    s_cmp_ge_u32 s2, {K1_GRID}
    s_cbranch_scc1 K1_EXIT
    s_cmp_ge_u32 s2, {P}
    s_cbranch_scc1 K1_WEIGHTS
    s_load_dwordx4 s[4:7], s[0:1], 8
    s_load_dwordx4 s[8:11], s[0:1], 24
    s_load_dwordx2 s[12:13], s[0:1], 80
    v_lshlrev_b32 v1, 2, v0
    v_mov_b32 v2, 0
    ds_write_b32 v1, v2
    v_cmp_gt_u32 vcc, 800, v0
    s_mov_b64 s[38:39], vcc
    v_lshlrev_b32 v1, 4, v0
    v_lshlrev_b32 v2, 5, v0
    v_mov_b32 v3, 1
    s_mul_i32 s36, s2, {CH*4}
    s_mul_i32 s37, s2, {CH*8}
    s_waitcnt lgkmcnt(0)
    s_mov_b32 s16, s4
    s_mov_b32 s17, s5
    s_mov_b32 s18, {N*6}
    s_mov_b32 s19, 0x00020000
    s_mov_b32 s20, s6
    s_mov_b32 s21, s7
    s_mov_b32 s22, {E*8}
    s_mov_b32 s23, 0x00020000
    s_mov_b32 s24, s8
    s_mov_b32 s25, s9
    s_mov_b32 s26, {E*4}
    s_mov_b32 s27, 0x00020000
    s_mov_b32 s28, s10
    s_mov_b32 s29, s11
    s_mov_b32 s30, {E*4}
    s_mov_b32 s31, 0x00020000
    s_mov_b32 s32, s12
    s_mov_b32 s33, s13
    s_mov_b32 s34, 0x1200000
    s_mov_b32 s35, 0x00020000
    s_mov_b64 exec, s[38:39]
    buffer_load_dwordx4 v[4:7], v1, s[28:31], s36 offen
    buffer_load_dwordx4 v[8:11], v1, s[24:27], s36 offen
    buffer_load_dwordx4 v[12:15], v2, s[20:23], s37 offen
    buffer_load_dwordx4 v[16:19], v2, s[20:23], s37 offen offset:16
    s_barrier
    s_waitcnt vmcnt(3)
    """)
    for i in range(4):
        a(f"""
        v_mul_u32_u24 v{36+i}, 6, v{4+i}
        v_and_b32 v{72+i}, -4, v{36+i}
        buffer_load_dwordx2 v[{20+2*i}:{21+2*i}], v{72+i}, s[16:19], 0 offen
        """)
    for i in range(4):
        a(f"""
        v_mul_u32_u24 v{44+i}, 85599, v{4+i}
        v_lshrrev_b32 v{44+i}, 22, v{44+i}
        v_lshrrev_b32 v{68+i}, 1, v{44+i}
        v_lshlrev_b32 v{44+i}, 2, v{44+i}
        ds_add_rtn_u32 v{48+i}, v{44+i}, v3
        v_mul_u32_u24 v{68+i}, {BN}, v{68+i}
        v_sub_u32 v{68+i}, v{4+i}, v{68+i}
        """)
    a("s_waitcnt vmcnt(6)")
    for i in range(4):
        a(f"""
        v_mul_u32_u24 v{40+i}, 6, v{8+i}
        v_and_b32 v{76+i}, -4, v{40+i}
        buffer_load_dwordx2 v[{28+2*i}:{29+2*i}], v{76+i}, s[16:19], 0 offen
        v_lshl_or_b32 v{68+i}, v{68+i}, 20, v{8+i}
        """)
    a("""
    v_readfirstlane_b32 s40, v0
    s_waitcnt lgkmcnt(0)
    s_barrier
    s_cmp_ge_u32 s40, 64
    s_cbranch_scc1 K1_NOSCAN
    v_lshlrev_b32 v80, 5, v0
    ds_read_b128 v[84:87], v80
    ds_read_b128 v[88:91], v80 offset:16
    s_waitcnt lgkmcnt(0)
    v_add_u32 v92, v84, v85
    v_add_u32 v93, v92, v86
    v_add_u32 v94, v93, v87
    v_add_u32 v95, v94, v88
    v_add_u32 v96, v95, v89
    v_add_u32 v97, v96, v90
    v_add_u32 v98, v97, v91
    v_mov_b32 v99, v98
    s_nop 1
    v_add_u32_dpp v99, v99, v99 row_shr:1 row_mask:0xf bank_mask:0xf
    s_nop 1
    v_add_u32_dpp v99, v99, v99 row_shr:2 row_mask:0xf bank_mask:0xf
    s_nop 1
    v_add_u32_dpp v99, v99, v99 row_shr:4 row_mask:0xf bank_mask:0xf
    s_nop 1
    v_add_u32_dpp v99, v99, v99 row_shr:8 row_mask:0xf bank_mask:0xf
    s_nop 1
    v_add_u32_dpp v99, v99, v99 row_bcast:15 row_mask:0xa bank_mask:0xf
    s_nop 1
    v_add_u32_dpp v99, v99, v99 row_bcast:31 row_mask:0xc bank_mask:0xf
    v_sub_u32 v100, v99, v98
    v_add_u32 v101, v100, v84
    v_add_u32 v102, v100, v92
    v_add_u32 v103, v100, v93
    v_add_u32 v104, v100, v94
    v_add_u32 v105, v100, v95
    v_add_u32 v106, v100, v96
    v_add_u32 v107, v100, v97
    ds_write_b128 v80, v[100:103]
    ds_write_b128 v80, v[104:107] offset:16
    v_lshl_or_b32 v108, v101, 16, v100
    v_lshl_or_b32 v109, v103, 16, v102
    v_lshl_or_b32 v110, v105, 16, v104
    v_lshl_or_b32 v111, v107, 16, v106
    """)
    a(f"""
    s_mul_i32 s41, s2, {TAB_STRIDE}
    s_add_u32 s41, s41, {WS_TAB}
    buffer_store_dwordx4 v[108:111], v1, s[32:35], s41 offen
    v_mov_b32 v112, {CH | (CH<<16)}
    v_mov_b32 v113, v112
    v_mov_b32 v114, v112
    v_mov_b32 v115, v112
    s_mov_b64 exec, 1
    buffer_store_dwordx4 v[112:115], v1, s[32:35], s41 offen offset:1024
    s_mov_b64 exec, -1
    s_waitcnt vmcnt(2)
    s_branch K1_DIFF
    K1_NOSCAN:
    s_waitcnt vmcnt(0)
    K1_DIFF:
    """)
    for i in range(4):
        pd = 20+2*i; ps = 28+2*i; r = 52+4*i
        a(f"""
        v_and_b32 v80, 2, v{36+i}
        v_lshlrev_b32 v80, 3, v80
        v_lshrrev_b64 v[{pd}:{pd+1}], v80, v[{pd}:{pd+1}]
        v_and_b32 v81, 2, v{40+i}
        v_lshlrev_b32 v81, 3, v81
        v_lshrrev_b64 v[{ps}:{ps+1}], v81, v[{ps}:{ps+1}]
        v_lshlrev_b32 v82, 16, v{pd}
        v_lshlrev_b32 v83, 16, v{ps}
        v_sub_f32 v82, v82, v83
        v_and_b32 v83, 0xffff0000, v{pd}
        v_and_b32 v84, 0xffff0000, v{ps}
        v_sub_f32 v83, v83, v84
        v_lshlrev_b32 v84, 16, v{pd+1}
        v_lshlrev_b32 v85, 16, v{ps+1}
        v_sub_f32 v84, v84, v85
        v_cvt_pk_bf16_f32 v{r+3}, v83, v84
        v_cvt_pk_bf16_f32 v85, v82, v82
        v_lshlrev_b32 v85, 16, v85
        v_lshlrev_b32 v86, 16, v{r+3}
        v_and_b32 v87, 0xffff0000, v{r+3}
        v_mul_f32 v85, v85, v85
        v_mul_f32 v86, v86, v86
        v_mul_f32 v87, v87, v87
        v_cvt_pk_bf16_f32 v85, v85, v86
        v_cvt_pk_bf16_f32 v87, v87, v87
        v_lshlrev_b32 v86, 16, v85
        v_and_b32 v85, 0xffff0000, v85
        v_lshlrev_b32 v87, 16, v87
        v_add_f32 v85, v86, v85
        v_add_f32 v85, v85, v87
        v_cvt_pk_bf16_f32 v{r+2}, v85, v82
        v_mov_b32 v{r}, v{12+2*i}
        v_mov_b32 v{r+1}, v{13+2*i}
        """)
    a("""
    s_waitcnt lgkmcnt(0)
    s_barrier
    """)
    for i in range(4):
        a(f"ds_read_b32 v{80+i}, v{44+i}")
    a("s_waitcnt lgkmcnt(0)")
    for i in range(4):
        r = 52+4*i
        a(f"""
        v_add_u32 v{80+i}, v{80+i}, v{48+i}
        v_lshlrev_b32 v{84+i}, 4, v{80+i}
        v_lshlrev_b32 v{80+i}, 2, v{80+i}
        ds_write_b128 v{84+i}, v[{r}:{r+3}] offset:{K1_LDS_REC}
        ds_write_b32 v{80+i}, v{68+i} offset:{K1_LDS_IDX}
        """)
    a(f"""
    s_waitcnt lgkmcnt(0)
    s_barrier
    ds_read_b128 v[4:7], v1 offset:{K1_LDS_REC}
    ds_read_b128 v[8:11], v1 offset:{K1_LDS_REC+12800}
    ds_read_b128 v[12:15], v1 offset:{K1_LDS_REC+25600}
    ds_read_b128 v[16:19], v1 offset:{K1_LDS_REC+38400}
    ds_read_b128 v[20:23], v1 offset:{K1_LDS_IDX}
    s_mul_i32 s42, s2, {CH*16}
    s_add_u32 s43, s42, 12800
    s_add_u32 s44, s42, 25600
    s_add_u32 s45, s42, 38400
    s_add_u32 s46, s36, {WS_IDX}
    s_waitcnt lgkmcnt(4)
    buffer_store_dwordx4 v[4:7], v1, s[32:35], s42 offen
    s_waitcnt lgkmcnt(3)
    buffer_store_dwordx4 v[8:11], v1, s[32:35], s43 offen
    s_waitcnt lgkmcnt(2)
    buffer_store_dwordx4 v[12:15], v1, s[32:35], s44 offen
    s_waitcnt lgkmcnt(1)
    buffer_store_dwordx4 v[16:19], v1, s[32:35], s45 offen
    s_waitcnt lgkmcnt(0)
    buffer_store_dwordx4 v[20:23], v1, s[32:35], s46 offen
    K1_EXIT:
    s_endpgm
    """)
    a(f"""
    K1_WEIGHTS:
    s_load_dwordx2 s[4:5], s[0:1], 40
    s_load_dwordx2 s[6:7], s[0:1], 56
    s_load_dwordx2 s[12:13], s[0:1], 80
    v_lshrrev_b32 v1, 6, v0
    s_nop 0
    v_readfirstlane_b32 s40, v1
    s_sub_u32 s41, s2, {P}
    s_mul_i32 s41, s41, 13
    s_add_u32 s40, s40, s41
    s_cmp_gt_u32 s40, 32
    s_cbranch_scc1 K1_EXIT
    v_and_b32 v1, 63, v0
    v_and_b32 v2, 31, v1
    v_lshrrev_b32 v3, 5, v1
    s_waitcnt lgkmcnt(0)
    s_mov_b32 s32, s12
    s_mov_b32 s33, s13
    s_mov_b32 s34, 0x1200000
    s_mov_b32 s35, 0x00020000
    s_cmp_lt_u32 s40, 16
    s_cselect_b32 s16, s4, s6
    s_cselect_b32 s17, s5, s7
    s_mov_b32 s47, {128*128}
    s_cselect_b32 s18, {133*128}, s47
    s_mov_b32 s19, 0x00020000
    s_cmp_eq_u32 s40, 32
    s_cbranch_scc1 K1_WXC
    s_cmp_lt_u32 s40, 16
    s_cbranch_scc0 K1_WH
    s_cmp_lt_u32 s40, 8
    s_cselect_b32 s42, 64, 0
    s_lshr_b32 s43, s40, 2
    s_and_b32 s43, s43, 1
    s_and_b32 s44, s40, 3
    s_branch K1_WGO
    K1_WH:
    s_sub_u32 s45, s40, 16
    s_lshr_b32 s43, s45, 3
    s_and_b32 s44, s45, 3
    s_and_b32 s45, s45, 4
    s_lshl_b32 s42, s45, 4
    K1_WGO:
    ; K0 = s42 + 8*s44 ; C0 = 32*s43
    s_lshl_b32 s44, s44, 3
    s_add_u32 s42, s42, s44
    s_lshl_b32 s42, s42, 7
    s_lshl_b32 s43, s43, 6
    s_add_u32 s42, s42, s43
    v_lshlrev_b32 v4, 12, v3
    v_lshl_add_u32 v4, v2, 1, v4
    """)
    for j in range(8):
        a(f"buffer_load_ushort v{8+j}, v4, s[16:19], s42 offen offset:{128*j}")
    a(f"""
    s_lshl_b32 s46, s40, 10
    s_add_u32 s46, s46, {WS_WIMG}
    v_lshlrev_b32 v5, 4, v1
    s_waitcnt vmcnt(0)
    v_lshl_or_b32 v16, v9, 16, v8
    v_lshl_or_b32 v17, v11, 16, v10
    v_lshl_or_b32 v18, v13, 16, v12
    v_lshl_or_b32 v19, v15, 16, v14
    buffer_store_dwordx4 v[16:19], v5, s[32:35], s46 offen
    s_endpgm
    K1_WXC:
    s_mov_b32 s16, s4
    s_mov_b32 s17, s5
    s_mov_b32 s18, {133*128}
    s_mov_b32 s42, {128*128}
    v_lshlrev_b32 v4, 1, v2
    """)
    for t in range(2):
        for r in range(5):
            a(f"buffer_load_ushort v{8+5*t+r}, v4, s[16:19], s42 offen offset:{128*r+64*t}")
    a(f"""
    v_cmp_eq_u32 vcc, 0, v3
    v_lshlrev_b32 v5, 3, v1
    s_mov_b32 s46, {WS_WIMG + 32*1024}
    s_waitcnt vmcnt(0)
    """)
    for t in range(2):
        b = 8+5*t
        a(f"""
        v_lshl_or_b32 v20, v{b+2}, 16, v{b+1}
        v_lshl_or_b32 v21, v{b+4}, 16, v{b+3}
        v_cndmask_b32 v{22+2*t}, v{b}, v20, vcc
        v_cndmask_b32 v{23+2*t}, 0, v21, vcc
        """)
    a("""
    buffer_store_dwordx2 v[22:23], v5, s[32:35], s46 offen
    buffer_store_dwordx2 v[24:25], v5, s[32:35], s46 offen offset:512
    s_endpgm
    """)
    return a.text()
```

```python
from common import *

K2_THREADS = 768
K2_WAVES = 12
K2_GRID = 256
CAP = 3840
L_HIST = 0
L_MISC = 512
L_PREF = 576
L_OHT  = 1120 + 32
L_WXF  = 1280
L_META = 1536
L_REC  = L_META + CAP*4
L_ATAB = L_REC + CAP*16
ATAB_STRIDE = 264
L_MACC = L_ATAB + 64*ATAB_STRIDE
MACC_STRIDE = 272
L_PACC = L_MACC + 108*MACC_STRIDE
L_STG  = L_PACC + 108*16
STG_SZ = 2560
K2_LDS = L_STG + K2_WAVES*STG_SZ
ZERO_BEG = L_MACC
ZERO_N16 = (K2_LDS - L_MACC)//16

vW2, vWX, vACC, vD, vH, vXA, vST, vT = 8, 40, 48, 80, 112, 128, 132, 140
vC, vONE, vI, vDL, vMA, vRA, vOHB, vSGB, vSG, vSR, vOH, vZ, vB1, vAT, vFL, vFP = 148,150,152,154,155,156,157,158,159,160,161,162,163,164,165,166
K2_VGPRS = 168
KMAX = 11
RFAST = 3*KMAX
RSLOW = 12

def rr(b, n): return f"v[{b}:{b+n-1}]"

def mfma(d, a_, b_, c):
    cs = rr(c,16) if c is not None else "0"
    return f"v_mfma_f32_32x32x16_bf16 {rr(d,16)}, {rr(a_,4)}, {rr(b_,4)}, {cs}"

def elementwise(a, t, slots):
    D = vD + 16*t
    for g in range(4):
        ps = (2*g, 2*g+1)
        tmp = [vT + 4*(g%2), vT + 4*(g%2) + 2]
        for p, tm in zip(ps, tmp):
            a(f"v_pk_mul_f32 {rr(tm,2)}, {rr(D+2*p,2)}, {rr(vC,2)}")
        for l in slots[2*g]: a(l)
        for tm in tmp:
            a(f"v_exp_f32 v{tm}, v{tm}\nv_exp_f32 v{tm+1}, v{tm+1}")
        for tm in tmp:
            a(f"v_pk_add_f32 {rr(tm,2)}, {rr(tm,2)}, {rr(vONE,2)}")
        for l in slots[2*g+1]: a(l)
        for tm in tmp:
            a(f"v_rcp_f32 v{tm}, v{tm}\nv_rcp_f32 v{tm+1}, v{tm+1}")
        for p, tm in zip(ps, tmp):
            a(f"v_pk_mul_f32 {rr(tm,2)}, {rr(tm,2)}, {rr(D+2*p,2)}")
        for p, tm in zip(ps, tmp):
            a(f"v_cvt_pk_bf16_f32 v{D+p}, v{tm}, v{tm+1}")

def gathers():
    return [f"buffer_load_dwordx4 {rr(vH+4*s,4)}, {rr(vI,2)}, s[16:19], 0 idxen offen offset:{16*s}" for s in range(4)]

def xa_reads():
    return [f"v_add_u32 v{vOH}, v{vDL}, v{vOHB}",
            f"v_mad_u32_u24 v{vSG}, v{vDL}, 20, v{vSGB}",
            "s_mov_b64 exec, s[44:45]",
            f"ds_read_b64 {rr(vXA,2)}, v{vRA} offset:{L_REC}",
            f"ds_read_b64 {rr(vXA+2,2)}, v{vOH}",
            "s_mov_b64 exec, -1",
            f"v_add_u32 v{vRA}, 512, v{vRA}"]

def stage_writes():
    return ["s_and_b64 exec, s[44:45], s[48:49]",
            f"ds_write_b16 v{vSG}, v{vB1}",
            "s_and_b64 exec, s[44:45], s[50:51]",
            f"ds_write_b16_d16_hi v{vSG}, v{vXA} offset:80",
            f"ds_write_b16 v{vSG}, v{vXA+1} offset:160",
            f"ds_write_b16_d16_hi v{vSG}, v{vXA+1} offset:240",
            "s_mov_b64 exec, -1",
            "s_mov_b64 s[46:47], s[44:45]"]

def unwrite():
    return ["s_and_b64 exec, s[46:47], s[48:49]"] + \
           [f"ds_write_b16 v{vSG}, v{vZ} offset:{80*q}" for q in range(4)] + ["s_mov_b64 exec, -1"]

def meta_reads():
    return [f"ds_read_u16 v{vI}, v{vMA} offset:{L_META}",
            f"ds_read_u16 v{vDL}, v{vMA} offset:{L_META+2}",
            f"v_add_u32 v{vMA}, 128, v{vMA}"]

def st_reads():
    return [f"ds_read_b128 {rr(vST,4)}, v{vSR}", f"ds_read_b128 {rr(vST+4,4)}, v{vSR} offset:32"]

def set_base(a):
    a(f"""
    s_lshl_b32 s59, s37, 4
    s_mul_i32 s60, s37, 320
    v_subrev_u32 v{vOHB}, s59, v6
    v_subrev_u32 v{vSGB}, s60, v7
    s_lshl_b32 s59, s37, 2
    v_mov_b32 v{vT}, s59
    ds_read_b32 v{vT+1}, v{vT} offset:{L_PREF+32}
    s_waitcnt lgkmcnt(0)
    v_readfirstlane_b32 s38, v{vT+1}
    """)

def wx_reload(a):
    a(f"""
    s_lshl_b32 s59, s37, 1
    v_add_u32 v{vT}, s59, v{vAT}
    ds_read_b64 {rr(vWX+2,2)}, v{vT}
    ds_read_b64 {rr(vWX+6,2)}, v{vT} offset:{32*ATAB_STRIDE}
    """)

def flush(a, sbase):
    a(f"""
    v_mov_b32 v167, 0
    s_mul_i32 s59, {sbase}, {MACC_STRIDE}
    s_lshl_b32 s60, {sbase}, 4
    """)
    for t in range(2):
        for jj in range(2):
            a(f"""
            ds_read_b128 {rr(vT,4)}, v5 offset:{L_WXF + (32*t+16*jj)*4}
            ds_read_b128 {rr(vT+4,4)}, v5 offset:{L_WXF + (32*t+16*jj+8)*4}
            s_waitcnt lgkmcnt(0)
            """)
            for i in range(8):
                a(f"v_fmac_f32 v167, v{vACC+16*t+8*jj+i}, v{vT+i}")
    a(f"v_add_u32 v{vT}, s59, v{vFL}\nv_add_u32 v{vT+1}, s60, v{vFP}")
    a("s_mov_b64 exec, s[52:53]")
    for t in range(2):
        for r in range(16):
            a(f"ds_add_f32 v{vT}, v{vACC+16*t+r} offset:{t*128 + (r//4)*32 + (r%4)*4}")
    a(f"""
    s_mov_b64 exec, s[54:55]
    ds_add_f32 v{vT+1}, v167
    s_mov_b64 exec, -1
    """)
    for r in range(0,32,2):
        a(f"v_pk_mov_b32 {rr(vACC+r,2)}, {rr(vZ,2)}, {rr(vZ,2)} op_sel:[0,0]")

def gen_k2(name):
    a = Asm()
    a(f"""
    s_cmp_ge_u32 s2, {K2_GRID}
    s_cbranch_scc1 K2_EXIT
    s_load_dwordx4 s[4:7], s[0:1], 0
    s_load_dwordx2 s[8:9], s[0:1], 48
    s_load_dwordx2 s[10:11], s[0:1], 64
    s_load_dwordx2 s[12:13], s[0:1], 80
    s_and_b32 s3, s2, 7
    s_lshl_b32 s3, s3, 5
    s_lshr_b32 s14, s2, 3
    s_add_u32 s3, s3, s14
    s_mul_i32 s33, s3, {BN}
    v_lshrrev_b32 v1, 6, v0
    v_and_b32 v4, 63, v0
    v_readfirstlane_b32 s32, v1
    ; w = t/3, j = t%3
    v_mul_u32_u24 v1, 43691, v0
    v_lshrrev_b32 v1, 17, v1
    v_mul_u32_u24 v3, 3, v1
    v_sub_u32 v3, v0, v3
    v_mul_u32_u24 v2, {TAB_STRIDE}, v1
    s_lshl_b32 s14, s3, 2
    s_add_u32 s14, s14, {WS_TAB}
    v_cmp_gt_u32 vcc, {3*P}, v0
    s_mov_b64 s[62:63], vcc
    s_mov_b32 s48, -1
    s_mov_b32 s49, 0
    s_mov_b32 s50, 0
    s_mov_b32 s51, -1
    s_mov_b32 s52, 0x11111111
    s_mov_b32 s53, 0x11111111
    s_not_b64 s[54:55], s[52:53]
    s_waitcnt lgkmcnt(0)
    s_mov_b32 s16, s4
    s_or_b32 s17, s5, {128<<16}
    s_mov_b32 s18, {N}
    s_mov_b32 s19, 0x00020000
    s_mov_b32 s20, s12
    s_mov_b32 s21, s13
    s_mov_b32 s22, 0x1200000
    s_mov_b32 s23, 0x00020000
    s_mov_b32 s28, s8
    s_mov_b32 s29, s9
    s_mov_b32 s30, 128
    s_mov_b32 s31, 0x00020000
    s_mov_b64 exec, s[62:63]
    buffer_load_dwordx2 v[166:167], v2, s[20:23], s14 offen
    s_mov_b64 exec, -1
    v_mul_u32_u24 v2, {CH}, v1
    v_lshlrev_b32 v5, 4, v4
    s_mov_b32 s14, {WS_WIMG}
    """)
    for o in range(8):
        a(f"buffer_load_dwordx4 {rr(vW2+4*o,4)}, v5, s[20:23], s14 offen offset:{1024*o}" if o < 4 else
          f"buffer_load_dwordx4 {rr(vW2+4*o,4)}, v5, s[20:23], s15 offen offset:{1024*(o-4)}")
        if o == 0: a(f"s_mov_b32 s15, {WS_WIMG+4096}")
    a(f"""
    v_lshlrev_b32 v6, 3, v4
    s_mov_b32 s14, {WS_WIMG+32*1024}
    buffer_load_dwordx2 {rr(vWX,2)}, v6, s[20:23], s14 offen
    buffer_load_dwordx2 {rr(vWX+4,2)}, v6, s[20:23], s14 offen offset:512
    v_lshlrev_b32 v6, 1, v4
    buffer_load_ushort v165, v6, s[28:31], 0 offen
    s_lshr_b32 s59, s32, 1
    s_and_b32 s60, s32, 1
    s_lshl_b32 s61, s59, 5
    s_add_u32 s61, s61, s33
    v_and_b32 v6, 31, v4
    v_lshrrev_b32 v7, 5, v4
    v_add_u32 v{vI}, s61, v6
    v_lshlrev_b32 v{vI+1}, 6, v7
    s_lshl_b32 s14, s60, 12
    s_add_u32 s14, s14, {WS_WIMG+8*1024}
    """)
    for s in range(4):
        a(f"buffer_load_dwordx4 {rr(116+4*s,4)}, {rr(vI,2)}, s[16:19], 0 idxen offen offset:{16*s}")
    for s in range(4):
        a(f"buffer_load_dwordx4 {rr(132+4*s,4)}, v5, s[20:23], s14 offen offset:{1024*s}")
    a(f"""
    v_mov_b32 v48, 0
    v_mov_b32 v49, 0
    v_mov_b32 v50, 0
    v_mov_b32 v51, 0
    v_lshlrev_b32 v52, 4, v0
    v_add_u32 v53, {ZERO_BEG}, v52
    """)
    for r in range(5):
        a(f"ds_write_b128 v53, v[48:51] offset:{r*768*16}")
    a(f"""
    v_cmp_gt_u32 vcc, {ZERO_N16-5*768}, v0
    s_mov_b64 exec, vcc
    ds_write_b128 v53, v[48:51] offset:{5*768*16}
    s_mov_b64 exec, -1
    v_lshrrev_b32 v54, 1, v0
    v_and_b32 v55, 1, v0
    v_lshrrev_b32 v56, 2, v54
    v_and_b32 v57, 3, v54
    v_lshlrev_b32 v57, 4, v57
    v_mov_b32 v58, 0x3f80
    v_mov_b32 v59, 0
    v_lshlrev_b64 v[58:59], v57, v[58:59]
    v_cmp_eq_u32 vcc, v56, v55
    s_nop 1
    v_cndmask_b32 v58, 0, v58, vcc
    v_cndmask_b32 v59, 0, v59, vcc
    v_lshlrev_b32 v60, 3, v0
    v_cmp_gt_u32 vcc, 16, v0
    s_mov_b64 exec, vcc
    ds_write_b64 v60, v[58:59] offset:{L_OHT}
    s_mov_b64 exec, -1
    s_mov_b32 s56, 0
    s_mov_b32 s57, {RFAST}
    s_waitcnt vmcnt(19)
    v_and_b32 v1, 0xffff, v166
    v_and_b32 v166, 0xffff, v167
    v_add_u32 v2, v2, v1
    v_sub_u32 v1, v166, v1
    v_cndmask_b32 v1, 0, v1, s[62:63]
    """)
    a("K2_ROUND:")
    a(f"""
    v_mov_b32 v48, -1
    v_mov_b32 v49, -1
    v_mov_b32 v50, -1
    v_mov_b32 v51, -1
    v_lshlrev_b32 v52, 4, v0
    ds_write_b128 v52, v[48:51] offset:{L_META}
    v_cmp_gt_u32 vcc, {CAP*4//16-768}, v0
    s_mov_b64 exec, vcc
    ds_write_b128 v52, v[48:51] offset:{L_META+768*16}
    v_cmp_gt_u32 vcc, 36, v0
    s_mov_b64 exec, vcc
    v_mov_b32 v48, 0
    v_mov_b32 v49, 0
    v_mov_b32 v50, 0
    v_mov_b32 v51, 0
    ds_write_b128 v52, v[48:51] offset:{L_HIST}
    s_mov_b64 exec, -1
    v_subrev_u32 v5, s56, v1
    v_min_i32 v5, s57, v5
    v_sub_u32 v5, v5, v3
    v_add3_u32 v6, v2, v3, s56
    v_lshlrev_b32 v7, 4, v6
    v_lshlrev_b32 v6, 2, v6
    s_mov_b32 s14, {WS_IDX}
    """)
    for k in range(KMAX):
        a(f"v_cmp_lt_i32 s[{64+2*k}:{65+2*k}], {3*k}, v5")
    for k in range(KMAX):
        a(f"s_mov_b64 exec, s[{64+2*k}:{65+2*k}]\nbuffer_load_dword v{48+k}, v6, s[20:23], s14 offen offset:{12*k}")
    for k in range(KMAX):
        a(f"s_mov_b64 exec, s[{64+2*k}:{65+2*k}]\nbuffer_load_dwordx4 {rr(72+4*k,4)}, v7, s[20:23], 0 offen offset:{48*k}")
    a(f"""
    s_mov_b64 exec, -1
    s_cmp_lg_u32 s56, 0
    s_cbranch_scc1 K2_NOATAB
    s_cmp_lg_u32 s57, {RFAST}
    s_cbranch_scc1 K2_NOATAB
    s_waitcnt vmcnt({2*KMAX})
    s_cmp_lg_u32 s32, 8
    s_cbranch_scc1 K2_NOWXF
    v_lshlrev_b32 v165, 16, v165
    v_lshlrev_b32 v164, 2, v4
    ds_write_b32 v164, v165 offset:{L_WXF}
    K2_NOWXF:
    s_cmp_ge_u32 s32, 8
    s_cbranch_scc1 K2_NOATAB
    """)
    a(mfma(148, 116, 132, None))
    for s in range(1,4): a(mfma(148, 116+4*s, 132+4*s, 148))
    a(f"""
    v_and_b32 v164, 31, v4
    v_lshrrev_b32 v165, 5, v4
    v_mul_u32_u24 v164, {ATAB_STRIDE}, v164
    v_lshl_add_u32 v164, v165, 3, v164
    s_mul_i32 s60, s60, {32*ATAB_STRIDE}
    s_lshl_b32 s59, s59, 6
    s_add_u32 s59, s59, s60
    s_add_u32 s59, s59, {L_ATAB}
    v_add_u32 v164, s59, v164
    s_nop 7
    """)
    for j in range(4):
        a(f"""
        v_cvt_pk_bf16_f32 v{116+2*j}, v{148+4*j}, v{149+4*j}
        v_cvt_pk_bf16_f32 v{117+2*j}, v{150+4*j}, v{151+4*j}
        ds_write_b64 v164, {rr(116+2*j,2)} offset:{16*j}
        """)
    a(f"""
    K2_NOATAB:
    v_mov_b32 v116, 1
    v_mov_b32 v117, {L_MISC}
    s_waitcnt lgkmcnt(0)
    s_barrier
    ds_max_u32 v117, v1
    s_waitcnt vmcnt({KMAX})
    """)
    for k in range(KMAX):
        a(f"""
        s_mov_b64 exec, s[{64+2*k}:{65+2*k}]
        v_lshrrev_b32 v{120+k}, 18, v{48+k}
        ds_add_rtn_u32 v{60+k}, v{120+k}, v116 offset:{L_HIST}
        """)
    a(f"""
    s_mov_b64 exec, -1
    s_waitcnt lgkmcnt(0)
    s_barrier
    v_lshlrev_b32 v132, 3, v4
    ds_read_b64 v[134:135], v132 offset:{L_HIST}
    ds_read_b32 v136, v117
    s_waitcnt lgkmcnt(0)
    v_readfirstlane_b32 s58, v136
    v_add_u32 v137, v134, v135
    s_mov_b32 s61, 0
    K2_SCAN:
    v_mov_b32 v138, v137
    s_nop 1
    v_add_u32_dpp v138, v138, v138 row_shr:1 row_mask:0xf bank_mask:0xf
    s_nop 1
    v_add_u32_dpp v138, v138, v138 row_shr:2 row_mask:0xf bank_mask:0xf
    s_nop 1
    v_add_u32_dpp v138, v138, v138 row_shr:4 row_mask:0xf bank_mask:0xf
    s_nop 1
    v_add_u32_dpp v138, v138, v138 row_shr:8 row_mask:0xf bank_mask:0xf
    s_nop 1
    v_add_u32_dpp v138, v138, v138 row_bcast:15 row_mask:0xa bank_mask:0xf
    s_nop 1
    v_add_u32_dpp v138, v138, v138 row_bcast:31 row_mask:0xc bank_mask:0xf
    s_nop 1
    v_readlane_b32 s34, v138, 63
    s_cmp_lg_u32 s61, 0
    s_cbranch_scc1 K2_SCANDONE
    s_cmp_lg_u32 s57, {RFAST}
    s_cbranch_scc1 K2_CAPOK
    s_cmp_gt_u32 s58, {RFAST}
    s_cbranch_scc1 K2_TOSLOW
    s_cmp_gt_u32 s34, {CAP-416}
    s_cbranch_scc0 K2_CAPOK
    K2_TOSLOW:
    s_mov_b32 s57, {RSLOW}
    s_waitcnt vmcnt(0)
    s_barrier
    s_branch K2_ROUND
    K2_CAPOK:
    v_mov_b32 v139, v137
    s_nop 1
    v_add_u32_dpp v139, v137, v137 quad_perm:[1,0,3,2] row_mask:0xf bank_mask:0xf
    v_cmp_gt_u32 vcc, 31, v139
    v_cmp_gt_u32 s[42:43], s34, v138
    s_and_b64 vcc, vcc, s[42:43]
    s_mov_b32 s42, 0xaaaaaaaa
    s_mov_b32 s43, 0xaaaaaaaa
    s_and_b64 vcc, vcc, s[42:43]
    s_cbranch_vccz K2_SCANDONE
    v_mov_b32 v140, v139
    s_nop 1
    v_add_u32_dpp v140, v139, v139 quad_perm:[2,3,0,1] row_mask:0xf bank_mask:0xf
    v_sub_u32 v140, 0, v140
    v_and_b32 v140, 31, v140
    s_mov_b32 s42, 0x88888888
    s_mov_b32 s43, 0x88888888
    v_cndmask_b32 v140, 0, v140, s[42:43]
    v_add_u32 v137, v137, v140
    s_mov_b32 s61, 1
    s_branch K2_SCAN
    K2_SCANDONE:
    v_sub_u32 v140, v138, v137
    v_add_u32 v141, v140, v134
    ds_write_b64 v132, v[140:141] offset:{L_PREF}
    """)
    for k in range(KMAX):
        a(f"""
        s_mov_b64 exec, s[{64+2*k}:{65+2*k}]
        ds_read_b32 v{120+k}, v{120+k} offset:{L_PREF}
        """)
    a("s_waitcnt vmcnt(0) lgkmcnt(0)")
    for k in range(KMAX):
        a(f"""
        s_mov_b64 exec, s[{64+2*k}:{65+2*k}]
        v_add_lshl_u32 v{120+k}, v{120+k}, v{60+k}, 2
        ds_write_b32 v{120+k}, v{48+k} offset:{L_META}
        v_lshlrev_b32 v{120+k}, 2, v{120+k}
        ds_write_b128 v{120+k}, {rr(72+4*k,4)} offset:{L_REC}
        """)
    a(f"""
    s_mov_b64 exec, -1
    s_add_u32 s59, s34, 31
    s_lshr_b32 s59, s59, 5
    s_mul_i32 s35, s59, s32
    s_add_u32 s36, s35, s59
    s_mul_hi_u32 s35, s35, 0x15555556
    s_mul_hi_u32 s36, s36, 0x15555556
    v_and_b32 v48, 31, v4
    v_lshrrev_b32 v49, 5, v4
    v_lshlrev_b32 v{vI+1}, 6, v49
    s_lshl_b32 s59, s35, 7
    v_lshl_add_u32 v{vMA}, v48, 2, s59
    s_lshl_b32 s59, s35, 9
    v_lshl_add_u32 v{vRA}, v48, 4, s59
    v_lshl_add_u32 v{vRA}, v49, 3, v{vRA}
    v_lshlrev_b32 v6, 3, v49
    v_add_u32 v6, {L_OHT}, v6
    s_mul_i32 s59, s32, {STG_SZ}
    s_add_u32 s59, s59, {L_STG}
    v_lshrrev_b32 v50, 4, v48
    v_lshlrev_b32 v7, 5, v50
    v_bfe_u32 v50, v48, 2, 1
    v_lshl_add_u32 v7, v50, 4, v7
    v_bfe_u32 v50, v48, 3, 1
    v_lshl_add_u32 v7, v50, 3, v7
    v_and_b32 v50, 3, v48
    v_lshl_add_u32 v7, v50, 1, v7
    v_add_u32 v7, s59, v7
    v_mul_u32_u24 v{vSR}, 80, v48
    v_lshl_add_u32 v{vSR}, v49, 4, v{vSR}
    v_add_u32 v{vSR}, s59, v{vSR}
    v_mul_u32_u24 v{vAT}, {ATAB_STRIDE}, v48
    v_lshl_add_u32 v{vAT}, v49, 3, v{vAT}
    v_add_u32 v{vAT}, {L_ATAB}, v{vAT}
    v_lshrrev_b32 v50, 2, v48
    v_mul_u32_u24 v{vFL}, {MACC_STRIDE}, v50
    v_lshl_add_u32 v{vFL}, v49, 4, v{vFL}
    v_add_u32 v{vFL}, {L_MACC}, v{vFL}
    v_lshlrev_b32 v{vFP}, 2, v48
    v_add_u32 v{vFP}, {L_PACC}, v{vFP}
    v_lshlrev_b32 v5, 4, v49
    v_mov_b32 v{vC}, 0xbfb8aa3b
    v_mov_b32 v{vC+1}, 0xbfb8aa3b
    v_mov_b32 v{vONE}, 1.0
    v_mov_b32 v{vONE+1}, 1.0
    v_mov_b32 v{vZ}, 0
    v_mov_b32 v{vB1}, 0x3f80
    s_waitcnt lgkmcnt(0)
    s_barrier
    s_cmp_ge_u32 s35, s36
    s_cbranch_scc1 K2_MAINDONE
    """)
    for l in meta_reads(): a(l)
    for r in range(vACC, vACC+32): a(f"v_mov_b32 v{r}, 0")
    for r in range(vD+16, vD+24): a(f"v_mov_b32 v{r}, 0")
    for r in range(vST, vST+8): a(f"v_mov_b32 v{r}, 0")
    for r in range(vXA, vXA+4): a(f"v_mov_b32 v{r}, 0")
    a(f"""
    s_waitcnt lgkmcnt(0)
    v_readfirstlane_b32 s37, v{vDL}
    v_cmp_ne_u32 s[44:45], s49, v{vDL}
    """.replace("s49", "0xffff") if False else f"""
    s_waitcnt lgkmcnt(0)
    v_readfirstlane_b32 s37, v{vDL}
    v_cmp_ne_u32 vcc, 0xffff, v{vDL}
    s_mov_b64 s[44:45], vcc
    s_lshr_b32 s37, s37, 4
    s_and_b32 s37, s37, -4
    """)
    for l in gathers(): a(l)
    set_base(a)
    wx_reload(a)
    for l in xa_reads(): a(l)
    a("s_waitcnt lgkmcnt(0)")
    for l in stage_writes(): a(l)
    for l in meta_reads(): a(l)
    a("""
    s_mov_b32 s39, 0
    s_waitcnt vmcnt(0)
    """)
    a(mfma(vD, vXA, vWX, None))
    for s in range(4): a(mfma(vD, vH+4*s, vW2+4*s, vD))
    a("s_nop 7\ns_nop 3")
    a("K2_LOOP:")
    a(f"""
    s_waitcnt lgkmcnt(0)
    v_cmp_ne_u32 vcc, 0xffff, v{vDL}
    s_mov_b32 s42, 0
    s_add_u32 s59, s35, 1
    s_cmp_ge_u32 s59, s36
    s_cselect_b64 s[44:45], 0, vcc
    s_cbranch_scc1 K2_NOREBASE
    s_add_u32 s59, s59, 1
    s_lshl_b32 s59, s59, 5
    s_min_u32 s59, s59, s34
    s_cmp_le_u32 s59, s38
    s_cbranch_scc1 K2_NOREBASE
    s_mov_b32 s41, s37
    v_readfirstlane_b32 s37, v{vDL}
    s_mov_b32 s42, 1
    s_lshr_b32 s37, s37, 4
    s_and_b32 s37, s37, -4
    """)
    set_base(a)
    a("K2_NOREBASE:")
    D0, D1 = vD, vD+16
    slotsA = [
        [mfma(vACC+16, D1, vST, vACC+16)],
        [mfma(vACC+16, D1+4, vST+4, vACC+16)] + st_reads() + unwrite(),
        [mfma(D1, vH, vW2+16, None)],
        [mfma(D1, vH+4, vW2+20, D1)],
        [mfma(D1, vH+8, vW2+24, D1)],
        [mfma(D1, vH+12, vW2+28, D1)] + gathers(),
        [mfma(D1, vXA, vWX+4, D1)] + xa_reads(),
        [],
    ]
    elementwise(a, 0, slotsA)
    a("""
    s_cmp_eq_u32 s39, 0
    s_cbranch_scc1 K2_NOFLUSH
    """)
    flush(a, "s40")
    a("""
    K2_NOFLUSH:
    s_mov_b32 s39, s42
    s_mov_b32 s40, s41
    s_cmp_eq_u32 s42, 0
    s_cbranch_scc1 K2_NOWX
    """)
    wx_reload(a)
    a("K2_NOWX:")
    slotsB = [
        ["s_waitcnt lgkmcnt(0)", mfma(vACC, D0, vST, vACC)],
        [mfma(vACC, D0+4, vST+4, vACC)] + stage_writes() + meta_reads(),
        [],
        [mfma(D0, vXA, vWX, None)],
        ["s_waitcnt vmcnt(0)", mfma(D0, vH, vW2, D0)],
        [mfma(D0, vH+4, vW2+4, D0)],
        [mfma(D0, vH+8, vW2+8, D0)],
        [mfma(D0, vH+12, vW2+12, D0)],
    ]
    elementwise(a, 1, slotsB)
    a("""
    s_add_u32 s35, s35, 1
    s_cmp_lt_u32 s35, s36
    s_nop 1
    s_cbranch_scc1 K2_LOOP
    """)
    a(mfma(vACC+16, D1, vST, vACC+16))
    a(mfma(vACC+16, D1+4, vST+4, vACC+16))
    a("s_nop 7\ns_nop 3")
    flush(a, "s37")
    a(f"""
    K2_MAINDONE:
    s_waitcnt lgkmcnt(0)
    s_barrier
    s_add_u32 s56, s56, s57
    s_cmp_lt_u32 s56, s58
    s_cbranch_scc0 K2_EPI
    s_branch K2_ROUND
    K2_EPI:
    """)
    a(f"""
    s_mov_b32 s24, s10
    s_mov_b32 s25, s11
    s_mov_b32 s26, {N*128}
    s_mov_b32 s27, 0x00020000
    s_cmp_ge_u32 s32, 8
    s_cbranch_scc1 K2_POS
    s_lshr_b32 s59, s32, 1
    s_and_b32 s60, s32, 1
    v_and_b32 v48, 31, v4
    v_lshrrev_b32 v49, 5, v4
    s_lshl_b32 s61, s59, 5
    v_add_u32 v50, s61, v48
    v_add_u32 v{vI}, s33, v50
    v_lshlrev_b32 v{vI+1}, 6, v49
    v_lshlrev_b32 v5, 4, v4
    s_lshl_b32 s14, s60, 13
    s_add_u32 s14, s14, {WS_WIMG+16*1024}
    s_add_u32 s15, s14, 4096
    """)
    for s in range(4):
        a(f"buffer_load_dwordx4 {rr(vH+4*s,4)}, {rr(vI,2)}, s[16:19], 0 idxen offen offset:{16*s}")
    for s in range(8):
        a(f"buffer_load_dwordx4 {rr(8+4*s,4)}, v5, s[20:23], {'s14' if s<4 else 's15'} offen offset:{1024*(s%4)}")
    a(f"""
    s_lshl_b32 s61, s60, 6
    v_lshlrev_b32 v53, 3, v49
    v_add_u32 v53, s61, v53
    v_mov_b32 v52, v{vI}
    """)
    for j in range(4):
        a(f"buffer_load_dwordx2 {rr(56+2*j,2)}, v[52:53], s[16:19], 0 idxen offen offset:{16*j}")
    a(f"""
    v_mul_u32_u24 v51, {MACC_STRIDE}, v50
    v_lshl_add_u32 v51, v49, 7, v51
    v_add_u32 v51, {L_MACC}, v51
    """)
    for s in range(4):
        a(f"ds_read_b128 {rr(80+8*s,4)}, v51 offset:{32*s}\nds_read_b128 {rr(84+8*s,4)}, v51 offset:{32*s+16}")
    a("s_waitcnt lgkmcnt(0)")
    for s in range(4):
        for i in range(4):
            a(f"v_cvt_pk_bf16_f32 v{128+4*s+i}, v{80+8*s+2*i}, v{81+8*s+2*i}")
    a("s_waitcnt vmcnt(4)")
    a(mfma(64, 8, vH, None))
    for s in range(1,4): a(mfma(64, 8+4*s, vH+4*s, 64))
    for s in range(4): a(mfma(64, 24+4*s, 128+4*s, 64))
    a(f"""
    v_lshlrev_b32 v54, 7, v{vI}
    v_add_u32 v54, v54, v53
    v_cmp_gt_u32 vcc, {BN}, v50
    s_nop 7
    s_nop 1
    s_waitcnt vmcnt(0)
    """)
    for r in range(16):
        a(f"""
        v_mul_f32 v80, 0xbfb8aa3b, v{64+r}
        v_exp_f32 v80, v80
        s_nop 0
        v_add_f32 v80, 1.0, v80
        v_rcp_f32 v80, v80
        s_nop 0
        v_mul_f32 v{64+r}, v{64+r}, v80
        """)
    for j in range(4):
        for hh in range(2):
            src = 56+2*j+hh
            a(f"""
            v_lshlrev_b32 v80, 16, v{src}
            v_and_b32 v81, 0xffff0000, v{src}
            v_add_f32 v80, v80, v{64+4*j+2*hh}
            v_add_f32 v81, v81, v{65+4*j+2*hh}
            v_cvt_pk_bf16_f32 v{84+2*j+hh}, v80, v81
            """)
    a("s_mov_b64 exec, vcc")
    for j in range(4):
        a(f"buffer_store_dwordx2 {rr(84+2*j,2)}, v54, s[24:27], 0 offen offset:{16*j}")
    a(f"""
    s_endpgm
    K2_POS:
    v_subrev_u32 v50, 512, v0
    v_add_u32 v51, s33, v50
    v_cmp_gt_u32 vcc, {BN}, v50
    s_mov_b32 s59, {N}
    v_cmp_gt_u32 s[42:43], s59, v51
    s_and_b64 vcc, vcc, s[42:43]
    s_and_b64 exec, exec, vcc
    s_cbranch_execz K2_EXIT
    s_mov_b32 s28, s6
    s_mov_b32 s29, s7
    s_mov_b32 s30, {N*6}
    s_add_u32 s24, s10, {N*128}
    s_addc_u32 s25, s11, 0
    s_mov_b32 s26, {N*6}
    v_mul_u32_u24 v52, 6, v51
    buffer_load_ushort v56, v52, s[28:31], 0 offen
    buffer_load_ushort v57, v52, s[28:31], 0 offen offset:2
    buffer_load_ushort v58, v52, s[28:31], 0 offen offset:4
    v_lshlrev_b32 v53, 4, v50
    v_add_u32 v53, {L_PACC}, v53
    ds_read_b128 v[60:63], v53
    s_waitcnt vmcnt(0) lgkmcnt(0)
    v_lshlrev_b32 v56, 16, v56
    v_lshlrev_b32 v57, 16, v57
    v_lshlrev_b32 v58, 16, v58
    v_add_f32 v56, v56, v61
    v_add_f32 v57, v57, v62
    v_add_f32 v58, v58, v63
    v_cvt_pk_bf16_f32 v56, v56, v57
    v_cvt_pk_bf16_f32 v58, v58, v58
    buffer_store_short v56, v52, s[24:27], 0 offen
    buffer_store_short_d16_hi v56, v52, s[24:27], 0 offen offset:2
    buffer_store_short v58, v52, s[24:27], 0 offen offset:4
    K2_EXIT:
    s_endpgm
    """)
    return a.text()
```

```python
import sys
from common import *
import k1, k2
ref = open('standalone__cheap_equivariant_egnn__graph.s.ref').read()
head = [l for l in ref.split('\n') if l.startswith(';') and '@launch' not in l and 'Override' not in l and 'grid=ceil' not in l]
def kd(name, vg, sg):
    return f""".amdhsa_kernel {name}
  .amdhsa_next_free_vgpr {vg}
  .amdhsa_next_free_sgpr {sg}
  .amdhsa_accum_offset {(vg+3)//4*4}
  .amdhsa_group_segment_fixed_size 0
  .amdhsa_kernarg_size 88
  .amdhsa_user_sgpr_count 2
  .amdhsa_user_sgpr_kernarg_segment_ptr 1
  .amdhsa_system_sgpr_workgroup_id_x 1
.end_amdhsa_kernel
"""
n1, n2 = "egnn_part_kernel", "egnn_main_kernel"
s = "\n".join(head) + "\n"
s += f"; @launch kernel={n1} grid=({k1.K1_GRID},1,1) block=({k1.K1_THREADS},1,1) lds={k1.K1_LDS}\n"
s += f"; @launch kernel={n2} grid=({k2.K2_GRID},1,1) block=({k2.K2_THREADS},1,1) lds={k2.K2_LDS}\n"
s += '.amdgcn_target "amdgcn-amd-amdhsa--gfx950"\n.text\n'
for n, body in ((n1, k1.gen_k1(n1)), (n2, k2.gen_k2(n2))):
    s += f".globl {n}\n.p2align 8\n.type {n},@function\n{n}:\n" + body
s += '.section .rodata,"a"\n.p2align 6\n' + kd(n1, 120, 102 if DIAG else 64) + ".p2align 6\n" + kd(n2, k2.K2_VGPRS, 102)
out = sys.argv[1] if len(sys.argv) > 1 else 'standalone__cheap_equivariant_egnn__graph.s'
open(out, 'w').write(s)
print("wrote", out, len(s))
```

```python
N = 25000
E = 800000
P = 250
CH = 3200
SBN = 49
BN = 98
NB = 256
WS_REC = 0
WS_IDX = 0xC80000
WS_POSF = 0xA00000
WS_TAB = 0x1000000
TAB_STRIDE = 1040
WS_WIMG = 0x1100000
WS_SIZE = 268435456

class Asm:
    def __init__(self):
        self.lines = []
    def __call__(self, s):
        for l in s.strip("\n").split("\n"):
            self.lines.append("    " + l.strip() if not l.strip().endswith(":") else l.strip())
    def label(self, name):
        self.lines.append(name + ":")
    def text(self):
        return "\n".join(self.lines) + "\n"

import os
DIAG = int(os.environ.get("DIAG", "0"))
WS_STAMP = 0x1140000
def stamp(a, i, vreg):
    if not DIAG: return
    a(f"s_memtime s[100:101]\ns_waitcnt lgkmcnt(0)\nv_writelane_b32 v{vreg}, s100, {i}")
def stamp_rt(a, i, vreg):
    if not DIAG: return
    a(f"s_memrealtime s[100:101]\ns_waitcnt lgkmcnt(0)\nv_writelane_b32 v{vreg}, s100, {i}")
def stamp_dump(a, n, vreg, kidx, srd, vt):
    if not DIAG: return
    a(f"""
    s_mov_b64 exec, -1
    v_lshrrev_b32 v{vt}, 6, v0
    v_lshlrev_b32 v{vt}, 6, v{vt}
    v_and_b32 v{vt+1}, 63, v0
    v_lshl_add_u32 v{vt}, v{vt+1}, 2, v{vt}
    s_lshl_b32 s100, s2, 10
    s_add_u32 s100, s100, {WS_STAMP + kidx*0x50000}
    s_mov_b64 exec, 0xffff
    buffer_store_dword v{vreg}, v{vt}, {srd}, s100 offen
    """)
```

```python
from common import *

K1_THREADS = 832
K1_WAVES = 13
K1_GRID = 253
K1_LDS_HIST = 0
K1_LDS_REC = 4096
K1_LDS = K1_LDS_REC + CH*12

def gen_k1(name):
    a = Asm()
    a(f"""
    s_cmp_ge_u32 s2, {K1_GRID}
    s_cbranch_scc1 K1_EXIT
    s_cmp_ge_u32 s2, {P}
    s_cbranch_scc1 K1_WEIGHTS
    s_load_dwordx4 s[4:7], s[0:1], 8
    s_load_dwordx4 s[8:11], s[0:1], 24
    s_load_dwordx2 s[12:13], s[0:1], 80
    """)
    stamp_rt(a, 0, 119); stamp(a, 1, 119)
    a(f"""
    v_lshlrev_b32 v1, 2, v0
    v_mov_b32 v2, 0
    ds_write_b32 v1, v2
    v_cmp_gt_u32 vcc, 800, v0
    s_mov_b64 s[38:39], vcc
    v_lshlrev_b32 v1, 4, v0
    v_lshlrev_b32 v2, 5, v0
    v_mov_b32 v3, 1
    v_readfirstlane_b32 s40, v0
    s_mul_i32 s36, s2, {CH*4}
    s_mul_i32 s37, s2, {CH*8}
    s_waitcnt lgkmcnt(0)
    s_mov_b32 s16, s4
    s_mov_b32 s17, s5
    s_mov_b32 s18, {N*6}
    s_mov_b32 s19, 0x00020000
    s_mov_b32 s20, s6
    s_mov_b32 s21, s7
    s_mov_b32 s22, {E*8}
    s_mov_b32 s23, 0x00020000
    s_mov_b32 s24, s8
    s_mov_b32 s25, s9
    s_mov_b32 s26, {E*4}
    s_mov_b32 s27, 0x00020000
    s_mov_b32 s28, s10
    s_mov_b32 s29, s11
    s_mov_b32 s30, {E*4}
    s_mov_b32 s31, 0x00020000
    s_mov_b32 s32, s12
    s_mov_b32 s33, s13
    s_mov_b32 s34, 0x1200000
    s_mov_b32 s35, 0x00020000
    s_mov_b64 exec, s[38:39]
    buffer_load_dwordx4 v[4:7], v1, s[28:31], s36 offen
    buffer_load_dwordx4 v[8:11], v1, s[24:27], s36 offen
    buffer_load_dwordx4 v[12:15], v2, s[20:23], s37 offen
    buffer_load_dwordx4 v[16:19], v2, s[20:23], s37 offen offset:16
    v_subrev_u32 v30, 128, v0
    v_mul_u32_u24 v31, 6, v30
    s_mul_i32 s41, s2, 600
    v_cmp_gt_u32 vcc, 100, v30
    s_mov_b64 s[44:45], vcc
    s_mov_b64 exec, vcc
    buffer_load_ushort v32, v31, s[16:19], s41 offen
    buffer_load_ushort v33, v31, s[16:19], s41 offen offset:2
    buffer_load_ushort v34, v31, s[16:19], s41 offen offset:4
    s_mov_b64 exec, s[38:39]
    s_barrier
    s_waitcnt vmcnt(6)
    """)
    stamp(a, 2, 119)
    for i in range(4):
        a(f"""
        v_mul_u32_u24 v{44+i}, 85599, v{4+i}
        v_lshrrev_b32 v{44+i}, 22, v{44+i}
        v_lshrrev_b32 v{68+i}, 1, v{44+i}
        v_lshlrev_b32 v{44+i}, 2, v{44+i}
        ds_add_rtn_u32 v{48+i}, v{44+i}, v3
        v_mul_u32_u24 v{68+i}, {BN}, v{68+i}
        v_sub_u32 v{68+i}, v{4+i}, v{68+i}
        """)
    a("""
    s_waitcnt lgkmcnt(0)
    s_barrier
    """)
    stamp(a, 3, 119)
    a(f"""
    s_cmp_ge_u32 s40, 64
    s_cbranch_scc1 K1_NOSCAN
    v_lshlrev_b32 v80, 5, v0
    ds_read_b128 v[84:87], v80
    ds_read_b128 v[88:91], v80 offset:16
    s_waitcnt lgkmcnt(0)
    v_add_u32 v92, v84, v85
    v_add_u32 v93, v92, v86
    v_add_u32 v94, v93, v87
    v_add_u32 v95, v94, v88
    v_add_u32 v96, v95, v89
    v_add_u32 v97, v96, v90
    v_add_u32 v98, v97, v91
    v_mov_b32 v99, v98
    s_nop 1
    v_add_u32_dpp v99, v99, v99 row_shr:1 row_mask:0xf bank_mask:0xf
    s_nop 1
    v_add_u32_dpp v99, v99, v99 row_shr:2 row_mask:0xf bank_mask:0xf
    s_nop 1
    v_add_u32_dpp v99, v99, v99 row_shr:4 row_mask:0xf bank_mask:0xf
    s_nop 1
    v_add_u32_dpp v99, v99, v99 row_shr:8 row_mask:0xf bank_mask:0xf
    s_nop 1
    v_add_u32_dpp v99, v99, v99 row_bcast:15 row_mask:0xa bank_mask:0xf
    s_nop 1
    v_add_u32_dpp v99, v99, v99 row_bcast:31 row_mask:0xc bank_mask:0xf
    v_sub_u32 v100, v99, v98
    v_add_u32 v101, v100, v84
    v_add_u32 v102, v100, v92
    v_add_u32 v103, v100, v93
    v_add_u32 v104, v100, v94
    v_add_u32 v105, v100, v95
    v_add_u32 v106, v100, v96
    v_add_u32 v107, v100, v97
    ds_write_b128 v80, v[100:103]
    ds_write_b128 v80, v[104:107] offset:16
    v_lshl_or_b32 v108, v101, 16, v100
    v_lshl_or_b32 v109, v103, 16, v102
    v_lshl_or_b32 v110, v105, 16, v104
    v_lshl_or_b32 v111, v107, 16, v106
    s_mul_i32 s41, s2, {TAB_STRIDE}
    s_add_u32 s41, s41, {WS_TAB}
    buffer_store_dwordx4 v[108:111], v1, s[32:35], s41 offen
    v_mov_b32 v112, {CH | (CH<<16)}
    v_mov_b32 v113, v112
    v_mov_b32 v114, v112
    v_mov_b32 v115, v112
    s_mov_b64 exec, 1
    buffer_store_dwordx4 v[112:115], v1, s[32:35], s41 offen offset:1024
    s_mov_b64 exec, -1
    s_waitcnt lgkmcnt(0)
    K1_NOSCAN:
    s_barrier
    """)
    stamp(a, 4, 119)
    for i in range(4):
        a(f"ds_read_b32 v{80+i}, v{44+i}")
    a("s_waitcnt vmcnt(0)")
    stamp(a, 5, 119)
    for i in range(4):
        a(f"v_lshl_or_b32 v{68+i}, v{68+i}, 20, v{8+i}")
    a("s_waitcnt lgkmcnt(0)")
    for i in range(4):
        a(f"""
        v_add_u32 v{80+i}, v{80+i}, v{48+i}
        v_mul_u32_u24 v{80+i}, 12, v{80+i}
        v_add_u32 v{80+i}, {K1_LDS_REC}, v{80+i}
        ds_write2_b32 v{80+i}, v{12+2*i}, v{13+2*i} offset0:0 offset1:1
        ds_write_b32 v{80+i}, v{68+i} offset:8
        """)
    a(f"""
    s_mov_b64 exec, s[44:45]
    v_lshlrev_b32 v32, 16, v32
    v_lshlrev_b32 v33, 16, v33
    v_lshlrev_b32 v34, 16, v34
    v_mov_b32 v35, 0
    v_lshlrev_b32 v31, 4, v30
    s_mul_i32 s41, s2, 1600
    s_add_u32 s41, s41, {WS_POSF}
    buffer_store_dwordx4 v[32:35], v31, s[32:35], s41 offen
    s_mov_b64 exec, s[38:39]
    s_waitcnt lgkmcnt(0)
    s_barrier
    """)
    stamp(a, 6, 119)
    a(f"""
    ds_read_b128 v[4:7], v1 offset:{K1_LDS_REC}
    ds_read_b128 v[8:11], v1 offset:{K1_LDS_REC+12800}
    ds_read_b128 v[12:15], v1 offset:{K1_LDS_REC+25600}
    s_mul_i32 s42, s2, {CH*12}
    s_add_u32 s43, s42, 12800
    s_add_u32 s44, s42, 25600
    s_waitcnt lgkmcnt(2)
    buffer_store_dwordx4 v[4:7], v1, s[32:35], s42 offen
    s_waitcnt lgkmcnt(1)
    buffer_store_dwordx4 v[8:11], v1, s[32:35], s43 offen
    s_waitcnt lgkmcnt(0)
    buffer_store_dwordx4 v[12:15], v1, s[32:35], s44 offen
    """)
    stamp(a, 7, 119)
    if DIAG: a("s_waitcnt vmcnt(0)")
    stamp(a, 8, 119); stamp_rt(a, 9, 119)
    stamp_dump(a, 10, 119, 0, "s[32:35]", 30)
    a(f"""
    K1_EXIT:
    s_endpgm
    """)
    a(f"""
    K1_WEIGHTS:
    s_load_dwordx2 s[4:5], s[0:1], 40
    s_load_dwordx2 s[6:7], s[0:1], 56
    s_load_dwordx2 s[12:13], s[0:1], 80
    v_lshrrev_b32 v1, 6, v0
    s_nop 0
    v_readfirstlane_b32 s40, v1
    s_sub_u32 s41, s2, {P}
    s_mul_i32 s41, s41, 13
    s_add_u32 s40, s40, s41
    s_cmp_gt_u32 s40, 32
    s_cbranch_scc1 K1_EXIT
    v_and_b32 v1, 63, v0
    v_and_b32 v2, 31, v1
    v_lshrrev_b32 v3, 5, v1
    s_waitcnt lgkmcnt(0)
    s_mov_b32 s32, s12
    s_mov_b32 s33, s13
    s_mov_b32 s34, 0x1200000
    s_mov_b32 s35, 0x00020000
    s_cmp_lt_u32 s40, 16
    s_cselect_b32 s16, s4, s6
    s_cselect_b32 s17, s5, s7
    s_mov_b32 s47, {128*128}
    s_cselect_b32 s18, {133*128}, s47
    s_mov_b32 s19, 0x00020000
    s_cmp_eq_u32 s40, 32
    s_cbranch_scc1 K1_WXC
    s_cmp_lt_u32 s40, 16
    s_cbranch_scc0 K1_WH
    s_cmp_lt_u32 s40, 8
    s_cselect_b32 s42, 64, 0
    s_lshr_b32 s43, s40, 2
    s_and_b32 s43, s43, 1
    s_and_b32 s44, s40, 3
    s_branch K1_WGO
    K1_WH:
    s_sub_u32 s45, s40, 16
    s_lshr_b32 s43, s45, 3
    s_and_b32 s44, s45, 3
    s_and_b32 s45, s45, 4
    s_lshl_b32 s42, s45, 4
    K1_WGO:
    ; K0 = s42 + 8*s44 ; C0 = 32*s43
    s_lshl_b32 s44, s44, 3
    s_add_u32 s42, s42, s44
    s_lshl_b32 s42, s42, 7
    s_lshl_b32 s43, s43, 6
    s_add_u32 s42, s42, s43
    v_lshlrev_b32 v4, 12, v3
    v_lshl_add_u32 v4, v2, 1, v4
    """)
    for j in range(8):
        a(f"buffer_load_ushort v{8+j}, v4, s[16:19], s42 offen offset:{128*j}")
    a(f"""
    s_lshl_b32 s46, s40, 10
    s_add_u32 s46, s46, {WS_WIMG}
    v_lshlrev_b32 v5, 4, v1
    s_waitcnt vmcnt(0)
    v_lshl_or_b32 v16, v9, 16, v8
    v_lshl_or_b32 v17, v11, 16, v10
    v_lshl_or_b32 v18, v13, 16, v12
    v_lshl_or_b32 v19, v15, 16, v14
    buffer_store_dwordx4 v[16:19], v5, s[32:35], s46 offen
    s_endpgm
    K1_WXC:
    s_mov_b32 s16, s4
    s_mov_b32 s17, s5
    s_mov_b32 s18, {133*128}
    s_mov_b32 s42, {128*128}
    v_lshlrev_b32 v4, 1, v2
    """)
    for t in range(2):
        for r in range(5):
            a(f"buffer_load_ushort v{8+5*t+r}, v4, s[16:19], s42 offen offset:{128*r+64*t}")
    a(f"""
    v_cmp_eq_u32 vcc, 0, v3
    v_lshlrev_b32 v5, 3, v1
    s_mov_b32 s46, {WS_WIMG + 32*1024}
    s_waitcnt vmcnt(0)
    """)
    for t in range(2):
        b = 8+5*t
        a(f"""
        v_lshl_or_b32 v20, v{b+2}, 16, v{b+1}
        v_lshl_or_b32 v21, v{b+4}, 16, v{b+3}
        v_cndmask_b32 v{22+2*t}, v{b}, v20, vcc
        v_cndmask_b32 v{23+2*t}, 0, v21, vcc
        """)
    a("""
    buffer_store_dwordx2 v[22:23], v5, s[32:35], s46 offen
    buffer_store_dwordx2 v[24:25], v5, s[32:35], s46 offen offset:512
    s_endpgm
    """)
    return a.text()
```

```python
from common import *

K2_THREADS = 512
K2_WAVES = 8
K2_GRID = 256
CAP = 3456
L_HIST = 0
L_MISC = 512
L_PREF = 576
L_OHT  = 1152
L_WXF  = 1280
L_META = 1536
L_REC  = L_META + CAP*4
L_PDT  = L_REC + CAP*8
L_ATAB = L_PDT + 104*16
ATAB_STRIDE = 208
L_MACC = L_ATAB + 64*ATAB_STRIDE
MACC_STRIDE = 288
L_PACC = L_MACC + 105*MACC_STRIDE
L_STG  = L_PACC
STG_SZ = 2048
L_HBUF = (L_STG + K2_WAVES*STG_SZ + 127)//128*128
K2_LDS = L_HBUF + K2_WAVES*4096
ZERO_BEG = L_MACC
ZERO_N16 = (L_STG + K2_WAVES*STG_SZ - L_MACC)//16

vW2, vWX, vACC, vD, vH, vXA, vST, vT = 8, 40, 48, 80, 112, 128, 132, 140
vC, vONE, vIP = 148, 150, 152
vDL, vMA, vMS, vRA, vOHB, vSGB, vSG, vSR, vOH, vB1, vZ, vAT, vFL, vFP, vSUM, vHR, vOHC, vSGC = 160,161,162,163,164,165,166,167,168,169,170,172,173,174,175,176,180,181
vWH, vRES = 184, 216
vPS, vPD, vSE = 228, 232, 227
vWXR = 184
vFT = 216
vFN, vFB = 224, 225
vSTAMP = 255
K2_VGPRS = 256
KS = 9
NK = 2*KS
RFAST = 4*KS
RSLOW = 12
SM = 64

ABL = os.environ.get('ABL','').split(',')
def rr(b, n): return f"v[{b}:{b+n-1}]"

def mfma(d, a_, b_, c):
    cs = rr(c,16) if c is not None else "0"
    return f"v_mfma_f32_32x32x16_bf16 {rr(d,16)}, {rr(a_,4)}, {rr(b_,4)}, {cs}"

def elementwise(a, t, slots):
    D = vD + 16*t
    if 'noew' in ABL:
        for sl in slots:
            for l in sl: a(l)
            a("s_nop 7\ns_nop 7")
        return
    for g in range(4):
        ps = (2*g, 2*g+1)
        tmp = [vT + 4*(g%2), vT + 4*(g%2) + 2]
        for p, tm in zip(ps, tmp):
            a(f"v_pk_mul_f32 {rr(tm,2)}, {rr(D+2*p,2)}, {rr(vC,2)}")
        for l in slots[2*g]: a(l)
        for tm in tmp:
            a(f"v_exp_f32 v{tm}, v{tm}\nv_exp_f32 v{tm+1}, v{tm+1}")
        for tm in tmp:
            a(f"v_pk_add_f32 {rr(tm,2)}, {rr(tm,2)}, {rr(vONE,2)}")
        for l in slots[2*g+1]: a(l)
        for tm in tmp:
            a(f"v_rcp_f32 v{tm}, v{tm}\nv_rcp_f32 v{tm+1}, v{tm+1}")
        for p, tm in zip(ps, tmp):
            a(f"v_pk_mul_f32 {rr(tm,2)}, {rr(tm,2)}, {rr(D+2*p,2)}")
        for p, tm in zip(ps, tmp):
            a(f"v_cvt_pk_bf16_f32 v{D+p}, v{tm}, v{tm+1}")

def dma():
    out = []
    for i in range(4):
        out += [f"s_add_u32 m0, s43, {1024*i}" if i else "s_mov_b32 m0, s43", "s_nop 0",
                f"buffer_load_dwordx4 {rr(vIP+2*i,2)}, s[16:19], 0 idxen offen lds"]
    return out

def h_reads(dst=vH):
    return [f"ds_read_b128 {rr(dst+4*s,4)}, v{vHR+s}" for s in range(4)]

def pd_read():
    return ["s_mov_b64 exec, s[44:45]",
            f"ds_read_b128 {rr(vPD,4)}, v{vDL} offset:{L_PDT}",
            "s_mov_b64 exec, -1"]

def ps_load():
    return ["s_mov_b64 exec, s[50:51]",
            f"buffer_load_dwordx3 {rr(vPS,3)}, v{vSE}, s[24:27], 0 idxen",
            "s_mov_b64 exec, -1"]

def xa_reads(wait="s_waitcnt lgkmcnt(4)"):
    return [f"v_add_u32 v{vOH}, v{vDL}, v{vOHB}",
            f"v_lshl_add_u32 v{vSG}, v{vDL}, 2, v{vSGB}",
            wait,
            "s_and_b64 exec, s[44:45], s[50:51]",
            f"v_pk_add_f32 {rr(vPD,2)}, {rr(vPD,2)}, {rr(vPS,2)} neg_lo:[0,1] neg_hi:[0,1]",
            f"v_sub_f32 v{vPD+2}, v{vPD+2}, v{vPS+2}",
            f"v_mul_f32 v{vPD+3}, v{vPD}, v{vPD}",
            f"v_fmac_f32 v{vPD+3}, v{vPD+1}, v{vPD+1}",
            f"v_fmac_f32 v{vPD+3}, v{vPD+2}, v{vPD+2}",
            f"v_cvt_pk_bf16_f32 v{vXA+1}, v{vPD+1}, v{vPD+2}",
            f"v_cvt_pk_bf16_f32 v{vXA}, v{vPD+3}, v{vPD}",
            "s_and_b64 exec, s[44:45], s[48:49]",
            f"ds_read_b64 {rr(vXA,2)}, v{vRA} offset:{L_REC}",
            "s_mov_b64 exec, s[44:45]",
            f"ds_read_b64 {rr(vXA+2,2)}, v{vOH}",
            "s_mov_b64 exec, -1",
            f"v_add_u32 v{vRA}, 256, v{vRA}"]

def stage_writes():
    return ["s_and_b64 exec, s[44:45], s[48:49]",
            f"ds_write_b16 v{vSG}, v{vB1}",
            "s_and_b64 exec, s[44:45], s[50:51]",
            f"ds_write_b16_d16_hi v{vSG}, v{vXA} offset:16",
            f"ds_write_b16 v{vSG}, v{vXA+1} offset:32",
            f"ds_write_b16_d16_hi v{vSG}, v{vXA+1} offset:48",
            "s_mov_b64 exec, -1",
            "s_mov_b64 s[46:47], s[44:45]"]

def unwrite():
    return ["s_and_b64 exec, s[46:47], s[48:49]"] + \
           [f"ds_write_b16 v{vSG}, v{vZ} offset:{16*q}" for q in range(4)] + ["s_mov_b64 exec, -1"]

def dl_read():
    return [f"ds_read_u16 v{vDL}, v{vMA} offset:{L_META+2}",
            f"v_add_u32 v{vMA}, 128, v{vMA}"]

def src_reads(eoff=128):
    return [f"ds_read_u16 v{vIP+2*i}, v{vMS} offset:{L_META+32*i}" for i in range(4)] + \
           [f"ds_read_u16 v{vSE}, v{vMA} offset:{L_META+eoff}",
            f"v_add_u32 v{vMS}, 128, v{vMS}"]

def st_reads():
    return [f"ds_read_b128 {rr(vST,4)}, v{vSR}", f"ds_read_b128 {rr(vST+4,4)}, v{vSR} offset:1024"]

def set_base(a):
    a(f"""
    s_lshl_b32 s59, s37, 4
    s_lshl_b32 s60, s37, 6
    v_subrev_u32 v{vOHB}, s59, v{vOHC}
    v_subrev_u32 v{vSGB}, s60, v{vSGC}
    s_lshl_b32 s59, s37, 2
    v_mov_b32 v{vT}, s59
    ds_read_b32 v{vT+1}, v{vT} offset:{L_PREF+32}
    s_waitcnt lgkmcnt(0)
    v_readfirstlane_b32 s38, v{vT+1}
    """)

def wx_reload(a):
    a(f"""
    s_lshl_b32 s59, s37, 1
    v_add_u32 v{vT}, s59, v{vAT}
    ds_read_b64 {rr(vWX+2,2)}, v{vT}
    ds_read_b64 {rr(vWX+6,2)}, v{vT} offset:{32*ATAB_STRIDE}
    """)

def flush(a, sbase):
    TMP = list(range(236,252)) + list(range(vFT,vFT+8)) + list(range(vT,vT+8))
    a(f"""
    s_mul_i32 s59, {sbase}, {MACC_STRIDE}
    s_lshl_b32 s61, {sbase}, 2
    v_add_u32 v{vOH}, s61, v{vFN}
    ds_read_b32 v{vSUM}, v{vOH} offset:{L_PREF}
    s_lshl_b32 s61, s70, 2
    v_cmp_eq_u32 s[66:67], s61, v{vOH}
    v_add_u32 v{vOH}, s59, v{vFL}
    v_mul_f32 v252, v{vACC}, v{vWXR}
    v_mul_f32 v253, v{vACC+1}, v{vWXR+1}
    """)
    for i in range(2,12):
        a(f"v_fmac_f32 v{252+i%2}, v{vACC+i}, v{vWXR+i}")
    a(f"""
    s_waitcnt lgkmcnt(0)
    v_cmp_le_u32 vcc, s68, v{vSUM}
    v_cmp_gt_u32 s[64:65], s69, v{vSUM}
    s_and_b64 s[64:65], s[64:65], vcc
    s_andn2_b64 s[66:67], s[66:67], vcc
    v_cndmask_b32 v{vOH}, v{vOH}, v{vFB}, s[66:67]
    s_or_b64 s[64:65], s[64:65], s[66:67]
    s_and_b64 exec, s[64:65], s[52:53]
    """)
    for t2 in range(2):
        for j in range(4):
            a(f"ds_read_b128 {rr(TMP[16*t2+4*j],4)}, v{vOH} offset:{t2*128 + j*32}")
    a(f"""
    s_and_b64 exec, s[64:65], s[54:55]
    v_add_u32 v254, v{vOH}, v{vFP}
    ds_read_b32 v{vSUM}, v254 offset:256
    s_mov_b64 exec, -1
    """)
    for i in range(12,32):
        a(f"v_fmac_f32 v{252+i%2}, v{vACC+i}, v{vWXR+i}")
    a(f"""
    v_add_f32 v252, v252, v253
    s_waitcnt lgkmcnt(0)
    v_add_f32 v{vSUM}, v{vSUM}, v252
    """)
    for r in range(0,32,2):
        a(f"v_pk_add_f32 {rr(TMP[r],2)}, {rr(TMP[r],2)}, {rr(vACC+r,2)}")
    a("s_and_b64 exec, s[64:65], s[52:53]")
    for t2 in range(2):
        for j in range(4):
            a(f"ds_write_b128 v{vOH}, {rr(TMP[16*t2+4*j],4)} offset:{t2*128 + j*32}")
    a(f"""
    s_and_b64 exec, s[64:65], s[54:55]
    ds_write_b32 v254, v{vSUM} offset:256
    s_mov_b64 exec, -1
    """)
    for r in range(0,32,2):
        a(f"v_pk_mov_b32 {rr(vACC+r,2)}, {rr(vZ,2)}, {rr(vZ,2)} op_sel:[0,0]")

def merge(a, tag):
    a(f"""
    s_cmp_gt_u32 s32, 1
    s_cbranch_scc1 K2_MERGED{tag}
    v_cmp_gt_u32 vcc, 72, v0
    s_mov_b64 exec, vcc
    v_mov_b32 v64, {L_MISC+16}
    ds_read_b128 v[68:71], v64
    ds_read_b128 v[72:75], v64 offset:16
    v_lshlrev_b32 v65, 2, v0
    v_add_u32 v65, {L_MACC}, v65
    v_mov_b32 v66, 0
    """)
    for w in range(1,8):
        a(f"ds_read_b32 v{80+w}, v65 offset:{(97+w)*MACC_STRIDE}")
    a("s_waitcnt lgkmcnt(0)")
    for w in range(1,8):
        a(f"""
        v_mul_u32_u24 v67, {MACC_STRIDE}, v{68+w}
        v_add_u32 v67, v67, v65
        ds_read_b32 v76, v67
        ds_write_b32 v65, v66 offset:{(97+w)*MACC_STRIDE}
        s_waitcnt lgkmcnt(0)
        v_add_f32 v76, v76, v{80+w}
        ds_write_b32 v67, v76
        """)
    a(f"""
    s_waitcnt lgkmcnt(0)
    s_mov_b64 exec, -1
    K2_MERGED{tag}:
    """)

def node_tile_dma(a):
    a(f"""
    s_lshr_b32 s59, s32, 1
    s_lshl_b32 s59, s59, 5
    s_add_u32 s59, s59, s33
    v_lshrrev_b32 v{vIP}, 3, v6
    v_add_u32 v{vIP}, s59, v{vIP}
    v_add_u32 v{vIP+2}, 8, v{vIP}
    v_add_u32 v{vIP+4}, 16, v{vIP}
    v_add_u32 v{vIP+6}, 24, v{vIP}
    """)
    for l in dma(): a(l)

def gen_k2(name):
    global dma, h_reads, stage_writes, unwrite, st_reads, xa_reads, mfma, src_reads, dl_read
    a = Asm()
    IDX, RANK, HA, REC = 48, 66, 84, 104
    AH, AW, AD = 184, 200, 216
    a(f"""
    s_cmp_ge_u32 s2, {K2_GRID}
    s_cbranch_scc1 K2_EXIT
    s_load_dwordx4 s[4:7], s[0:1], 0
    s_load_dwordx2 s[8:9], s[0:1], 48
    s_load_dwordx2 s[10:11], s[0:1], 64
    s_load_dwordx2 s[12:13], s[0:1], 80
    """)
    stamp_rt(a, 0, vSTAMP); stamp(a, 1, vSTAMP)
    a(f"""
    s_and_b32 s3, s2, 7
    s_lshl_b32 s3, s3, 5
    s_lshr_b32 s14, s2, 3
    s_add_u32 s3, s3, s14
    s_mul_i32 s33, s3, {BN}
    v_lshrrev_b32 v1, 6, v0
    v_and_b32 v6, 63, v0
    v_readfirstlane_b32 s32, v1
    v_lshrrev_b32 v1, 2, v0
    v_and_b32 v5, 3, v0
    v_mul_u32_u24 v2, {TAB_STRIDE}, v1
    s_lshl_b32 s14, s3, 2
    s_add_u32 s14, s14, {WS_TAB}
    s_add_u32 s15, s14, {128*TAB_STRIDE}
    v_cmp_gt_u32 vcc, {4*(P-128)}, v0
    s_mov_b64 s[62:63], vcc
    s_mov_b32 s48, -1
    s_mov_b32 s49, 0
    s_mov_b32 s50, 0
    s_mov_b32 s51, -1
    s_mov_b32 s52, 0x11111111
    s_mov_b32 s53, 0x11111111
    s_not_b64 s[54:55], s[52:53]
    s_lshl_b32 s43, s32, 12
    s_add_u32 s43, s43, {L_HBUF}
    v_and_b32 v7, 7, v6
    v_lshrrev_b32 v3, 4, v6
    v_xor_b32 v4, v7, v3
    v_lshlrev_b32 v{vIP+1}, 4, v4
    v_lshlrev_b32 v{vIP+5}, 4, v4
    v_xor_b32 v{vIP+3}, 64, v{vIP+1}
    v_xor_b32 v{vIP+7}, 64, v{vIP+1}
    v_and_b32 v3, 31, v6
    v_lshrrev_b32 v4, 5, v6
    v_bfe_u32 v7, v3, 1, 3
    v_lshlrev_b32 v4, 2, v4
    v_xor_b32 v4, v4, v7
    v_lshlrev_b32 v4, 4, v4
    v_lshl_add_u32 v4, v3, 7, v4
    v_add_u32 v{vHR}, s43, v4
    v_xor_b32 v{vHR+1}, 16, v{vHR}
    v_xor_b32 v{vHR+2}, 32, v{vHR}
    v_xor_b32 v{vHR+3}, 48, v{vHR}
    s_waitcnt lgkmcnt(0)
    s_mov_b32 s16, s4
    s_or_b32 s17, s5, {128<<16}
    s_mov_b32 s18, {N}
    s_mov_b32 s19, 0x00020000
    s_mov_b32 s20, s12
    s_mov_b32 s21, s13
    s_mov_b32 s22, 0x1200000
    s_mov_b32 s23, 0x00020000
    s_mov_b32 s28, s8
    s_mov_b32 s29, s9
    s_mov_b32 s30, 128
    s_mov_b32 s31, 0x00020000
    buffer_load_dwordx2 v[232:233], v2, s[20:23], s14 offen
    s_mov_b64 exec, s[62:63]
    buffer_load_dwordx2 v[234:235], v2, s[20:23], s15 offen
    s_mov_b64 exec, -1
    v_lshlrev_b32 v7, 4, v6
    s_lshl_b32 s59, s32, 10
    s_add_u32 m0, s59, {L_REC}
    s_add_u32 s14, s59, {WS_WIMG}
    buffer_load_dwordx4 v7, s[20:23], s14 offen lds
    s_add_u32 m0, s59, {L_REC+8192}
    s_add_u32 s14, s59, {WS_WIMG+8192}
    buffer_load_dwordx4 v7, s[20:23], s14 offen lds
    s_mov_b32 m0, {L_REC+16384}
    s_mov_b32 s14, {WS_WIMG+32*1024}
    buffer_load_dwordx4 v7, s[20:23], s14 offen lds
    s_lshl_b32 s59, s32, 4
    s_add_u32 s59, s59, s33
    v_lshrrev_b32 v{vIP}, 3, v6
    v_add_u32 v{vIP}, s59, v{vIP}
    v_add_u32 v{vIP+2}, 8, v{vIP}
    s_lshr_b32 s59, s32, 1
    s_lshl_b32 s59, s59, 13
    s_and_b32 s60, s32, 1
    s_lshl_b32 s60, s60, 11
    s_add_u32 s59, s59, s60
    s_add_u32 m0, s59, {L_HBUF}
    s_nop 0
    buffer_load_dwordx4 {rr(vIP,2)}, s[16:19], 0 idxen offen lds
    s_add_u32 m0, s59, {L_HBUF+1024}
    s_nop 0
    buffer_load_dwordx4 {rr(vIP+2,2)}, s[16:19], 0 idxen offen lds
    v_lshlrev_b32 v3, 1, v6
    buffer_load_ushort v236, v3, s[28:31], 0 offen
    s_add_u32 s24, s12, {WS_POSF}
    s_addc_u32 s25, s13, 0
    s_or_b32 s25, s25, {16<<16}
    s_mov_b32 s26, {N}
    s_mov_b32 s27, 0x00020000
    v_add_u32 v3, s33, v0
    buffer_load_dwordx4 v[248:251], v3, s[24:27], 0 idxen
    v_mul_u32_u24 v2, {CH}, v1
    """)
    a(f"""
    v_mov_b32 v48, 0
    v_mov_b32 v49, 0
    v_mov_b32 v50, 0
    v_mov_b32 v51, 0
    v_lshlrev_b32 v52, 4, v0
    v_add_u32 v53, {ZERO_BEG}, v52
    """)
    for r in range(5):
        a(f"ds_write_b128 v53, v[48:51] offset:{r*512*16}")
    a(f"""
    v_cmp_gt_u32 vcc, {ZERO_N16-5*512}, v0
    s_mov_b64 exec, vcc
    ds_write_b128 v53, v[48:51] offset:{5*512*16}
    s_mov_b64 exec, -1
    v_lshrrev_b32 v54, 1, v0
    v_and_b32 v55, 1, v0
    v_lshrrev_b32 v56, 2, v54
    v_and_b32 v57, 3, v54
    v_lshlrev_b32 v57, 4, v57
    v_mov_b32 v58, 0x3f80
    v_mov_b32 v59, 0
    v_lshlrev_b64 v[58:59], v57, v[58:59]
    v_cmp_eq_u32 vcc, v56, v55
    s_nop 1
    v_cndmask_b32 v58, 0, v58, vcc
    v_cndmask_b32 v59, 0, v59, vcc
    v_lshlrev_b32 v60, 3, v0
    v_cmp_gt_u32 vcc, 16, v0
    s_mov_b64 exec, vcc
    ds_write_b64 v60, v[58:59] offset:{L_OHT}
    s_mov_b64 exec, -1
    s_mov_b32 s56, 0
    s_mov_b32 s57, {RFAST}
    s_waitcnt vmcnt(7)
    """)
    stamp(a, 2, vSTAMP)
    a(f"""
    v_and_b32 v1, 0xffff, v232
    v_and_b32 v232, 0xffff, v233
    v_and_b32 v3, 0xffff, v234
    v_and_b32 v234, 0xffff, v235
    v_add_u32 v4, {128*CH}, v2
    v_add_u32 v2, v2, v1
    v_add_u32 v4, v4, v3
    v_sub_u32 v1, v232, v1
    v_sub_u32 v3, v234, v3
    v_cndmask_b32 v3, 0, v3, s[62:63]
    """)
    a("K2_ROUND:")
    a(f"""
    v_mov_b32 v48, -1
    v_mov_b32 v49, -1
    v_mov_b32 v50, -1
    v_mov_b32 v51, -1
    v_lshlrev_b32 v52, 4, v0
    ds_write_b128 v52, v[48:51] offset:{L_META}
    v_cmp_gt_u32 vcc, {CAP*4//16-512}, v0
    s_mov_b64 exec, vcc
    ds_write_b128 v52, v[48:51] offset:{L_META+512*16}
    v_cmp_gt_u32 vcc, 36, v0
    s_mov_b64 exec, vcc
    v_mov_b32 v48, 0
    v_mov_b32 v49, 0
    v_mov_b32 v50, 0
    v_mov_b32 v51, 0
    ds_write_b128 v52, v[48:51] offset:{L_HIST}
    s_mov_b64 exec, -1
    s_mov_b32 s14, {WS_IDX}
    """)
    for g, (vc, vs) in enumerate(((1,2),(3,4))):
        a(f"""
        v_subrev_u32 v100, s56, v{vc}
        v_min_i32 v100, s57, v100
        v_sub_u32 v100, v100, v5
        v_add3_u32 v{240+g}, v{vs}, v5, s56
        v_mul_u32_u24 v{240+g}, 12, v{240+g}
        """)
        for k in range(KS):
            a(f"v_cmp_lt_i32 s[{SM+2*(g*KS+k)}:{SM+1+2*(g*KS+k)}], {4*k}, v100")
    for g in range(2):
        for k in range(KS):
            n = g*KS+k
            a(f"s_mov_b64 exec, s[{SM+2*n}:{SM+1+2*n}]\nbuffer_load_dwordx3 {rr(REC+4*n,3)}, v{240+g}, s[20:23], 0 offen offset:{48*k}")
    a(f"""
    s_mov_b64 exec, -1
    v_mov_b32 v102, 1
    v_mov_b32 v103, {L_MISC}
    v_max_u32 v100, v1, v3
    s_waitcnt vmcnt({NK}) lgkmcnt(0)
    s_barrier
    ds_max_u32 v103, v100
    s_cmp_lg_u32 s56, 0
    s_cbranch_scc1 K2_NOATAB
    s_cmp_lg_u32 s57, {RFAST}
    s_cbranch_scc1 K2_NOATAB
    s_mov_b32 s28, s4
    s_mov_b32 s29, s5
    s_mov_b32 s30, {N*128}
    s_lshr_b32 s59, s2, 3
    s_mul_i32 s60, s59, 100096
    v_lshlrev_b32 v237, 7, v0
    buffer_load_dword v245, v237, s[28:31], s60 offen
    s_add_u32 s60, s60, 65536
    v_cmp_gt_u32 vcc, 270, v0
    s_mov_b64 exec, vcc
    buffer_load_dword v245, v237, s[28:31], s60 offen
    s_mul_i32 s60, s59, 12544
    s_add_u32 s60, s60, {WS_POSF}
    v_cmp_gt_u32 vcc, 98, v0
    s_mov_b64 exec, vcc
    buffer_load_dword v245, v237, s[20:23], s60 offen
    s_mov_b64 exec, -1
    s_and_b32 s60, s32, 1
    s_lshl_b32 s59, s60, 12
    v_subrev_u32 v237, s59, v{vHR}
    v_xor_b32 v238, 16, v237
    v_xor_b32 v239, 32, v237
    v_xor_b32 v244, 48, v237
    ds_read_b128 {rr(AH,4)}, v237
    ds_read_b128 {rr(AH+4,4)}, v238
    ds_read_b128 {rr(AH+8,4)}, v239
    ds_read_b128 {rr(AH+12,4)}, v244
    v_lshlrev_b32 v7, 4, v6
    v_add_u32 v237, s59, v7
    """)
    for s_ in range(4):
        a(f"ds_read_b128 {rr(AW+4*s_,4)}, v237 offset:{L_REC+8192+1024*s_}")
    for o in range(8):
        a(f"ds_read_b128 {rr(vW2+4*o,4)}, v7 offset:{L_REC+1024*o}")
    a(f"""
    v_lshlrev_b32 v237, 3, v6
    ds_read_b64 {rr(vWX,2)}, v237 offset:{L_REC+16384}
    ds_read_b64 {rr(vWX+4,2)}, v237 offset:{L_REC+16384+512}
    s_cmp_lg_u32 s32, 7
    s_cbranch_scc1 K2_NOWXF
    v_lshlrev_b32 v236, 16, v236
    v_lshlrev_b32 v237, 2, v6
    ds_write_b32 v237, v236 offset:{L_WXF}
    K2_NOWXF:
    v_lshlrev_b32 v237, 4, v0
    v_cmp_gt_u32 vcc, 104, v0
    s_mov_b64 exec, vcc
    ds_write_b128 v237, v[248:251] offset:{L_PDT}
    s_mov_b64 exec, -1
    v_and_b32 v236, 31, v6
    v_lshrrev_b32 v237, 5, v6
    v_mul_u32_u24 v236, {ATAB_STRIDE}, v236
    v_lshl_add_u32 v236, v237, 3, v236
    s_lshr_b32 s59, s32, 1
    s_mul_i32 s60, s60, {32*ATAB_STRIDE}
    s_lshl_b32 s61, s59, 6
    s_add_u32 s61, s61, s60
    s_add_u32 s61, s61, {L_ATAB}
    v_add_u32 v236, s61, v236
    s_waitcnt lgkmcnt(11)
    """)
    a(mfma(AD, AH, AW, None))
    for s_ in range(1,4): a(mfma(AD, AH+4*s_, AW+4*s_, AD))
    a("s_nop 7\ns_nop 3")
    for j in range(4):
        a(f"""
        v_cvt_pk_bf16_f32 v{AH+2*j}, v{AD+4*j}, v{AD+1+4*j}
        v_cvt_pk_bf16_f32 v{AH+1+2*j}, v{AD+2+4*j}, v{AD+3+4*j}
        ds_write_b64 v236, {rr(AH+2*j,2)} offset:{16*j}
        """)
        if j == 0: a("s_cmp_eq_u32 s59, 3\ns_cbranch_scc1 K2_ATABEND")
    a("K2_ATABEND:\ns_waitcnt vmcnt(3)\ns_branch K2_RECOK")
    a("K2_NOATAB:")
    stamp(a, 3, vSTAMP)
    a(f"s_waitcnt vmcnt(0)\nK2_RECOK:")
    stamp(a, 4, vSTAMP)
    for n in range(NK):
        a(f"""
        s_mov_b64 exec, s[{SM+2*n}:{SM+1+2*n}]
        """)
        if n % KS >= 3: a(f"s_cbranch_execz K2_SKA{n//KS}")
        a(f"""
        v_lshrrev_b32 v{HA+n}, 18, v{REC+4*n+2}
        ds_add_rtn_u32 v{RANK+n}, v{HA+n}, v102 offset:{L_HIST}
        """)
        if n % KS == KS-1: a(f"K2_SKA{n//KS}:")
    a(f"""
    s_mov_b64 exec, -1
    s_waitcnt lgkmcnt(0)
    s_barrier
    """)
    stamp(a, 5, vSTAMP)
    a(f"""
    v_lshlrev_b32 v184, 3, v6
    ds_read_b64 v[186:187], v184 offset:{L_HIST}
    ds_read_b32 v188, v103
    s_waitcnt lgkmcnt(0)
    v_readfirstlane_b32 s58, v188
    v_add_u32 v189, v186, v187
    s_mov_b32 s61, 0
    K2_SCAN:
    v_mov_b32 v190, v189
    s_nop 1
    v_add_u32_dpp v190, v190, v190 row_shr:1 row_mask:0xf bank_mask:0xf
    s_nop 1
    v_add_u32_dpp v190, v190, v190 row_shr:2 row_mask:0xf bank_mask:0xf
    s_nop 1
    v_add_u32_dpp v190, v190, v190 row_shr:4 row_mask:0xf bank_mask:0xf
    s_nop 1
    v_add_u32_dpp v190, v190, v190 row_shr:8 row_mask:0xf bank_mask:0xf
    s_nop 1
    v_add_u32_dpp v190, v190, v190 row_bcast:15 row_mask:0xa bank_mask:0xf
    s_nop 1
    v_add_u32_dpp v190, v190, v190 row_bcast:31 row_mask:0xc bank_mask:0xf
    s_nop 1
    v_readlane_b32 s34, v190, 63
    s_cmp_lg_u32 s57, {RFAST}
    s_cbranch_scc1 K2_CAPOK
    s_cmp_gt_u32 s58, {RFAST}
    s_cbranch_scc1 K2_TOSLOW
    s_cmp_gt_u32 s34, {CAP}
    s_cbranch_scc0 K2_CAPOK
    K2_TOSLOW:
    s_mov_b32 s57, {RSLOW}
    s_waitcnt vmcnt(0)
    s_barrier
    s_branch K2_ROUND
    K2_CAPOK:
    s_cmp_lg_u32 s61, 0
    s_cbranch_scc1 K2_SCANDONE
    v_mov_b32 v191, v189
    s_nop 1
    v_add_u32_dpp v191, v189, v189 quad_perm:[1,0,3,2] row_mask:0xf bank_mask:0xf
    v_cmp_gt_u32 vcc, 31, v191
    v_cmp_gt_u32 s[44:45], s34, v190
    s_and_b64 vcc, vcc, s[44:45]
    s_mov_b32 s44, 0xaaaaaaaa
    s_mov_b32 s45, 0xaaaaaaaa
    s_and_b64 vcc, vcc, s[44:45]
    s_cbranch_vccz K2_SCANDONE
    v_mov_b32 v192, v191
    s_nop 1
    v_add_u32_dpp v192, v191, v191 quad_perm:[2,3,0,1] row_mask:0xf bank_mask:0xf
    v_sub_u32 v192, 0, v192
    v_and_b32 v192, 31, v192
    s_mov_b32 s44, 0x88888888
    s_mov_b32 s45, 0x88888888
    v_cndmask_b32 v192, 0, v192, s[44:45]
    v_add_u32 v189, v189, v192
    s_mov_b32 s61, 1
    s_branch K2_SCAN
    K2_SCANDONE:
    v_sub_u32 v192, v190, v189
    v_add_u32 v193, v192, v186
    ds_write_b64 v184, v[192:193] offset:{L_PREF}
    """)
    for n in range(NK):
        a(f"""
        s_mov_b64 exec, s[{SM+2*n}:{SM+1+2*n}]
        """)
        if n % KS >= 3: a(f"s_cbranch_execz K2_SKB{n//KS}")
        a(f"ds_read_b32 v{HA+n}, v{HA+n} offset:{L_PREF}")
        if n % KS == KS-1: a(f"K2_SKB{n//KS}:")
    a("s_waitcnt lgkmcnt(0)")
    stamp(a, 6, vSTAMP)
    for n in range(NK):
        a(f"""
        s_mov_b64 exec, s[{SM+2*n}:{SM+1+2*n}]
        """)
        if n % KS >= 3: a(f"s_cbranch_execz K2_SKC{n//KS}")
        a(f"""
        v_add_lshl_u32 v{HA+n}, v{HA+n}, v{RANK+n}, 2
        ds_write_b32 v{HA+n}, v{REC+4*n+2} offset:{L_META}
        v_lshlrev_b32 v{HA+n}, 1, v{HA+n}
        ds_write_b64 v{HA+n}, {rr(REC+4*n,2)} offset:{L_REC}
        """)
        if n % KS == KS-1: a(f"K2_SKC{n//KS}:")
    a(f"""
    s_mov_b64 exec, -1
    s_add_u32 s59, s34, 31
    s_lshr_b32 s59, s59, 5
    s_mul_i32 s35, s59, s32
    s_add_u32 s36, s35, s59
    s_lshr_b32 s35, s35, 3
    s_lshr_b32 s36, s36, 3
    v_and_b32 v7, 7, v6
    v_lshrrev_b32 v48, 4, v6
    v_xor_b32 v48, v7, v48
    v_lshlrev_b32 v{vIP+1}, 4, v48
    v_lshlrev_b32 v{vIP+5}, 4, v48
    v_xor_b32 v{vIP+3}, 64, v{vIP+1}
    v_xor_b32 v{vIP+7}, 64, v{vIP+1}
    v_and_b32 v48, 31, v6
    v_lshrrev_b32 v49, 5, v6
    s_lshl_b32 s59, s35, 7
    v_lshl_add_u32 v{vMA}, v48, 2, s59
    v_lshrrev_b32 v50, 3, v6
    v_lshl_add_u32 v{vMS}, v50, 2, s59
    s_lshl_b32 s59, s35, 8
    v_lshl_add_u32 v{vRA}, v48, 3, s59
    v_lshlrev_b32 v{vOHC}, 3, v49
    v_add_u32 v{vOHC}, {L_OHT}, v{vOHC}
    s_lshl_b32 s59, s32, 11
    s_add_u32 s59, s59, {L_STG}
    v_lshrrev_b32 v50, 4, v48
    v_lshlrev_b32 v{vSGC}, 10, v50
    v_bfe_u32 v50, v48, 2, 1
    v_lshl_add_u32 v{vSGC}, v50, 9, v{vSGC}
    v_bfe_u32 v50, v48, 3, 1
    v_lshl_add_u32 v{vSGC}, v50, 3, v{vSGC}
    v_and_b32 v50, 3, v48
    v_lshl_add_u32 v{vSGC}, v50, 1, v{vSGC}
    v_add_u32 v{vSGC}, s59, v{vSGC}
    v_lshlrev_b32 v{vSR}, 4, v48
    v_lshl_add_u32 v{vSR}, v49, 9, v{vSR}
    v_add_u32 v{vSR}, s59, v{vSR}
    v_mul_u32_u24 v{vAT}, {ATAB_STRIDE}, v48
    v_lshl_add_u32 v{vAT}, v49, 3, v{vAT}
    v_add_u32 v{vAT}, {L_ATAB}, v{vAT}
    v_lshrrev_b32 v50, 2, v48
    v_mul_u32_u24 v{vFL}, {MACC_STRIDE}, v50
    v_lshl_add_u32 v{vFL}, v49, 4, v{vFL}
    v_add_u32 v{vFL}, {L_MACC}, v{vFL}
    v_lshlrev_b32 v{vFN}, 2, v50
    s_mul_i32 s59, s32, {MACC_STRIDE}
    s_add_u32 s59, s59, {L_MACC + 97*MACC_STRIDE}
    v_lshl_add_u32 v{vFB}, v49, 4, s59
    s_lshl_b32 s68, s35, 5
    s_lshl_b32 s69, s36, 5
    s_min_u32 s69, s69, s34
    v_and_b32 v{vFP}, 3, v48
    v_lshlrev_b32 v{vFP}, 2, v{vFP}
    v_lshlrev_b32 v7, 4, v49
    v_mov_b32 v{vC}, 0xbfb8aa3b
    v_mov_b32 v{vC+1}, 0xbfb8aa3b
    v_mov_b32 v{vONE}, 1.0
    v_mov_b32 v{vONE+1}, 1.0
    v_mov_b32 v{vZ}, 0
    v_mov_b32 v{vZ+1}, 0
    v_mov_b32 v{vB1}, 0x3f80
    s_waitcnt lgkmcnt(0)
    s_barrier
    """)
    stamp(a, 7, vSTAMP)
    a(f"""
    s_cmp_ge_u32 s35, s36
    s_cbranch_scc1 K2_MAINDONE
    """)
    for l in src_reads(0) + dl_read(): a(l)
    for t in range(2):
        for j in range(4):
            a(f"ds_read_b128 {rr(vWXR+16*t+4*j,4)}, v7 offset:{L_WXF + (32*t+8*j)*4}")
    for r in range(vACC, vACC+32): a(f"v_mov_b32 v{r}, 0")
    for r in range(vD+16, vD+24): a(f"v_mov_b32 v{r}, 0")
    for r in range(vST, vST+8): a(f"v_mov_b32 v{r}, 0")
    for r in range(vXA, vXA+4): a(f"v_mov_b32 v{r}, 0")
    a(f"""
    s_waitcnt lgkmcnt(0)
    v_readfirstlane_b32 s37, v{vDL}
    v_cmp_ne_u32 vcc, 0xffff, v{vDL}
    s_mov_b64 s[44:45], vcc
    s_lshr_b32 s70, s37, 4
    s_and_b32 s37, s70, -4
    s_lshl_b32 s59, s32, 2
    v_mov_b32 v{vT}, s59
    v_mov_b32 v{vT+1}, s70
    ds_write_b32 v{vT}, v{vT+1} offset:{L_MISC+16}
    """)
    for l in dma() + ps_load() + src_reads(0) + pd_read(): a(l)
    set_base(a)
    wx_reload(a)
    a("s_waitcnt vmcnt(0)")
    for l in h_reads(): a(l)
    for l in xa_reads(): a(l)
    a("s_waitcnt lgkmcnt(0)")
    for l in dma() + ps_load() + stage_writes() + src_reads(128) + dl_read(): a(l)
    a("s_mov_b32 s39, 0")
    a(mfma(vD, vXA, vWX, None))
    for s_ in range(4): a(mfma(vD, vH+4*s_, vW2+4*s_, vD))
    a("s_nop 7\ns_nop 3")
    stamp(a, 8, vSTAMP)
    a("K2_LOOP:")
    a(f"""
    s_waitcnt lgkmcnt(0)
    v_cmp_ne_u32 vcc, 0xffff, v{vDL}
    s_mov_b32 s42, 0
    s_add_u32 s59, s35, 1
    s_cmp_ge_u32 s59, s36
    s_cselect_b64 s[44:45], 0, vcc
    s_cbranch_scc1 K2_NOREBASE
    s_add_u32 s59, s59, 1
    s_lshl_b32 s59, s59, 5
    s_min_u32 s59, s59, s34
    s_cmp_le_u32 s59, s38
    s_cbranch_scc1 K2_NOREBASE
    s_mov_b32 s41, s37
    v_readfirstlane_b32 s37, v{vDL}
    s_mov_b32 s42, 1
    s_lshr_b32 s37, s37, 4
    s_and_b32 s37, s37, -4
    """)
    set_base(a)
    a("K2_NOREBASE:")
    for l in pd_read(): a(l)
    D0, D1 = vD, vD+16
    _sv = (dma, h_reads, stage_writes, unwrite, st_reads, xa_reads, mfma, src_reads, dl_read)
    if 'nodma' in ABL: dma = lambda: []
    if 'nohr' in ABL: h_reads = lambda dst=vH: []
    if 'nostage' in ABL: stage_writes = lambda: []; unwrite = lambda: []
    if 'nost' in ABL: st_reads = lambda: []
    if 'noxa' in ABL: xa_reads = lambda: []
    if 'nomfma' in ABL: mfma = lambda *x: "s_nop 0"
    if 'nometa' in ABL: src_reads = lambda e=0: []
    slotsA = [
        [mfma(vACC+16, D1, vST, vACC+16)],
        [mfma(vACC+16, D1+4, vST+4, vACC+16)] + st_reads() + unwrite(),
        [mfma(D1, vH, vW2+16, None)],
        [mfma(D1, vH+4, vW2+20, D1)],
        [mfma(D1, vH+8, vW2+24, D1)],
        [mfma(D1, vH+12, vW2+28, D1), "s_waitcnt vmcnt(0)"] + h_reads(),
        [mfma(D1, vXA, vWX+4, D1)] + xa_reads(),
        [],
    ]
    elementwise(a, 0, slotsA)
    a("""
    s_cmp_eq_u32 s39, 0
    s_cbranch_scc1 K2_NOFLUSH
    """)
    if 'noflush' not in ABL: flush(a, "s40")
    a("""
    K2_NOFLUSH:
    s_mov_b32 s39, s42
    s_mov_b32 s40, s41
    s_cmp_eq_u32 s42, 0
    s_cbranch_scc1 K2_NOWX
    """)
    wx_reload(a)
    a("K2_NOWX:")
    slotsB = [
        ["s_waitcnt lgkmcnt(0)", mfma(vACC, D0, vST, vACC)] + dma() + ps_load(),
        [mfma(vACC, D0+4, vST+4, vACC)] + stage_writes() + src_reads(128) + dl_read(),
        [mfma(D0, vXA, vWX, None)],
        [mfma(D0, vH, vW2, D0)],
        [mfma(D0, vH+4, vW2+4, D0)],
        [mfma(D0, vH+8, vW2+8, D0)],
        [mfma(D0, vH+12, vW2+12, D0)],
        [],
    ]
    elementwise(a, 1, slotsB)
    dma, h_reads, stage_writes, unwrite, st_reads, xa_reads, mfma, src_reads, dl_read = _sv
    a("""
    s_add_u32 s35, s35, 1
    s_cmp_lt_u32 s35, s36
    s_cbranch_scc1 K2_LOOP
    """)
    a(mfma(vACC+16, D1, vST, vACC+16))
    a(mfma(vACC+16, D1+4, vST+4, vACC+16))
    a("s_nop 7\ns_nop 3")
    flush(a, "s37")
    a(f"""
    K2_MAINDONE:
    s_waitcnt vmcnt(0) lgkmcnt(0)
    """)
    stamp(a, 9, vSTAMP)
    a(f"""
    s_add_u32 s56, s56, s57
    s_cmp_lt_u32 s56, s58
    s_cbranch_scc0 K2_EPI
    s_barrier
    """)
    merge(a, "A")
    a(f"""
    s_barrier
    s_branch K2_ROUND
    K2_EPI:
    """)
    node_tile_dma(a)
    a(f"""
    s_lshr_b32 s59, s32, 1
    s_and_b32 s60, s32, 1
    v_lshlrev_b32 v48, 4, v6
    s_lshl_b32 s14, s60, 13
    s_add_u32 s14, s14, {WS_WIMG+16*1024}
    s_add_u32 s15, s14, 4096
    """)
    for s in range(8):
        a(f"buffer_load_dwordx4 {rr(vWH+4*s,4)}, v48, s[20:23], {'s14' if s<4 else 's15'} offen offset:{1024*(s%4)}")
    a(f"""
    s_mov_b32 s28, s6
    s_mov_b32 s29, s7
    s_mov_b32 s30, {N*6}
    v_add_u32 v51, s33, v0
    v_mul_u32_u24 v52, 6, v51
    buffer_load_ushort v56, v52, s[28:31], 0 offen
    buffer_load_ushort v57, v52, s[28:31], 0 offen offset:2
    buffer_load_ushort v58, v52, s[28:31], 0 offen offset:4
    s_mov_b32 s24, s10
    s_mov_b32 s25, s11
    s_mov_b32 s26, {N*128}
    s_mov_b32 s27, 0x00020000
    v_and_b32 v48, 31, v6
    v_lshrrev_b32 v49, 5, v6
    s_lshl_b32 s61, s59, 5
    v_add_u32 v50, s61, v48
    v_mul_u32_u24 v53, {MACC_STRIDE}, v50
    v_lshl_add_u32 v53, v49, 7, v53
    v_add_u32 v53, {L_MACC}, v53
    v_bfe_u32 v54, v48, 1, 3
    s_lshl_b32 s61, s60, 2
    v_xor_b32 v54, s61, v54
    v_lshlrev_b32 v54, 4, v54
    v_lshl_add_u32 v54, v48, 7, v54
    v_lshl_add_u32 v54, v49, 3, v54
    v_add_u32 v54, s43, v54
    v_xor_b32 v55, 16, v54
    v_xor_b32 v59, 32, v54
    v_xor_b32 v60, 48, v54
    v_add_u32 v61, s33, v50
    v_lshlrev_b32 v61, 7, v61
    v_lshl_add_u32 v61, v49, 3, v61
    s_lshl_b32 s61, s60, 6
    v_add_u32 v61, s61, v61
    s_barrier
    """)
    merge(a, "B")
    a("s_barrier")
    stamp(a, 10, vSTAMP)
    for s in range(4):
        a(f"ds_read_b128 {rr(80+8*s,4)}, v53 offset:{32*s}\nds_read_b128 {rr(84+8*s,4)}, v53 offset:{32*s+16}")
    a(f"""
    v_min_u32 v62, 104, v0
    v_mul_u32_u24 v62, {MACC_STRIDE}, v62
    v_add_u32 v62, {L_MACC}, v62
    ds_read_b128 v[44:47], v62 offset:256
    ds_read_b128 v[40:43], v62 offset:272
    s_waitcnt vmcnt(11)
    """)
    for l in h_reads(): a(l)
    a(f"""
    ds_read_b64 {rr(vRES,2)}, v54
    ds_read_b64 {rr(vRES+2,2)}, v55
    ds_read_b64 {rr(vRES+4,2)}, v59
    ds_read_b64 {rr(vRES+6,2)}, v60
    s_waitcnt lgkmcnt(8)
    """)
    for s in range(4):
        for i in range(4):
            a(f"v_cvt_pk_bf16_f32 v{128+4*s+i}, v{80+8*s+2*i}, v{81+8*s+2*i}")
    a("s_waitcnt vmcnt(0) lgkmcnt(0)")
    a(mfma(64, vWH, vH, None))
    for s in range(1,4): a(mfma(64, vWH+4*s, vH+4*s, 64))
    for s in range(4): a(mfma(64, vWH+16+4*s, 128+4*s, 64))
    a(f"""
    v_lshlrev_b32 v56, 16, v56
    v_lshlrev_b32 v57, 16, v57
    v_lshlrev_b32 v58, 16, v58
    v_add_f32 v45, v45, v41
    v_add_f32 v46, v46, v42
    v_add_f32 v47, v47, v43
    v_add_f32 v56, v56, v45
    v_add_f32 v57, v57, v46
    v_add_f32 v58, v58, v47
    v_cvt_pk_bf16_f32 v56, v56, v57
    v_cvt_pk_bf16_f32 v58, v58, v58
    s_add_u32 s28, s10, {N*128}
    s_addc_u32 s29, s11, 0
    v_cmp_gt_u32 vcc, {BN}, v0
    s_mov_b64 exec, vcc
    buffer_store_short v56, v52, s[28:31], 0 offen
    buffer_store_short_d16_hi v56, v52, s[28:31], 0 offen offset:2
    buffer_store_short v58, v52, s[28:31], 0 offen offset:4
    s_mov_b64 exec, -1
    v_cmp_gt_u32 vcc, {BN}, v50
    s_nop 3
    """)
    for r in range(0,16,2):
        a(f"""
        v_pk_mul_f32 v[80:81], {rr(64+r,2)}, {rr(vC,2)}
        v_exp_f32 v80, v80
        v_exp_f32 v81, v81
        s_nop 0
        v_pk_add_f32 v[80:81], v[80:81], {rr(vONE,2)}
        v_rcp_f32 v80, v80
        v_rcp_f32 v81, v81
        s_nop 0
        v_pk_mul_f32 {rr(64+r,2)}, {rr(64+r,2)}, v[80:81]
        """)
    for j in range(4):
        for hh in range(2):
            src = vRES+2*j+hh
            a(f"""
            v_lshlrev_b32 v80, 16, v{src}
            v_and_b32 v81, 0xffff0000, v{src}
            v_add_f32 v80, v80, v{64+4*j+2*hh}
            v_add_f32 v81, v81, v{65+4*j+2*hh}
            v_cvt_pk_bf16_f32 v{84+2*j+hh}, v80, v81
            """)
    a("s_mov_b64 exec, vcc")
    for j in range(4):
        a(f"buffer_store_dwordx2 {rr(84+2*j,2)}, v61, s[24:27], 0 offen offset:{16*j}")
    if DIAG: a("s_waitcnt vmcnt(0)")
    stamp(a, 11, vSTAMP); stamp_rt(a, 12, vSTAMP)
    stamp_dump(a, 13, vSTAMP, 1, "s[20:23]", 100)
    a(f"""
    K2_EXIT:
    s_endpgm
    """)
    return a.text()
```

```python
from common import *

LDP = os.environ.get('LDP','')
STP = os.environ.get('STP','')
K1_THREADS = 832
K1_WAVES = 13
K1_GRID = 253
K1_LDS_HIST = 0
K1_LDS_REC = 4096
K1_LDS = K1_LDS_REC + CH*12

def gen_k1(name):
    a = Asm()
    a(f"""
    s_cmp_ge_u32 s2, {K1_GRID}
    s_cbranch_scc1 K1_EXIT
    s_cmp_ge_u32 s2, {P}
    s_cbranch_scc1 K1_WEIGHTS
    s_load_dwordx4 s[4:7], s[0:1], 8
    s_load_dwordx4 s[8:11], s[0:1], 24
    s_load_dwordx2 s[12:13], s[0:1], 80
    """)
    stamp_rt(a, 0, 119); stamp(a, 1, 119)
    a(f"""
    v_lshlrev_b32 v1, 2, v0
    v_mov_b32 v2, 0
    ds_write_b32 v1, v2
    v_cmp_gt_u32 vcc, 800, v0
    s_mov_b64 s[38:39], vcc
    v_lshlrev_b32 v1, 4, v0
    v_lshlrev_b32 v2, 5, v0
    v_mov_b32 v3, 1
    v_readfirstlane_b32 s40, v0
    s_mul_i32 s36, s2, {CH*4}
    s_mul_i32 s37, s2, {CH*8}
    s_waitcnt lgkmcnt(0)
    s_mov_b32 s16, s4
    s_mov_b32 s17, s5
    s_mov_b32 s18, {N*6}
    s_mov_b32 s19, 0x00020000
    s_mov_b32 s20, s6
    s_mov_b32 s21, s7
    s_mov_b32 s22, {E*8}
    s_mov_b32 s23, 0x00020000
    s_mov_b32 s24, s8
    s_mov_b32 s25, s9
    s_mov_b32 s26, {E*4}
    s_mov_b32 s27, 0x00020000
    s_mov_b32 s28, s10
    s_mov_b32 s29, s11
    s_mov_b32 s30, {E*4}
    s_mov_b32 s31, 0x00020000
    s_mov_b32 s32, s12
    s_mov_b32 s33, s13
    s_mov_b32 s34, 0x1200000
    s_mov_b32 s35, 0x00020000
    s_mov_b64 exec, s[38:39]
    buffer_load_dwordx4 v[4:7], v1, s[28:31], s36 offen {LDP}
    s_barrier
    buffer_load_dwordx4 v[8:11], v1, s[24:27], s36 offen {LDP}
    buffer_load_dwordx4 v[12:15], v2, s[20:23], s37 offen {LDP}
    buffer_load_dwordx4 v[16:19], v2, s[20:23], s37 offen offset:16 {LDP}
    v_subrev_u32 v30, 128, v0
    v_mul_u32_u24 v31, 6, v30
    s_mul_i32 s41, s2, 600
    v_cmp_gt_u32 vcc, 100, v30
    s_mov_b64 s[44:45], vcc
    s_mov_b64 exec, vcc
    buffer_load_ushort v32, v31, s[16:19], s41 offen
    buffer_load_ushort v33, v31, s[16:19], s41 offen offset:2
    buffer_load_ushort v34, v31, s[16:19], s41 offen offset:4
    s_mov_b64 exec, s[38:39]
    s_waitcnt vmcnt(6)
    """)
    stamp(a, 2, 119)
    for i in range(4):
        a(f"""
        v_mul_u32_u24 v{44+i}, 85599, v{4+i}
        v_lshrrev_b32 v{44+i}, 22, v{44+i}
        v_lshrrev_b32 v{68+i}, 1, v{44+i}
        v_lshlrev_b32 v{44+i}, 2, v{44+i}
        ds_add_rtn_u32 v{48+i}, v{44+i}, v3
        v_mul_u32_u24 v{68+i}, {BN}, v{68+i}
        v_sub_u32 v{68+i}, v{4+i}, v{68+i}
        """)
    a("""
    s_waitcnt lgkmcnt(0)
    s_barrier
    """)
    stamp(a, 3, 119)
    a(f"""
    s_cmp_ge_u32 s40, 64
    s_cbranch_scc1 K1_NOSCAN
    v_lshlrev_b32 v80, 5, v0
    ds_read_b128 v[84:87], v80
    ds_read_b128 v[88:91], v80 offset:16
    s_waitcnt lgkmcnt(0)
    v_add_u32 v92, v84, v85
    v_add_u32 v93, v92, v86
    v_add_u32 v94, v93, v87
    v_add_u32 v95, v94, v88
    v_add_u32 v96, v95, v89
    v_add_u32 v97, v96, v90
    v_add_u32 v98, v97, v91
    v_mov_b32 v99, v98
    s_nop 1
    v_add_u32_dpp v99, v99, v99 row_shr:1 row_mask:0xf bank_mask:0xf
    s_nop 1
    v_add_u32_dpp v99, v99, v99 row_shr:2 row_mask:0xf bank_mask:0xf
    s_nop 1
    v_add_u32_dpp v99, v99, v99 row_shr:4 row_mask:0xf bank_mask:0xf
    s_nop 1
    v_add_u32_dpp v99, v99, v99 row_shr:8 row_mask:0xf bank_mask:0xf
    s_nop 1
    v_add_u32_dpp v99, v99, v99 row_bcast:15 row_mask:0xa bank_mask:0xf
    s_nop 1
    v_add_u32_dpp v99, v99, v99 row_bcast:31 row_mask:0xc bank_mask:0xf
    v_sub_u32 v100, v99, v98
    v_add_u32 v101, v100, v84
    v_add_u32 v102, v100, v92
    v_add_u32 v103, v100, v93
    v_add_u32 v104, v100, v94
    v_add_u32 v105, v100, v95
    v_add_u32 v106, v100, v96
    v_add_u32 v107, v100, v97
    ds_write_b128 v80, v[100:103]
    ds_write_b128 v80, v[104:107] offset:16
    v_lshl_or_b32 v108, v101, 16, v100
    v_lshl_or_b32 v109, v103, 16, v102
    v_lshl_or_b32 v110, v105, 16, v104
    v_lshl_or_b32 v111, v107, 16, v106
    s_mul_i32 s41, s2, {TAB_STRIDE}
    s_add_u32 s41, s41, {WS_TAB}
    buffer_store_dwordx4 v[108:111], v1, s[32:35], s41 offen
    v_mov_b32 v112, {CH | (CH<<16)}
    v_mov_b32 v113, v112
    v_mov_b32 v114, v112
    v_mov_b32 v115, v112
    s_mov_b64 exec, 1
    buffer_store_dwordx4 v[112:115], v1, s[32:35], s41 offen offset:1024
    s_mov_b64 exec, -1
    s_waitcnt lgkmcnt(0)
    K1_NOSCAN:
    s_barrier
    """)
    stamp(a, 4, 119)
    for i in range(4):
        a(f"ds_read_b32 v{80+i}, v{44+i}")
    a("s_waitcnt vmcnt(0)")
    stamp(a, 5, 119)
    for i in range(4):
        a(f"v_lshl_or_b32 v{68+i}, v{68+i}, 20, v{8+i}")
    a("s_waitcnt lgkmcnt(0)")
    for i in range(4):
        a(f"""
        v_add_u32 v{80+i}, v{80+i}, v{48+i}
        v_mul_u32_u24 v{80+i}, 12, v{80+i}
        v_add_u32 v{80+i}, {K1_LDS_REC}, v{80+i}
        ds_write2_b32 v{80+i}, v{12+2*i}, v{13+2*i} offset0:0 offset1:1
        ds_write_b32 v{80+i}, v{68+i} offset:8
        """)
    a(f"""
    s_mov_b64 exec, s[44:45]
    v_lshlrev_b32 v32, 16, v32
    v_lshlrev_b32 v33, 16, v33
    v_lshlrev_b32 v34, 16, v34
    v_mov_b32 v35, 0
    v_lshlrev_b32 v31, 4, v30
    s_mul_i32 s41, s2, 1600
    s_add_u32 s41, s41, {WS_POSF}
    buffer_store_dwordx4 v[32:35], v31, s[32:35], s41 offen
    s_mov_b64 exec, s[38:39]
    s_waitcnt lgkmcnt(0)
    s_barrier
    """)
    stamp(a, 6, 119)
    a(f"""
    ds_read_b128 v[4:7], v1 offset:{K1_LDS_REC}
    ds_read_b128 v[8:11], v1 offset:{K1_LDS_REC+12800}
    ds_read_b128 v[12:15], v1 offset:{K1_LDS_REC+25600}
    s_mul_i32 s42, s2, {CH*12}
    s_add_u32 s43, s42, 12800
    s_add_u32 s44, s42, 25600
    s_waitcnt lgkmcnt(2)
    buffer_store_dwordx4 v[4:7], v1, s[32:35], s42 offen {STP}
    s_waitcnt lgkmcnt(1)
    buffer_store_dwordx4 v[8:11], v1, s[32:35], s43 offen {STP}
    s_waitcnt lgkmcnt(0)
    buffer_store_dwordx4 v[12:15], v1, s[32:35], s44 offen {STP}
    """)
    stamp(a, 7, 119)
    if DIAG: a("s_waitcnt vmcnt(0)")
    stamp(a, 8, 119); stamp_rt(a, 9, 119)
    stamp_dump(a, 10, 119, 0, "s[32:35]", 30)
    a(f"""
    K1_EXIT:
    s_endpgm
    """)
    a(f"""
    K1_WEIGHTS:
    s_load_dwordx2 s[4:5], s[0:1], 40
    s_load_dwordx2 s[6:7], s[0:1], 56
    s_load_dwordx2 s[12:13], s[0:1], 80
    v_lshrrev_b32 v1, 6, v0
    s_nop 0
    v_readfirstlane_b32 s40, v1
    s_sub_u32 s41, s2, {P}
    s_mul_i32 s41, s41, 13
    s_add_u32 s40, s40, s41
    s_cmp_gt_u32 s40, 32
    s_cbranch_scc1 K1_EXIT
    v_and_b32 v1, 63, v0
    v_and_b32 v2, 31, v1
    v_lshrrev_b32 v3, 5, v1
    s_waitcnt lgkmcnt(0)
    s_mov_b32 s32, s12
    s_mov_b32 s33, s13
    s_mov_b32 s34, 0x1200000
    s_mov_b32 s35, 0x00020000
    s_cmp_lt_u32 s40, 16
    s_cselect_b32 s16, s4, s6
    s_cselect_b32 s17, s5, s7
    s_mov_b32 s47, {128*128}
    s_cselect_b32 s18, {133*128}, s47
    s_mov_b32 s19, 0x00020000
    s_cmp_eq_u32 s40, 32
    s_cbranch_scc1 K1_WXC
    s_cmp_lt_u32 s40, 16
    s_cbranch_scc0 K1_WH
    s_cmp_lt_u32 s40, 8
    s_cselect_b32 s42, 64, 0
    s_lshr_b32 s43, s40, 2
    s_and_b32 s43, s43, 1
    s_and_b32 s44, s40, 3
    s_branch K1_WGO
    K1_WH:
    s_sub_u32 s45, s40, 16
    s_lshr_b32 s43, s45, 3
    s_and_b32 s44, s45, 3
    s_and_b32 s45, s45, 4
    s_lshl_b32 s42, s45, 4
    K1_WGO:
    ; K0 = s42 + 8*s44 ; C0 = 32*s43
    s_lshl_b32 s44, s44, 3
    s_add_u32 s42, s42, s44
    s_lshl_b32 s42, s42, 7
    s_lshl_b32 s43, s43, 6
    s_add_u32 s42, s42, s43
    v_lshlrev_b32 v4, 12, v3
    v_lshl_add_u32 v4, v2, 1, v4
    """)
    for j in range(8):
        a(f"buffer_load_ushort v{8+j}, v4, s[16:19], s42 offen offset:{128*j}")
    a(f"""
    s_lshl_b32 s46, s40, 10
    s_add_u32 s46, s46, {WS_WIMG}
    v_lshlrev_b32 v5, 4, v1
    s_waitcnt vmcnt(0)
    v_lshl_or_b32 v16, v9, 16, v8
    v_lshl_or_b32 v17, v11, 16, v10
    v_lshl_or_b32 v18, v13, 16, v12
    v_lshl_or_b32 v19, v15, 16, v14
    buffer_store_dwordx4 v[16:19], v5, s[32:35], s46 offen
    s_endpgm
    K1_WXC:
    s_mov_b32 s16, s4
    s_mov_b32 s17, s5
    s_mov_b32 s18, {133*128}
    s_mov_b32 s42, {128*128}
    v_lshlrev_b32 v4, 1, v2
    """)
    for t in range(2):
        for r in range(5):
            a(f"buffer_load_ushort v{8+5*t+r}, v4, s[16:19], s42 offen offset:{128*r+64*t}")
    a(f"""
    v_cmp_eq_u32 vcc, 0, v3
    v_lshlrev_b32 v5, 3, v1
    s_mov_b32 s46, {WS_WIMG + 32*1024}
    s_waitcnt vmcnt(0)
    """)
    for t in range(2):
        b = 8+5*t
        a(f"""
        v_lshl_or_b32 v20, v{b+2}, 16, v{b+1}
        v_lshl_or_b32 v21, v{b+4}, 16, v{b+3}
        v_cndmask_b32 v{22+2*t}, v{b}, v20, vcc
        v_cndmask_b32 v{23+2*t}, 0, v21, vcc
        """)
    a("""
    buffer_store_dwordx2 v[22:23], v5, s[32:35], s46 offen
    buffer_store_dwordx2 v[24:25], v5, s[32:35], s46 offen offset:512
    s_endpgm
    """)
    return a.text()
```

```python
from common import *

K2_WAVES = 12
K2_THREADS = 64*K2_WAVES
K2_GRID = 256
NQ = K2_THREADS//4
CAP = 3456
L_HIST = 0
L_MISC = 512
L_PREF = 576
L_OHT  = 1152
L_WXF  = 1280
L_META = 1536
L_REC  = L_META + CAP*4
L_PDT  = L_REC + CAP*8
L_ATAB = L_PDT + 104*16
ATAB_STRIDE = 208
L_MACC = L_ATAB + 64*ATAB_STRIDE
MACC_STRIDE = 288
NROWS = 98 + K2_WAVES - 1
L_STG  = L_MACC + NROWS*MACC_STRIDE
STG_SZ = 2048
L_HBUF = (L_STG + K2_WAVES*STG_SZ + 127)//128*128
K2_LDS = L_HBUF + K2_WAVES*4096
ZERO_BEG = L_MACC
ZERO_N16 = (L_STG + K2_WAVES*STG_SZ - L_MACC)//16
assert K2_LDS <= 163840, K2_LDS

vSR, vZ = 0, 1
vW2, vWX, vACC, vD, vH, vXA, vST, vT, vIP, vPS, vPD, vHR = 2, 34, 42, 74, 106, 122, 126, 134, 142, 150, 154, 158
vSE = vPS+3
vDL, vMA, vMS, vOHB, vSGB, vSG = 162, 163, 164, 165, 166, 167
K2_VGPRS = 168 if not DIAG else 168
vSTAMP = None
KS = 9
NK = 2*KS
RFAST = 4*KS
RSLOW = 12
SM = 64
WA, WB, WC = [int(x) for x in os.environ.get('WTS','35,19,10').split(',')]
assert 4*(WA+WB+WC) == 256
ABL = os.environ.get('ABL','').split(',')

def rr(b, n): return f"v[{b}:{b+n-1}]"

def mfma(d, a_, b_, c):
    cs = rr(c,16) if c is not None else "0"
    return f"v_mfma_f32_32x32x16_bf16 {rr(d,16)}, {rr(a_,4)}, {rr(b_,4)}, {cs}"

def st(a, i):
    if not DIAG: return
    a(f"""
    s_memtime s[100:101]
    s_waitcnt lgkmcnt(0)
    s_mov_b64 vcc, exec
    s_mov_b64 exec, 1
    v_mov_b32 v141, s100
    v_mov_b32 v140, 0
    buffer_store_dword v141, v140, s[20:23], s15 offen offset:{4*i}
    s_mov_b64 exec, vcc
    """)
def st_rt(a, i):
    if not DIAG: return
    a(f"""
    s_memrealtime s[100:101]
    s_waitcnt lgkmcnt(0)
    s_mov_b64 vcc, exec
    s_mov_b64 exec, 1
    v_mov_b32 v141, s100
    v_mov_b32 v140, 0
    buffer_store_dword v141, v140, s[20:23], s15 offen offset:{4*i}
    s_mov_b64 exec, vcc
    """)

def lane_id(a, v):
    a(f"v_mbcnt_lo_u32_b32 v{v}, -1, 0\nv_mbcnt_hi_u32_b32 v{v}, -1, v{v}")

def elementwise(a, t, slots):
    D = vD + 16*t
    if 'noew' in ABL:
        for sl in slots:
            for l in sl: a(l)
            a("s_nop 7\ns_nop 7")
        return
    for g in range(4):
        ps = (2*g, 2*g+1)
        tmp = [vT + 4*(g%2), vT + 4*(g%2) + 2]
        for p, tm in zip(ps, tmp):
            a(f"v_pk_mul_f32 {rr(tm,2)}, {rr(D+2*p,2)}, s[46:47]")
        for l in slots[2*g]: a(l)
        for tm in tmp:
            a(f"v_exp_f32 v{tm}, v{tm}\nv_exp_f32 v{tm+1}, v{tm+1}")
        for tm in tmp:
            a(f"v_pk_add_f32 {rr(tm,2)}, {rr(tm,2)}, 1.0 op_sel_hi:[1,0]")
        for l in slots[2*g+1]: a(l)
        for tm in tmp:
            a(f"v_rcp_f32 v{tm}, v{tm}\nv_rcp_f32 v{tm+1}, v{tm+1}")
        for p, tm in zip(ps, tmp):
            a(f"v_pk_mul_f32 {rr(tm,2)}, {rr(tm,2)}, {rr(D+2*p,2)}")
        for p, tm in zip(ps, tmp):
            a(f"v_cvt_pk_bf16_f32 v{D+p}, v{tm}, v{tm+1}")

def dma():
    out = []
    for i in range(4):
        out += [f"s_add_u32 m0, s43, {1024*i}" if i else "s_mov_b32 m0, s43", "s_nop 0",
                f"buffer_load_dwordx4 {rr(vIP+2*i,2)}, s[16:19], 0 idxen offen lds"]
    return out

def h_reads(dst=vH):
    return [f"ds_read_b128 {rr(dst+4*s,4)}, v{vHR+s}" for s in range(4)]

def pd_read():
    return ["s_mov_b64 exec, s[44:45]",
            f"ds_read_b128 {rr(vPD,4)}, v{vDL} offset:{L_PDT}",
            "s_mov_b64 exec, -1"]

def ps_load():
    return ["s_mov_b64 exec, s[50:51]",
            f"buffer_load_dwordx3 {rr(vPS,3)}, v{vSE}, s[24:27], 0 idxen",
            "s_mov_b64 exec, -1"]

def xa_build(eaoff, wait="s_waitcnt lgkmcnt(4)"):
    return [f"v_lshrrev_b32 v{vSG}, 1, v{vDL}",
            f"v_add_u32 v{vSG}, v{vSG}, v{vSGB}",
            f"v_add_u32 v{vDL}, v{vDL}, v{vOHB}",
            f"v_lshlrev_b32 v{vT}, 1, v{vMA}",
            wait,
            "s_and_b64 exec, s[44:45], s[50:51]",
            f"v_pk_add_f32 {rr(vPD,2)}, {rr(vPD,2)}, {rr(vPS,2)} neg_lo:[0,1] neg_hi:[0,1]",
            f"v_sub_f32 v{vPD+2}, v{vPD+2}, v{vPS+2}",
            f"v_mul_f32 v{vPD+3}, v{vPD}, v{vPD}",
            f"v_fmac_f32 v{vPD+3}, v{vPD+1}, v{vPD+1}",
            f"v_fmac_f32 v{vPD+3}, v{vPD+2}, v{vPD+2}",
            f"v_cvt_pk_bf16_f32 v{vXA+1}, v{vPD+1}, v{vPD+2}",
            f"v_cvt_pk_bf16_f32 v{vXA}, v{vPD+3}, v{vPD}",
            f"v_cvt_pk_bf16_f32 v{vPD}, 1.0, v{vPD}",
            f"ds_write2_b32 v{vSG}, v{vPD}, v{vXA+1} offset0:0 offset1:1",
            "s_and_b64 exec, s[44:45], s[48:49]",
            f"ds_read_b64 {rr(vXA,2)}, v{vT} offset:{L_REC + 2*eaoff}",
            "s_mov_b64 exec, s[44:45]",
            f"ds_read_b64 {rr(vXA+2,2)}, v{vDL}",
            "s_mov_b64 exec, -1",
            "s_and_b64 s[40:41], s[44:45], s[50:51]"]

def unwrite():
    return ["s_mov_b64 exec, s[40:41]",
            f"ds_write2_b32 v{vSG}, v{vZ}, v{vZ} offset0:0 offset1:1",
            "s_mov_b64 exec, -1"]

def dl_read():
    return [f"ds_read_u16 v{vDL}, v{vMA} offset:{L_META+2}",
            f"v_add_u32 v{vMA}, 128, v{vMA}"]

def src_reads(eoff=128):
    return [f"ds_read_u16 v{vIP+2*i}, v{vMS} offset:{L_META+32*i}" for i in range(4)] + \
           [f"ds_read_u16 v{vSE}, v{vMA} offset:{L_META+eoff}",
            f"v_add_u32 v{vMS}, 128, v{vMS}"]

def st_reads():
    return [f"ds_read_b64_tr_b16 {rr(vST+4*s+2*jq,2)}, v{vSR} offset:{1024*s+512*jq}" for s in range(2) for jq in range(2)]

def rebase(a):
    a(f"""
    s_sub_u32 s60, s59, s37
    s_mov_b32 s37, s59
    s_lshl_b32 s61, s60, 4
    s_lshl_b32 s60, s60, 3
    v_subrev_u32 v{vOHB}, s61, v{vOHB}
    v_subrev_u32 v{vSGB}, s60, v{vSGB}
    s_lshl_b32 s59, s37, 2
    v_mov_b32 v{vT}, s59
    ds_read_b32 v{vT+1}, v{vT} offset:{L_PREF+32}
    s_waitcnt lgkmcnt(0)
    v_readfirstlane_b32 s38, v{vT+1}
    """)

def wx_reload(a):
    lane_id(a, vT)
    a(f"""
    s_lshl_b32 s59, s37, 1
    s_add_u32 s59, s59, {L_ATAB}
    v_and_b32 v{vT+1}, 31, v{vT}
    v_lshrrev_b32 v{vT}, 5, v{vT}
    v_lshl_add_u32 v{vT}, v{vT}, 3, s59
    v_mad_u32_u24 v{vT}, v{vT+1}, s62, v{vT}
    v_add_u32 v{vT+1}, {32*ATAB_STRIDE}, v{vT}
    ds_read2_b32 {rr(vWX+2,2)}, v{vT} offset0:0 offset1:1
    ds_read2_b32 {rr(vWX+6,2)}, v{vT+1} offset0:0 offset1:1
    """)

def flush(a, sbase):
    A, S, X, Y = vPD, vPD+1, vPD+2, vPD+3
    R = vD+8
    lane_id(a, X)
    a(f"""
    v_bfe_u32 v{Y}, v{X}, 2, 3
    v_add_u32 v{Y}, {sbase}, v{Y}
    v_lshlrev_b32 v{A}, 2, v{Y}
    ds_read_b32 v{S}, v{A} offset:{L_PREF}
    v_cmp_eq_u32 s[66:67], s70, v{Y}
    s_add_u32 s59, s32, 97
    v_mov_b32 v{A}, s59
    v_lshrrev_b32 v{X}, 5, v{X}
    v_lshlrev_b32 v{X}, 4, v{X}
    s_waitcnt lgkmcnt(0)
    v_cmp_le_u32 vcc, s68, v{S}
    v_cmp_gt_u32 s[64:65], s69, v{S}
    s_and_b64 s[64:65], s[64:65], vcc
    s_andn2_b64 s[66:67], s[66:67], vcc
    v_cndmask_b32 v{Y}, v{Y}, v{A}, s[66:67]
    s_or_b64 s[64:65], s[64:65], s[66:67]
    v_mad_u32_u24 v{A}, v{Y}, s63, v{X}
    v_add_u32 v{A}, {L_MACC}, v{A}
    s_and_b64 s[66:67], s[64:65], s[52:53]
    s_and_b64 s[64:65], s[64:65], s[54:55]
    v_mov_b32 v{S}, 0
    """)
    for qd in range(4):
        t, j = qd>>1, 2*(qd&1)
        a(f"""
        ds_read_b128 {rr(vT,4)}, v{X} offset:{L_WXF + (32*t+8*j)*4}
        ds_read_b128 {rr(vT+4,4)}, v{X} offset:{L_WXF + (32*t+8*j+8)*4}
        s_mov_b64 exec, s[66:67]
        ds_read_b128 {rr(R,4)}, v{A} offset:{t*128+j*32}
        ds_read_b128 {rr(R+4,4)}, v{A} offset:{t*128+j*32+32}
        s_mov_b64 exec, -1
        s_waitcnt lgkmcnt(2)
        """)
        for i in range(8):
            a(f"v_fmac_f32 v{S}, v{vACC+8*qd+i}, v{vT+i}")
        a("s_waitcnt lgkmcnt(0)")
        for i in range(0,8,2):
            a(f"v_pk_add_f32 {rr(R+i,2)}, {rr(R+i,2)}, {rr(vACC+8*qd+i,2)}")
        a(f"""
        s_mov_b64 exec, s[66:67]
        ds_write_b128 v{A}, {rr(R,4)} offset:{t*128+j*32}
        ds_write_b128 v{A}, {rr(R+4,4)} offset:{t*128+j*32+32}
        s_mov_b64 exec, -1
        """)
        for i in range(0,8,2):
            a(f"v_mov_b64 {rr(vACC+8*qd+i,2)}, 0")
    lane_id(a, X)
    a(f"""
    v_and_b32 v{X}, 3, v{X}
    v_lshl_add_u32 v{A}, v{X}, 2, v{A}
    s_mov_b64 exec, s[64:65]
    ds_read_b32 v{Y}, v{A} offset:256
    s_waitcnt lgkmcnt(0)
    v_add_f32 v{Y}, v{Y}, v{S}
    ds_write_b32 v{A}, v{Y} offset:256
    s_mov_b64 exec, -1
    """)

def merge(a, tag):
    a(f"""
    s_cmp_gt_u32 s32, 1
    s_cbranch_scc1 K2_MERGED{tag}
    v_cmp_gt_u32 vcc, 72, v141
    s_mov_b64 exec, vcc
    v_mov_b32 v74, {L_MISC+16}
    ds_read_b128 v[80:83], v74
    ds_read_b128 v[84:87], v74 offset:16
    ds_read_b128 v[88:91], v74 offset:32
    v_lshlrev_b32 v75, 2, v141
    v_add_u32 v75, {L_MACC}, v75
    v_mov_b32 v76, 0
    """)
    for w in range(1,K2_WAVES):
        a(f"ds_read_b32 v{92+w}, v75 offset:{(97+w)*MACC_STRIDE}")
    a("s_waitcnt lgkmcnt(0)")
    for w in range(1,K2_WAVES):
        a(f"""
        v_mul_u32_u24 v77, {MACC_STRIDE}, v{80+w}
        v_add_u32 v77, v77, v75
        ds_read_b32 v78, v77
        ds_write_b32 v75, v76 offset:{(97+w)*MACC_STRIDE}
        s_waitcnt lgkmcnt(0)
        v_add_f32 v78, v78, v{92+w}
        ds_write_b32 v77, v78
        """)
    a(f"""
    s_waitcnt lgkmcnt(0)
    s_mov_b64 exec, -1
    K2_MERGED{tag}:
    """)

def dma_consts(a, vl, t):
    a(f"""
    v_and_b32 v{t}, 7, v{vl}
    v_lshrrev_b32 v{t+1}, 4, v{vl}
    v_xor_b32 v{t}, v{t}, v{t+1}
    v_lshlrev_b32 v{vIP+1}, 4, v{t}
    v_lshlrev_b32 v{vIP+5}, 4, v{t}
    v_xor_b32 v{vIP+3}, 64, v{vIP+1}
    v_xor_b32 v{vIP+7}, 64, v{vIP+1}
    v_and_b32 v{t}, 31, v{vl}
    v_lshrrev_b32 v{t+1}, 5, v{vl}
    v_bfe_u32 v{t+2}, v{t}, 1, 3
    v_lshlrev_b32 v{t+1}, 2, v{t+1}
    v_xor_b32 v{t+1}, v{t+1}, v{t+2}
    v_lshlrev_b32 v{t+1}, 4, v{t+1}
    v_lshl_add_u32 v{t+1}, v{t}, 7, v{t+1}
    v_add_u32 v{vHR}, s43, v{t+1}
    v_xor_b32 v{vHR+1}, 16, v{vHR}
    v_xor_b32 v{vHR+2}, 32, v{vHR}
    v_xor_b32 v{vHR+3}, 48, v{vHR}
    """)

def gen_k2(name):
    global dma, h_reads, unwrite, st_reads, xa_build, mfma, src_reads
    a = Asm()
    REC, HA = 42, 114
    TID, LANE, QL, C1, S1, C2, S2 = 132, 133, 134, 135, 136, 137, 138
    X0 = 150
    AH, AW, AD = 2, 18, 142
    a(f"""
    s_cmp_ge_u32 s2, {K2_GRID}
    s_cbranch_scc1 K2_EXIT
    s_load_dwordx4 s[4:7], s[0:1], 0
    s_load_dwordx2 s[8:9], s[0:1], 48
    s_load_dwordx2 s[10:11], s[0:1], 64
    s_load_dwordx2 s[12:13], s[0:1], 80
    s_and_b32 s3, s2, 7
    s_lshl_b32 s3, s3, 5
    s_lshr_b32 s14, s2, 3
    s_add_u32 s3, s3, s14
    s_mul_i32 s33, s3, {BN}
    v_lshrrev_b32 v1, 6, v0
    s_nop 0
    v_readfirstlane_b32 s32, v1
    s_mov_b32 s48, -1
    s_mov_b32 s49, 0
    s_mov_b32 s50, 0
    s_mov_b32 s51, -1
    s_mov_b32 s52, 0x11111111
    s_mov_b32 s53, 0x11111111
    s_not_b64 s[54:55], s[52:53]
    s_mov_b32 s46, 0xbfb8aa3b
    s_mov_b32 s47, 0xbfb8aa3b
    s_mov_b32 s62, {ATAB_STRIDE}
    s_mov_b32 s63, {MACC_STRIDE}
    s_lshl_b32 s43, s32, 12
    s_add_u32 s43, s43, {L_HBUF}
    s_mov_b32 s56, 0
    s_mov_b32 s57, {RFAST}
    s_waitcnt lgkmcnt(0)
    s_mov_b32 s16, s4
    s_or_b32 s17, s5, {128<<16}
    s_mov_b32 s18, {N}
    s_mov_b32 s19, 0x00020000
    s_mov_b32 s20, s12
    s_mov_b32 s21, s13
    s_mov_b32 s22, 0x1200000
    s_mov_b32 s23, 0x00020000
    s_add_u32 s24, s12, {WS_POSF}
    s_addc_u32 s25, s13, 0
    s_or_b32 s25, s25, {16<<16}
    s_mov_b32 s26, {N}
    s_mov_b32 s27, 0x00020000
    s_mov_b32 s28, s8
    s_mov_b32 s29, s9
    s_mov_b32 s30, 128
    s_mov_b32 s31, 0x00020000
    s_mov_b32 s9, 0
    """)
    if DIAG:
        a(f"""
        s_lshl_b32 s15, s2, 10
        s_lshl_b32 s14, s32, 6
        s_add_u32 s15, s15, s14
        s_add_u32 s15, s15, {WS_STAMP + 0x50000}
        """)
    st_rt(a, 0); st(a, 1)
    a("K2_ROUND:")
    lane_id(a, LANE)
    a(f"""
    s_lshl_b32 s59, s32, 6
    v_add_u32 v{TID}, s59, v{LANE}
    v_lshrrev_b32 v{X0}, 2, v{TID}
    v_and_b32 v{QL}, 3, v{TID}
    v_mul_u32_u24 v{X0+1}, {TAB_STRIDE}, v{X0}
    s_lshl_b32 s14, s3, 2
    s_add_u32 s14, s14, {WS_TAB}
    s_add_u32 s59, s14, {NQ*TAB_STRIDE}
    v_cmp_gt_u32 vcc, {4*(P-NQ)}, v{TID}
    s_mov_b64 s[44:45], vcc
    buffer_load_dwordx2 v[162:163], v{X0+1}, s[20:23], s14 offen
    s_mov_b64 exec, s[44:45]
    buffer_load_dwordx2 v[164:165], v{X0+1}, s[20:23], s59 offen
    s_mov_b64 exec, -1
    v_mul_u32_u24 v{S1}, {CH}, v{X0}
    v_mov_b32 v44, -1
    v_mov_b32 v45, -1
    v_mov_b32 v46, -1
    v_mov_b32 v47, -1
    v_lshlrev_b32 v48, 4, v{TID}
    ds_write_b128 v48, v[44:47] offset:{L_META}
    v_cmp_gt_u32 vcc, {CAP*4//16-K2_THREADS}, v{TID}
    s_mov_b64 exec, vcc
    ds_write_b128 v48, v[44:47] offset:{L_META+K2_THREADS*16}
    s_mov_b64 exec, -1
    v_mov_b32 v44, 0
    v_mov_b32 v45, 0
    v_mov_b32 v46, 0
    v_mov_b32 v47, 0
    v_cmp_gt_u32 vcc, 36, v{TID}
    s_mov_b64 exec, vcc
    ds_write_b128 v48, v[44:47] offset:{L_HIST}
    s_mov_b64 exec, -1
    s_mov_b32 s39, 0
    s_cmp_lg_u32 s56, 0
    s_cbranch_scc1 K2_NOINIT
    s_cmp_lg_u32 s57, {RFAST}
    s_cbranch_scc1 K2_NOINIT
    s_mov_b32 s39, 1
    v_add_u32 v49, {ZERO_BEG}, v48
    """)
    nz = ZERO_N16 // K2_THREADS
    for r in range(nz):
        a(f"ds_write_b128 v49, v[44:47] offset:{r*K2_THREADS*16}")
    a(f"""
    v_cmp_gt_u32 vcc, {ZERO_N16-nz*K2_THREADS}, v{TID}
    s_mov_b64 exec, vcc
    ds_write_b128 v49, v[44:47] offset:{nz*K2_THREADS*16}
    s_mov_b64 exec, -1
    v_lshrrev_b32 v54, 1, v{TID}
    v_and_b32 v55, 1, v{TID}
    v_lshrrev_b32 v56, 2, v54
    v_and_b32 v57, 3, v54
    v_lshlrev_b32 v57, 4, v57
    v_mov_b32 v58, 0x3f80
    v_mov_b32 v59, 0
    v_lshlrev_b64 v[58:59], v57, v[58:59]
    v_cmp_eq_u32 vcc, v56, v55
    s_nop 1
    v_cndmask_b32 v58, 0, v58, vcc
    v_cndmask_b32 v59, 0, v59, vcc
    v_lshlrev_b32 v60, 3, v{TID}
    v_cmp_gt_u32 vcc, 16, v{TID}
    s_mov_b64 exec, vcc
    ds_write_b64 v60, v[58:59] offset:{L_OHT}
    s_mov_b64 exec, -1
    K2_NOINIT:
    """)
    dma_consts(a, LANE, X0+2)
    a(f"""
    v_mov_b32 v139, 1
    s_waitcnt lgkmcnt(0)
    s_barrier
    s_waitcnt vmcnt(0)
    """)
    st(a, 2)
    a(f"""
    v_and_b32 v{C1}, 0xffff, v162
    v_and_b32 v162, 0xffff, v163
    v_and_b32 v{C2}, 0xffff, v164
    v_and_b32 v164, 0xffff, v165
    v_add_u32 v{S2}, {NQ*CH}, v{S1}
    v_add_u32 v{S1}, v{S1}, v{C1}
    v_add_u32 v{S2}, v{S2}, v{C2}
    v_sub_u32 v{C1}, v162, v{C1}
    v_sub_u32 v{C2}, v164, v{C2}
    v_cndmask_b32 v{C2}, 0, v{C2}, s[44:45]
    """)
    for g, (vc, vs) in enumerate(((C1,S1),(C2,S2))):
        a(f"""
        v_subrev_u32 v162, s56, v{vc}
        v_min_i32 v162, s57, v162
        v_sub_u32 v162, v162, v{QL}
        v_add3_u32 v{164+g}, v{vs}, v{QL}, s56
        v_mul_u32_u24 v{164+g}, 12, v{164+g}
        """)
        for k in range(KS):
            a(f"v_cmp_lt_i32 s[{SM+2*(g*KS+k)}:{SM+1+2*(g*KS+k)}], {4*k}, v162")
        for k in range(KS):
            n = g*KS+k
            a(f"s_mov_b64 exec, s[{SM+2*n}:{SM+1+2*n}]")
            if k >= 3 or g: a(f"s_cbranch_execz K2_SKL{g}")
            a(f"buffer_load_dwordx3 {rr(REC+4*n,3)}, v{164+g}, s[20:23], 0 offen offset:{48*k}")
        a(f"K2_SKL{g}:\ns_mov_b64 exec, -1")
    a(f"""
    v_mov_b32 v163, {L_MISC}
    v_max_u32 v162, v{C1}, v{C2}
    ds_max_u32 v163, v162
    s_cmp_eq_u32 s39, 0
    s_cbranch_scc1 K2_NOLD
    v_lshlrev_b32 v{X0+2}, 4, v{LANE}
    s_lshl_b32 s59, s32, 10
    s_add_u32 m0, s59, {L_HBUF+8*4096}
    s_add_u32 s14, s59, {WS_WIMG}
    buffer_load_dwordx4 v{X0+2}, s[20:23], s14 offen lds
    s_min_u32 s60, s32, 4
    s_lshl_b32 s59, s60, 10
    s_add_u32 s61, s59, {L_HBUF+8*4096+12288}
    s_add_u32 s14, s59, {WS_WIMG+12288}
    s_cmp_eq_u32 s60, 4
    s_cselect_b32 s14, {WS_WIMG+32*1024}, s14
    s_cselect_b32 m0, {L_HBUF+4096}, s61
    s_nop 0
    buffer_load_dwordx4 v{X0+2}, s[20:23], s14 offen lds
    s_cmp_gt_u32 s32, 7
    s_cselect_b32 s61, 4, 0
    s_sub_u32 s61, s32, s61
    s_lshl_b32 s59, s61, 4
    s_add_u32 s59, s59, s33
    v_lshrrev_b32 v{vIP}, 3, v{LANE}
    v_add_u32 v{vIP}, s59, v{vIP}
    v_add_u32 v{vIP+2}, 8, v{vIP}
    s_lshr_b32 s59, s61, 1
    s_lshl_b32 s59, s59, 13
    s_and_b32 s60, s61, 1
    s_lshl_b32 s60, s60, 11
    s_add_u32 s59, s59, s60
    s_add_u32 m0, s59, {L_HBUF}
    s_nop 0
    buffer_load_dwordx4 {rr(vIP,2)}, s[16:19], 0 idxen offen lds
    s_add_u32 m0, s59, {L_HBUF+1024}
    s_nop 0
    buffer_load_dwordx4 {rr(vIP+2,2)}, s[16:19], 0 idxen offen lds
    v_lshlrev_b32 v{X0+2}, 1, v{LANE}
    buffer_load_ushort v166, v{X0+2}, s[28:31], 0 offen
    v_add_u32 v{X0+2}, s33, v{TID}
    buffer_load_dwordx4 v[34:37], v{X0+2}, s[24:27], 0 idxen
    s_waitcnt vmcnt(6)
    s_branch K2_RECOK
    K2_NOLD:
    s_waitcnt vmcnt(0)
    K2_RECOK:
    """)
    st(a, 3)
    st(a, 4)
    for n in range(NK):
        a(f"s_mov_b64 exec, s[{SM+2*n}:{SM+1+2*n}]")
        if n % KS >= 3 or n >= KS: a(f"s_cbranch_execz K2_SKA{n//KS}")
        a(f"""
        v_lshrrev_b32 v{HA+n}, 18, v{REC+4*n+2}
        ds_add_rtn_u32 v{REC+4*n+3}, v{HA+n}, v139 offset:{L_HIST}
        """)
        if n % KS == KS-1: a(f"K2_SKA{n//KS}:")
    a(f"""
    s_mov_b64 exec, -1
    s_waitcnt vmcnt(0) lgkmcnt(0)
    s_barrier
    """)
    st(a, 5)
    a(f"""
    v_lshlrev_b32 v150, 3, v{LANE}
    ds_read_b64 v[152:153], v150 offset:{L_HIST}
    ds_read_b32 v154, v163
    s_waitcnt lgkmcnt(0)
    v_readfirstlane_b32 s58, v154
    v_add_u32 v155, v152, v153
    s_mov_b32 s61, 0
    K2_SCAN:
    v_mov_b32 v156, v155
    s_nop 1
    v_add_u32_dpp v156, v156, v156 row_shr:1 row_mask:0xf bank_mask:0xf
    s_nop 1
    v_add_u32_dpp v156, v156, v156 row_shr:2 row_mask:0xf bank_mask:0xf
    s_nop 1
    v_add_u32_dpp v156, v156, v156 row_shr:4 row_mask:0xf bank_mask:0xf
    s_nop 1
    v_add_u32_dpp v156, v156, v156 row_shr:8 row_mask:0xf bank_mask:0xf
    s_nop 1
    v_add_u32_dpp v156, v156, v156 row_bcast:15 row_mask:0xa bank_mask:0xf
    s_nop 1
    v_add_u32_dpp v156, v156, v156 row_bcast:31 row_mask:0xc bank_mask:0xf
    s_nop 1
    v_readlane_b32 s34, v156, 63
    s_cmp_lg_u32 s57, {RFAST}
    s_cbranch_scc1 K2_CAPOK
    s_cmp_gt_u32 s58, {RFAST}
    s_cbranch_scc1 K2_TOSLOW
    s_cmp_gt_u32 s34, {CAP}
    s_cbranch_scc0 K2_CAPOK
    K2_TOSLOW:
    s_mov_b32 s57, {RSLOW}
    s_barrier
    s_branch K2_ROUND
    K2_CAPOK:
    s_cmp_lg_u32 s61, 0
    s_cbranch_scc1 K2_SCANDONE
    v_mov_b32 v157, v155
    s_nop 1
    v_add_u32_dpp v157, v155, v155 quad_perm:[1,0,3,2] row_mask:0xf bank_mask:0xf
    v_cmp_gt_u32 vcc, 31, v157
    v_cmp_gt_u32 s[44:45], s34, v156
    s_and_b64 vcc, vcc, s[44:45]
    s_mov_b32 s44, 0xaaaaaaaa
    s_mov_b32 s45, 0xaaaaaaaa
    s_and_b64 vcc, vcc, s[44:45]
    s_cbranch_vccz K2_SCANDONE
    v_mov_b32 v151, v157
    s_nop 1
    v_add_u32_dpp v151, v157, v157 quad_perm:[2,3,0,1] row_mask:0xf bank_mask:0xf
    v_sub_u32 v151, 0, v151
    v_and_b32 v151, 31, v151
    s_mov_b32 s44, 0x88888888
    s_mov_b32 s45, 0x88888888
    v_cndmask_b32 v151, 0, v151, s[44:45]
    v_add_u32 v155, v155, v151
    s_mov_b32 s61, 1
    s_branch K2_SCAN
    K2_SCANDONE:
    v_sub_u32 v156, v156, v155
    v_add_u32 v157, v156, v152
    ds_write_b64 v150, v[156:157] offset:{L_PREF}
    """)
    for n in range(NK):
        a(f"s_mov_b64 exec, s[{SM+2*n}:{SM+1+2*n}]")
        if n % KS >= 3 or n >= KS: a(f"s_cbranch_execz K2_SKB{n//KS}")
        a(f"ds_read_b32 v{HA+n}, v{HA+n} offset:{L_PREF}")
        if n % KS == KS-1: a(f"K2_SKB{n//KS}:")
    a("s_waitcnt lgkmcnt(0)")
    st(a, 6)
    for n in range(NK):
        a(f"s_mov_b64 exec, s[{SM+2*n}:{SM+1+2*n}]")
        if n % KS >= 3 or n >= KS: a(f"s_cbranch_execz K2_SKC{n//KS}")
        a(f"""
        v_add_lshl_u32 v{HA+n}, v{HA+n}, v{REC+4*n+3}, 2
        ds_write_b32 v{HA+n}, v{REC+4*n+2} offset:{L_META}
        v_lshlrev_b32 v{HA+n}, 1, v{HA+n}
        ds_write_b64 v{HA+n}, {rr(REC+4*n,2)} offset:{L_REC}
        """)
        if n % KS == KS-1: a(f"K2_SKC{n//KS}:")
    a(f"""
    s_mov_b64 exec, -1
    s_cmp_lg_u32 s9, 0
    s_cbranch_scc1 K2_NOATAB
    s_mov_b32 s9, 1
    v_lshlrev_b32 v162, 4, v{TID}
    v_cmp_gt_u32 vcc, 104, v{TID}
    s_mov_b64 exec, vcc
    ds_write_b128 v162, v[34:37] offset:{L_PDT}
    s_mov_b64 exec, -1
    s_cmp_lg_u32 s32, 8
    s_cbranch_scc1 K2_NOWXF
    v_lshlrev_b32 v166, 16, v166
    v_lshlrev_b32 v167, 2, v{LANE}
    ds_write_b32 v167, v166 offset:{L_WXF}
    K2_NOWXF:
    v_lshlrev_b32 v167, 4, v{LANE}
    v_add_u32 v167, {L_HBUF+8*4096}, v167
    s_cmp_gt_u32 s32, 7
    s_cbranch_scc1 K2_ATABEND
    s_and_b32 s60, s32, 1
    s_lshl_b32 s59, s60, 12
    v_subrev_u32 v162, s59, v{vHR}
    v_xor_b32 v164, 16, v162
    v_xor_b32 v165, 32, v162
    v_xor_b32 v166, 48, v162
    ds_read_b128 {rr(AH,4)}, v162
    ds_read_b128 {rr(AH+4,4)}, v164
    ds_read_b128 {rr(AH+8,4)}, v165
    ds_read_b128 {rr(AH+12,4)}, v166
    v_add_u32 v162, s59, v167
    """)
    for s_ in range(4):
        a(f"ds_read_b128 {rr(AW+4*s_,4)}, v162 offset:{8192+1024*s_}")
    a(f"""
    v_and_b32 v164, 31, v{LANE}
    v_lshrrev_b32 v165, 5, v{LANE}
    v_mul_u32_u24 v164, {ATAB_STRIDE}, v164
    v_lshl_add_u32 v164, v165, 3, v164
    s_lshr_b32 s59, s32, 1
    s_mul_i32 s60, s60, {32*ATAB_STRIDE}
    s_lshl_b32 s61, s59, 6
    s_add_u32 s61, s61, s60
    s_add_u32 s61, s61, {L_ATAB}
    v_add_u32 v164, s61, v164
    s_waitcnt lgkmcnt(0)
    """)
    a(mfma(AD, AH, AW, None))
    for s_ in range(1,4): a(mfma(AD, AH+4*s_, AW+4*s_, AD))
    a("s_nop 7\ns_nop 3")
    for j in range(4):
        a(f"""
        v_cvt_pk_bf16_f32 v{AD+4*j}, v{AD+4*j}, v{AD+1+4*j}
        v_cvt_pk_bf16_f32 v{AD+1+4*j}, v{AD+2+4*j}, v{AD+3+4*j}
        ds_write_b64 v164, {rr(AD+4*j,2)} offset:{16*j}
        """)
        if j == 0: a("s_cmp_eq_u32 s59, 3\ns_cbranch_scc1 K2_ATABEND")
    a("K2_ATABEND:")
    for o in range(8):
        a(f"ds_read_b128 {rr(vW2+4*o,4)}, v167 offset:{1024*o}")
    a(f"""
    v_lshlrev_b32 v162, 3, v{LANE}
    v_add_u32 v162, {L_HBUF+4096}, v162
    ds_read_b64 {rr(vWX,2)}, v162
    ds_read_b64 {rr(vWX+4,2)}, v162 offset:512
    K2_NOATAB:
    s_add_u32 s59, s34, 31
    s_lshr_b32 s59, s59, 5
    s_lshr_b32 s60, s32, 2
    s_and_b32 s61, s32, 3
    s_cmp_eq_u32 s60, 0
    s_cselect_b32 s35, 0, {4*WA}
    s_cselect_b32 s36, {WA}, {WB}
    s_cmp_eq_u32 s60, 2
    s_cselect_b32 s35, {4*WA+4*WB}, s35
    s_cselect_b32 s36, {WC}, s36
    s_mul_i32 s61, s61, s36
    s_add_u32 s35, s35, s61
    s_add_u32 s36, s36, s35
    s_mul_i32 s35, s35, s59
    s_mul_i32 s36, s36, s59
    s_lshr_b32 s35, s35, 8
    s_lshr_b32 s36, s36, 8
    s_cmp_eq_u32 s60, 0
    s_cbranch_scc0 K2_P1
    s_setprio 2
    K2_P1:
    s_cmp_eq_u32 s60, 1
    s_cbranch_scc0 K2_P2
    s_setprio 1
    K2_P2:
    s_lshl_b32 s68, s35, 5
    s_lshl_b32 s69, s36, 5
    s_min_u32 s69, s69, s34
    """)
    dma_consts(a, LANE, 44)
    a(f"""
    v_and_b32 v44, 31, v{LANE}
    v_lshrrev_b32 v45, 5, v{LANE}
    s_lshl_b32 s59, s35, 7
    v_lshl_add_u32 v{vMA}, v44, 2, s59
    v_lshrrev_b32 v46, 3, v{LANE}
    v_lshl_add_u32 v{vMS}, v46, 2, s59
    v_lshlrev_b32 v{vOHB}, 3, v45
    v_add_u32 v{vOHB}, {L_OHT}, v{vOHB}
    s_lshl_b32 s59, s32, 11
    s_add_u32 s59, s59, {L_STG}
    v_lshl_add_u32 v{vSGB}, v44, 6, s59
    v_bfe_u32 v46, v{LANE}, 2, 2
    v_lshl_add_u32 v46, v45, 2, v46
    v_lshlrev_b32 v{vSR}, 6, v46
    v_bfe_u32 v46, v{LANE}, 4, 1
    v_lshl_add_u32 v{vSR}, v46, 5, v{vSR}
    v_and_b32 v46, 3, v{LANE}
    v_lshl_add_u32 v{vSR}, v46, 3, v{vSR}
    v_add_u32 v{vSR}, s59, v{vSR}
    v_mov_b32 v{vZ}, 0
    s_mov_b32 s37, 0
    s_waitcnt lgkmcnt(0)
    s_barrier
    """)
    st(a, 7)
    a(f"""
    s_cmp_ge_u32 s35, s36
    s_cbranch_scc1 K2_MAINDONE
    """)
    for l in src_reads(0) + dl_read(): a(l)
    for r in range(vACC, vACC+32, 2): a(f"v_mov_b64 {rr(r,2)}, 0")
    for r in range(vD+16, vD+24, 2): a(f"v_mov_b64 {rr(r,2)}, 0")
    for r in range(vST, vST+8, 2): a(f"v_mov_b64 {rr(r,2)}, 0")
    for r in range(vXA, vXA+4, 2): a(f"v_mov_b64 {rr(r,2)}, 0")
    a(f"""
    s_waitcnt lgkmcnt(0)
    v_readfirstlane_b32 s70, v{vDL}
    v_cmp_ne_u32 vcc, 0xffff, v{vDL}
    s_mov_b64 s[44:45], vcc
    s_lshr_b32 s70, s70, 4
    s_lshl_b32 s59, s32, 2
    v_mov_b32 v{vT}, s59
    v_mov_b32 v{vT+1}, s70
    ds_write_b32 v{vT}, v{vT+1} offset:{L_MISC+16}
    """)
    for l in dma() + ps_load() + src_reads(0) + pd_read(): a(l)
    a("s_and_b32 s59, s70, -2")
    rebase(a)
    wx_reload(a)
    a(f"s_waitcnt vmcnt({0})")
    for l in h_reads(): a(l)
    for l in xa_build(-128): a(l)
    a("s_waitcnt lgkmcnt(0)")
    for l in dma() + ps_load() + src_reads(128) + dl_read(): a(l)
    a("s_mov_b32 s39, 0")
    a(mfma(vD, vXA, vWX, None))
    for s_ in range(4): a(mfma(vD, vH+4*s_, vW2+4*s_, vD))
    a("s_nop 7\ns_nop 3")
    st(a, 8)
    a("K2_LOOP:")
    a(f"""
    s_waitcnt lgkmcnt(0)
    v_cmp_ne_u32 vcc, 0xffff, v{vDL}
    s_mov_b32 s42, 0
    s_add_u32 s59, s35, 1
    s_cmp_ge_u32 s59, s36
    s_cselect_b64 s[44:45], 0, vcc
    s_cbranch_scc1 K2_NOREBASE
    s_add_u32 s59, s59, 1
    s_lshl_b32 s59, s59, 5
    s_min_u32 s59, s59, s34
    s_cmp_le_u32 s59, s38
    s_cbranch_scc1 K2_NOREBASE
    s_mov_b32 s71, s37
    v_readfirstlane_b32 s59, v{vDL}
    s_mov_b32 s42, 1
    s_lshr_b32 s59, s59, 4
    s_and_b32 s59, s59, -2
    """)
    rebase(a)
    a("K2_NOREBASE:")
    for l in pd_read(): a(l)
    D0, D1 = vD, vD+16
    _sv = (dma, h_reads, unwrite, st_reads, xa_build, mfma, src_reads)
    if 'nodma' in ABL: dma = lambda: []
    if 'nohr' in ABL: h_reads = lambda dst=vH: []
    if 'nost' in ABL: st_reads = lambda: []; unwrite = lambda: []
    if 'noxa' in ABL: xa_build = lambda e: []
    if 'nomfma' in ABL: mfma = lambda *x: "s_nop 0"
    if 'nometa' in ABL: src_reads = lambda e=0: []
    slotsA = [
        [mfma(vACC+16, D1, vST, vACC+16)],
        [mfma(vACC+16, D1+4, vST+4, vACC+16)] + st_reads() + unwrite(),
        [mfma(D1, vH, vW2+16, None)],
        [mfma(D1, vH+4, vW2+20, D1)],
        [mfma(D1, vH+8, vW2+24, D1)],
        [mfma(D1, vH+12, vW2+28, D1), "s_waitcnt vmcnt(0)"] + h_reads(),
        [mfma(D1, vXA, vWX+4, D1)] + xa_build(-128),
        [],
    ]
    elementwise(a, 0, slotsA)
    a("""
    s_cmp_eq_u32 s39, 0
    s_cbranch_scc1 K2_NOFLUSH
    """)
    if 'noflush' not in ABL: flush(a, "s72")
    a("""
    K2_NOFLUSH:
    s_mov_b32 s39, s42
    s_mov_b32 s72, s71
    s_cmp_eq_u32 s42, 0
    s_cbranch_scc1 K2_NOWX
    """)
    wx_reload(a)
    a("K2_NOWX:")
    slotsB = [
        ["s_waitcnt lgkmcnt(0)", mfma(vACC, D0, vST, vACC)] + dma() + ps_load(),
        [mfma(vACC, D0+4, vST+4, vACC)] + src_reads(128) + dl_read(),
        [mfma(D0, vXA, vWX, None)],
        [mfma(D0, vH, vW2, D0)],
        [mfma(D0, vH+4, vW2+4, D0)],
        [mfma(D0, vH+8, vW2+8, D0)],
        [mfma(D0, vH+12, vW2+12, D0)],
        [],
    ]
    elementwise(a, 1, slotsB)
    dma, h_reads, unwrite, st_reads, xa_build, mfma, src_reads = _sv
    a("""
    s_add_u32 s35, s35, 1
    s_cmp_lt_u32 s35, s36
    s_cbranch_scc1 K2_LOOP
    """)
    a(mfma(vACC+16, D1, vST, vACC+16))
    a(mfma(vACC+16, D1+4, vST+4, vACC+16))
    a("s_nop 7\ns_nop 3")
    flush(a, "s37")
    a(f"""
    K2_MAINDONE:
    s_waitcnt vmcnt(0) lgkmcnt(0)
    """)
    st(a, 9)
    lane_id(a, 140)
    a(f"""
    s_lshl_b32 s59, s32, 6
    v_add_u32 v141, s59, v140
    s_add_u32 s56, s56, s57
    s_cmp_lt_u32 s56, s58
    s_cbranch_scc0 K2_EPI
    s_barrier
    """)
    merge(a, "A")
    a(f"""
    s_barrier
    s_branch K2_ROUND
    K2_EPI:
    """)
    vWH, vRES = 2, 34
    a(f"""
    s_cmp_gt_u32 s32, 7
    s_cbranch_scc1 K2_EPI_POS
    s_lshr_b32 s59, s32, 1
    s_lshl_b32 s59, s59, 5
    s_add_u32 s59, s59, s33
    v_lshrrev_b32 v{vIP}, 3, v140
    v_add_u32 v{vIP}, s59, v{vIP}
    v_add_u32 v{vIP+2}, 8, v{vIP}
    v_add_u32 v{vIP+4}, 16, v{vIP}
    v_add_u32 v{vIP+6}, 24, v{vIP}
    """)
    for l in dma(): a(l)
    a(f"""
    s_lshr_b32 s59, s32, 1
    s_and_b32 s60, s32, 1
    v_lshlrev_b32 v44, 4, v140
    s_lshl_b32 s14, s60, 13
    s_add_u32 s14, s14, {WS_WIMG+16*1024}
    s_add_u32 s61, s14, 4096
    """)
    for s_ in range(8):
        a(f"buffer_load_dwordx4 {rr(vWH+4*s_,4)}, v44, s[20:23], {'s14' if s_<4 else 's61'} offen offset:{1024*(s_%4)}")
    a(f"""
    s_mov_b32 s24, s10
    s_mov_b32 s25, s11
    s_mov_b32 s26, {N*128}
    s_mov_b32 s27, 0x00020000
    v_and_b32 v48, 31, v140
    v_lshrrev_b32 v49, 5, v140
    s_lshl_b32 s61, s59, 5
    v_add_u32 v50, s61, v48
    v_min_u32 v53, {NROWS-1}, v50
    v_mul_u32_u24 v53, {MACC_STRIDE}, v53
    v_lshl_add_u32 v53, v49, 7, v53
    v_add_u32 v53, {L_MACC}, v53
    v_bfe_u32 v54, v48, 1, 3
    s_lshl_b32 s61, s60, 2
    v_xor_b32 v54, s61, v54
    v_lshlrev_b32 v54, 4, v54
    v_lshl_add_u32 v54, v48, 7, v54
    v_lshl_add_u32 v54, v49, 3, v54
    v_add_u32 v54, s43, v54
    v_xor_b32 v55, 16, v54
    v_xor_b32 v59, 32, v54
    v_xor_b32 v60, 48, v54
    v_add_u32 v61, s33, v50
    v_lshlrev_b32 v61, 7, v61
    v_lshl_add_u32 v61, v49, 3, v61
    s_lshl_b32 s61, s60, 6
    v_add_u32 v61, s61, v61
    s_barrier
    """)
    merge(a, "B")
    a("s_barrier")
    st(a, 10)
    for s_ in range(4):
        a(f"ds_read_b128 {rr(74+8*s_,4)}, v53 offset:{32*s_}\nds_read_b128 {rr(78+8*s_,4)}, v53 offset:{32*s_+16}")
    a(f"s_waitcnt vmcnt({8})" if not DIAG else "s_waitcnt vmcnt(0)")
    for l in h_reads(): a(l)
    a(f"""
    ds_read_b64 {rr(vRES,2)}, v54
    ds_read_b64 {rr(vRES+2,2)}, v55
    ds_read_b64 {rr(vRES+4,2)}, v59
    ds_read_b64 {rr(vRES+6,2)}, v60
    s_waitcnt lgkmcnt(8)
    """)
    for s_ in range(4):
        for i in range(4):
            a(f"v_cvt_pk_bf16_f32 v{122+4*s_+i}, v{74+8*s_+2*i}, v{75+8*s_+2*i}")
    a("s_waitcnt vmcnt(0) lgkmcnt(0)")
    a(mfma(74, vWH, vH, None))
    for s_ in range(1,4): a(mfma(74, vWH+4*s_, vH+4*s_, 74))
    for s_ in range(4): a(mfma(74, vWH+16+4*s_, 122+4*s_, 74))
    a(f"""
    v_cmp_gt_u32 vcc, {BN}, v50
    s_nop 7
    s_nop 3
    """)
    for r in range(0,16,2):
        a(f"""
        v_pk_mul_f32 v[92:93], {rr(74+r,2)}, s[46:47]
        v_exp_f32 v92, v92
        v_exp_f32 v93, v93
        s_nop 0
        v_pk_add_f32 v[92:93], v[92:93], 1.0 op_sel_hi:[1,0]
        v_rcp_f32 v92, v92
        v_rcp_f32 v93, v93
        s_nop 0
        v_pk_mul_f32 {rr(74+r,2)}, {rr(74+r,2)}, v[92:93]
        """)
    for j in range(4):
        for hh in range(2):
            src = vRES+2*j+hh
            a(f"""
            v_lshlrev_b32 v92, 16, v{src}
            v_and_b32 v93, 0xffff0000, v{src}
            v_add_f32 v92, v92, v{74+4*j+2*hh}
            v_add_f32 v93, v93, v{75+4*j+2*hh}
            v_cvt_pk_bf16_f32 v{96+2*j+hh}, v92, v93
            """)
    a("s_mov_b64 exec, vcc")
    for j in range(4):
        a(f"buffer_store_dwordx2 {rr(96+2*j,2)}, v61, s[24:27], 0 offen offset:{16*j}")
    if DIAG: a("s_waitcnt vmcnt(0)\ns_mov_b64 exec, -1")
    st(a, 11); st_rt(a, 12)
    a(f"""
    s_endpgm
    K2_EPI_POS:
    v_subrev_u32 v50, 512, v141
    v_lshlrev_b32 v52, 4, v50
    v_add_u32 v51, s33, v50
    v_mul_u32_u24 v51, 6, v51
    v_min_u32 v53, {NROWS-1}, v50
    v_mul_u32_u24 v53, {MACC_STRIDE}, v53
    v_add_u32 v53, {L_MACC}, v53
    s_add_u32 s28, s10, {N*128}
    s_addc_u32 s29, s11, 0
    s_mov_b32 s30, {N*6}
    s_barrier
    s_barrier
    v_cmp_gt_u32 vcc, {BN}, v50
    s_mov_b64 exec, vcc
    s_cbranch_execz K2_EXIT
    ds_read_b128 v[44:47], v53 offset:256
    ds_read_b128 v[56:59], v53 offset:272
    ds_read_b128 v[60:63], v52 offset:{L_PDT}
    s_waitcnt lgkmcnt(0)
    v_add_f32 v45, v45, v57
    v_add_f32 v46, v46, v58
    v_add_f32 v47, v47, v59
    v_add_f32 v60, v60, v45
    v_add_f32 v61, v61, v46
    v_add_f32 v62, v62, v47
    v_cvt_pk_bf16_f32 v60, v60, v61
    v_cvt_pk_bf16_f32 v62, v62, v62
    buffer_store_short v60, v51, s[28:31], 0 offen
    buffer_store_short_d16_hi v60, v51, s[28:31], 0 offen offset:2
    buffer_store_short v62, v51, s[28:31], 0 offen offset:4
    K2_EXIT:
    s_endpgm
    """)
    return a.text()
```

```python
from common import *

HT = int(os.environ.get('HT','0'))
LDP = os.environ.get('LDP','')
STP = os.environ.get('STP','')
K1_THREADS = 832
K1_WAVES = 13
K1_GRID = 253
K1_LDS_HIST = 0
K1_LDS_REC = 4096
K1_LDS = K1_LDS_REC + CH*12

def gen_k1(name):
    a = Asm()
    a(f"""
    s_cmp_ge_u32 s2, {K1_GRID}
    s_cbranch_scc1 K1_EXIT
    s_cmp_ge_u32 s2, {P}
    s_cbranch_scc1 K1_WEIGHTS
    s_load_dwordx4 s[4:7], s[0:1], 8
    s_load_dwordx4 s[8:11], s[0:1], 24
    s_load_dwordx2 s[12:13], s[0:1], 80
    s_load_dwordx2 s[14:15], s[0:1], 0
    """)
    stamp_rt(a, 0, 119); stamp(a, 1, 119)
    a(f"""
    v_lshlrev_b32 v1, 2, v0
    v_mov_b32 v2, 0
    ds_write_b32 v1, v2
    v_cmp_gt_u32 vcc, 800, v0
    s_mov_b64 s[38:39], vcc
    v_lshlrev_b32 v1, 4, v0
    v_lshlrev_b32 v2, 5, v0
    v_mov_b32 v3, 1
    v_readfirstlane_b32 s40, v0
    s_mul_i32 s36, s2, {CH*4}
    s_mul_i32 s37, s2, {CH*8}
    s_waitcnt lgkmcnt(0)
    s_mov_b32 s16, s4
    s_mov_b32 s17, s5
    s_mov_b32 s18, {N*6}
    s_mov_b32 s19, 0x00020000
    s_mov_b32 s20, s6
    s_mov_b32 s21, s7
    s_mov_b32 s22, {E*8}
    s_mov_b32 s23, 0x00020000
    s_mov_b32 s24, s8
    s_mov_b32 s25, s9
    s_mov_b32 s26, {E*4}
    s_mov_b32 s27, 0x00020000
    s_mov_b32 s28, s10
    s_mov_b32 s29, s11
    s_mov_b32 s30, {E*4}
    s_mov_b32 s31, 0x00020000
    s_mov_b32 s32, s12
    s_mov_b32 s33, s13
    s_mov_b32 s34, 0x1200000
    s_mov_b32 s35, 0x00020000
    s_mov_b64 exec, s[38:39]
    buffer_load_dwordx4 v[4:7], v1, s[28:31], s36 offen {LDP}
    s_barrier
    buffer_load_dwordx4 v[8:11], v1, s[24:27], s36 offen {LDP}
    buffer_load_dwordx4 v[12:15], v2, s[20:23], s37 offen {LDP}
    buffer_load_dwordx4 v[16:19], v2, s[20:23], s37 offen offset:16 {LDP}
    v_subrev_u32 v30, 128, v0
    v_mul_u32_u24 v31, 6, v30
    s_mul_i32 s41, s2, 600
    v_cmp_gt_u32 vcc, 100, v30
    s_mov_b64 s[44:45], vcc
    s_mov_b64 exec, vcc
    buffer_load_ushort v32, v31, s[16:19], s41 offen
    buffer_load_ushort v33, v31, s[16:19], s41 offen offset:2
    buffer_load_ushort v34, v31, s[16:19], s41 offen offset:4
    """)
    if HT:
        a(f"""
        s_mov_b32 s48, s14
        s_mov_b32 s49, s15
        s_mov_b32 s50, {N*128}
        s_mov_b32 s51, 0x00020000
        v_lshlrev_b32 v36, 7, v30
        s_mul_i32 s41, s2, 12800
        buffer_load_dword v37, v36, s[48:51], s41 offen
        """)
    a(f"""
    s_mov_b64 exec, s[38:39]
    s_waitcnt vmcnt({7 if HT else 6})
    """)
    stamp(a, 2, 119)
    for i in range(4):
        a(f"""
        v_mul_u32_u24 v{44+i}, 85599, v{4+i}
        v_lshrrev_b32 v{44+i}, 22, v{44+i}
        v_lshrrev_b32 v{68+i}, 1, v{44+i}
        v_lshlrev_b32 v{44+i}, 2, v{44+i}
        ds_add_rtn_u32 v{48+i}, v{44+i}, v3
        v_mul_u32_u24 v{68+i}, {BN}, v{68+i}
        v_sub_u32 v{68+i}, v{4+i}, v{68+i}
        """)
    a("""
    s_waitcnt lgkmcnt(0)
    s_barrier
    """)
    stamp(a, 3, 119)
    a(f"""
    s_cmp_ge_u32 s40, 64
    s_cbranch_scc1 K1_NOSCAN
    v_lshlrev_b32 v80, 5, v0
    ds_read_b128 v[84:87], v80
    ds_read_b128 v[88:91], v80 offset:16
    s_waitcnt lgkmcnt(0)
    v_add_u32 v92, v84, v85
    v_add_u32 v93, v92, v86
    v_add_u32 v94, v93, v87
    v_add_u32 v95, v94, v88
    v_add_u32 v96, v95, v89
    v_add_u32 v97, v96, v90
    v_add_u32 v98, v97, v91
    v_mov_b32 v99, v98
    s_nop 1
    v_add_u32_dpp v99, v99, v99 row_shr:1 row_mask:0xf bank_mask:0xf
    s_nop 1
    v_add_u32_dpp v99, v99, v99 row_shr:2 row_mask:0xf bank_mask:0xf
    s_nop 1
    v_add_u32_dpp v99, v99, v99 row_shr:4 row_mask:0xf bank_mask:0xf
    s_nop 1
    v_add_u32_dpp v99, v99, v99 row_shr:8 row_mask:0xf bank_mask:0xf
    s_nop 1
    v_add_u32_dpp v99, v99, v99 row_bcast:15 row_mask:0xa bank_mask:0xf
    s_nop 1
    v_add_u32_dpp v99, v99, v99 row_bcast:31 row_mask:0xc bank_mask:0xf
    v_sub_u32 v100, v99, v98
    v_add_u32 v101, v100, v84
    v_add_u32 v102, v100, v92
    v_add_u32 v103, v100, v93
    v_add_u32 v104, v100, v94
    v_add_u32 v105, v100, v95
    v_add_u32 v106, v100, v96
    v_add_u32 v107, v100, v97
    ds_write_b128 v80, v[100:103]
    ds_write_b128 v80, v[104:107] offset:16
    v_lshl_or_b32 v108, v101, 16, v100
    v_lshl_or_b32 v109, v103, 16, v102
    v_lshl_or_b32 v110, v105, 16, v104
    v_lshl_or_b32 v111, v107, 16, v106
    s_mul_i32 s41, s2, {TAB_STRIDE}
    s_add_u32 s41, s41, {WS_TAB}
    buffer_store_dwordx4 v[108:111], v1, s[32:35], s41 offen
    v_mov_b32 v112, {CH | (CH<<16)}
    v_mov_b32 v113, v112
    v_mov_b32 v114, v112
    v_mov_b32 v115, v112
    s_mov_b64 exec, 1
    buffer_store_dwordx4 v[112:115], v1, s[32:35], s41 offen offset:1024
    s_mov_b64 exec, -1
    s_waitcnt lgkmcnt(0)
    K1_NOSCAN:
    s_barrier
    """)
    stamp(a, 4, 119)
    for i in range(4):
        a(f"ds_read_b32 v{80+i}, v{44+i}")
    a("s_waitcnt vmcnt(0)")
    stamp(a, 5, 119)
    for i in range(4):
        a(f"v_lshl_or_b32 v{68+i}, v{68+i}, 20, v{8+i}")
    a("s_waitcnt lgkmcnt(0)")
    for i in range(4):
        a(f"""
        v_add_u32 v{80+i}, v{80+i}, v{48+i}
        v_mul_u32_u24 v{80+i}, 12, v{80+i}
        v_add_u32 v{80+i}, {K1_LDS_REC}, v{80+i}
        ds_write2_b32 v{80+i}, v{12+2*i}, v{13+2*i} offset0:0 offset1:1
        ds_write_b32 v{80+i}, v{68+i} offset:8
        """)
    a(f"""
    s_mov_b64 exec, s[44:45]
    v_lshlrev_b32 v32, 16, v32
    v_lshlrev_b32 v33, 16, v33
    v_lshlrev_b32 v34, 16, v34
    v_mov_b32 v35, 0
    v_lshlrev_b32 v31, 4, v30
    s_mul_i32 s41, s2, 1600
    s_add_u32 s41, s41, {WS_POSF}
    buffer_store_dwordx4 v[32:35], v31, s[32:35], s41 offen
    s_mov_b64 exec, s[38:39]
    s_waitcnt lgkmcnt(0)
    s_barrier
    """)
    stamp(a, 6, 119)
    a(f"""
    ds_read_b128 v[4:7], v1 offset:{K1_LDS_REC}
    ds_read_b128 v[8:11], v1 offset:{K1_LDS_REC+12800}
    ds_read_b128 v[12:15], v1 offset:{K1_LDS_REC+25600}
    s_mul_i32 s42, s2, {CH*12}
    s_add_u32 s43, s42, 12800
    s_add_u32 s44, s42, 25600
    s_waitcnt lgkmcnt(2)
    buffer_store_dwordx4 v[4:7], v1, s[32:35], s42 offen {STP}
    s_waitcnt lgkmcnt(1)
    buffer_store_dwordx4 v[8:11], v1, s[32:35], s43 offen {STP}
    s_waitcnt lgkmcnt(0)
    buffer_store_dwordx4 v[12:15], v1, s[32:35], s44 offen {STP}
    """)
    stamp(a, 7, 119)
    if DIAG: a("s_waitcnt vmcnt(0)")
    stamp(a, 8, 119); stamp_rt(a, 9, 119)
    stamp_dump(a, 10, 119, 0, "s[32:35]", 30)
    a(f"""
    K1_EXIT:
    s_endpgm
    """)
    a(f"""
    K1_WEIGHTS:
    s_load_dwordx2 s[4:5], s[0:1], 40
    s_load_dwordx2 s[6:7], s[0:1], 56
    s_load_dwordx2 s[12:13], s[0:1], 80
    v_lshrrev_b32 v1, 6, v0
    s_nop 0
    v_readfirstlane_b32 s40, v1
    s_sub_u32 s41, s2, {P}
    s_mul_i32 s41, s41, 13
    s_add_u32 s40, s40, s41
    s_cmp_gt_u32 s40, 32
    s_cbranch_scc1 K1_EXIT
    v_and_b32 v1, 63, v0
    v_and_b32 v2, 31, v1
    v_lshrrev_b32 v3, 5, v1
    s_waitcnt lgkmcnt(0)
    s_mov_b32 s32, s12
    s_mov_b32 s33, s13
    s_mov_b32 s34, 0x1200000
    s_mov_b32 s35, 0x00020000
    s_cmp_lt_u32 s40, 16
    s_cselect_b32 s16, s4, s6
    s_cselect_b32 s17, s5, s7
    s_mov_b32 s47, {128*128}
    s_cselect_b32 s18, {133*128}, s47
    s_mov_b32 s19, 0x00020000
    s_cmp_eq_u32 s40, 32
    s_cbranch_scc1 K1_WXC
    s_cmp_lt_u32 s40, 16
    s_cbranch_scc0 K1_WH
    s_cmp_lt_u32 s40, 8
    s_cselect_b32 s42, 64, 0
    s_lshr_b32 s43, s40, 2
    s_and_b32 s43, s43, 1
    s_and_b32 s44, s40, 3
    s_branch K1_WGO
    K1_WH:
    s_sub_u32 s45, s40, 16
    s_lshr_b32 s43, s45, 3
    s_and_b32 s44, s45, 3
    s_and_b32 s45, s45, 4
    s_lshl_b32 s42, s45, 4
    K1_WGO:
    ; K0 = s42 + 8*s44 ; C0 = 32*s43
    s_lshl_b32 s44, s44, 3
    s_add_u32 s42, s42, s44
    s_lshl_b32 s42, s42, 7
    s_lshl_b32 s43, s43, 6
    s_add_u32 s42, s42, s43
    v_lshlrev_b32 v4, 12, v3
    v_lshl_add_u32 v4, v2, 1, v4
    """)
    for j in range(8):
        a(f"buffer_load_ushort v{8+j}, v4, s[16:19], s42 offen offset:{128*j}")
    a(f"""
    s_lshl_b32 s46, s40, 10
    s_add_u32 s46, s46, {WS_WIMG}
    v_lshlrev_b32 v5, 4, v1
    s_cmp_lt_u32 s40, 8
    s_cselect_b32 s47, 0xbfb8aa3b, 1.0
    s_waitcnt vmcnt(0)
    """)
    for j in range(8):
        a(f"v_lshlrev_b32 v{8+j}, 16, v{8+j}\nv_mul_f32 v{8+j}, s47, v{8+j}")
    a(f"""
    v_cvt_pk_bf16_f32 v16, v8, v9
    v_cvt_pk_bf16_f32 v17, v10, v11
    v_cvt_pk_bf16_f32 v18, v12, v13
    v_cvt_pk_bf16_f32 v19, v14, v15
    buffer_store_dwordx4 v[16:19], v5, s[32:35], s46 offen
    s_endpgm
    K1_WXC:
    s_mov_b32 s16, s4
    s_mov_b32 s17, s5
    s_mov_b32 s18, {133*128}
    s_mov_b32 s42, {128*128}
    v_lshlrev_b32 v4, 1, v2
    """)
    for t in range(2):
        for r in range(5):
            a(f"buffer_load_ushort v{8+5*t+r}, v4, s[16:19], s42 offen offset:{128*r+64*t}")
    a(f"""
    v_cmp_eq_u32 vcc, 0, v3
    v_lshlrev_b32 v5, 3, v1
    s_mov_b32 s46, {WS_WIMG + 32*1024}
    s_waitcnt vmcnt(0)
    """)
    for r in range(8,18):
        a(f"v_lshlrev_b32 v{r}, 16, v{r}\nv_mul_f32 v{r}, 0xbfb8aa3b, v{r}")
    for t in range(2):
        b = 8+5*t
        a(f"""
        v_cvt_pk_bf16_f32 v20, v{b+1}, v{b+2}
        v_cvt_pk_bf16_f32 v21, v{b+3}, v{b+4}
        v_cvt_pk_bf16_f32 v26, v{b}, 0
        v_lshlrev_b32 v26, 16, v26
        v_sub_f32 v27, v{b}, v26
        v_cvt_pk_bf16_f32 v{b}, v26, v27
        v_cndmask_b32 v{22+2*t}, v{b}, v20, vcc
        v_cndmask_b32 v{23+2*t}, 0, v21, vcc
        """)
    a("""
    buffer_store_dwordx2 v[22:23], v5, s[32:35], s46 offen
    buffer_store_dwordx2 v[24:25], v5, s[32:35], s46 offen offset:512
    s_endpgm
    """)
    return a.text()
```

```python
from common import *

K2_WAVES = 12
K2_THREADS = 64*K2_WAVES
K2_GRID = 256
NQ = K2_THREADS//4
CAP = 3456
L_HIST = 0
L_MISC = 512
L_PREF = 576
L_OHT  = 1152
L_WXF  = 1280
L_META = 1536
L_REC  = L_META + CAP*4
L_PDT  = L_REC + CAP*8
L_ATAB = L_PDT + 104*16
ATAB_STRIDE = 208
L_MACC = L_ATAB + 64*ATAB_STRIDE
MACC_STRIDE = 288
NROWS = 98 + K2_WAVES - 1
L_STG  = L_MACC + NROWS*MACC_STRIDE
STG_SZ = 2048
L_HBUF = (L_STG + K2_WAVES*STG_SZ + 127)//128*128
K2_LDS = L_HBUF + K2_WAVES*4096
ZERO_BEG = L_MACC
ZERO_N16 = (L_STG + K2_WAVES*STG_SZ - L_MACC)//16
assert K2_LDS <= 163840, K2_LDS

vSR, vZ = 0, 1
vW2, vWX, vACC, vD, vH, vXA, vST, vT, vIP, vPS, vPD, vHR = 2, 34, 42, 74, 106, 122, 126, 134, 142, 150, 154, 158
vSE = vPS+3
vDL, vMA, vMS, vOHB, vSGB, vSG = 162, 163, 164, 165, 166, 167
K2_VGPRS = 168 if not DIAG else 168
vSTAMP = None
KS = 9
NK = 2*KS
RFAST = 4*KS
RSLOW = 12
SM = 64
WA, WB, WC = [int(x) for x in os.environ.get('WTS','35,19,10').split(',')]
assert 4*(WA+WB+WC) == 256
ABL = os.environ.get('ABL','').split(',')

def rr(b, n): return f"v[{b}:{b+n-1}]"

def mfma(d, a_, b_, c):
    cs = rr(c,16) if c is not None else "0"
    return f"v_mfma_f32_32x32x16_bf16 {rr(d,16)}, {rr(a_,4)}, {rr(b_,4)}, {cs}"

def st(a, i):
    if not DIAG: return
    a(f"""
    s_memtime s[100:101]
    s_waitcnt lgkmcnt(0)
    s_mov_b64 vcc, exec
    s_mov_b64 exec, 1
    v_mov_b32 v141, s100
    v_mov_b32 v140, 0
    buffer_store_dword v141, v140, s[20:23], s15 offen offset:{4*i}
    s_mov_b64 exec, vcc
    """)
def st_rt(a, i):
    if not DIAG: return
    a(f"""
    s_memrealtime s[100:101]
    s_waitcnt lgkmcnt(0)
    s_mov_b64 vcc, exec
    s_mov_b64 exec, 1
    v_mov_b32 v141, s100
    v_mov_b32 v140, 0
    buffer_store_dword v141, v140, s[20:23], s15 offen offset:{4*i}
    s_mov_b64 exec, vcc
    """)

def lane_id(a, v):
    a(f"v_mbcnt_lo_u32_b32 v{v}, -1, 0\nv_mbcnt_hi_u32_b32 v{v}, -1, v{v}")

def elementwise(a, t, slots):
    D = vD + 16*t
    if 'noew' in ABL:
        for sl in slots:
            for l in sl: a(l)
            a("s_nop 7\ns_nop 7")
        return
    for g in range(4):
        ps = (2*g, 2*g+1)
        tmp = [vT + 4*(g%2), vT + 4*(g%2) + 2]
        for l in slots[2*g]: a(l)
        for p, tm in zip(ps, tmp):
            a(f"v_exp_f32 v{tm}, v{D+2*p}\nv_exp_f32 v{tm+1}, v{D+2*p+1}")
        for tm in tmp:
            a(f"v_pk_add_f32 {rr(tm,2)}, {rr(tm,2)}, 1.0 op_sel_hi:[1,0]")
        for l in slots[2*g+1]: a(l)
        for tm in tmp:
            a(f"v_rcp_f32 v{tm}, v{tm}\nv_rcp_f32 v{tm+1}, v{tm+1}")
        for p, tm in zip(ps, tmp):
            a(f"v_pk_mul_f32 {rr(tm,2)}, {rr(tm,2)}, {rr(D+2*p,2)}")
        for p, tm in zip(ps, tmp):
            a(f"v_cvt_pk_bf16_f32 v{D+p}, v{tm}, v{tm+1}")

def dma():
    out = []
    for i in range(4):
        out += [f"s_add_u32 m0, s43, {1024*i}" if i else "s_mov_b32 m0, s43", "s_nop 0",
                f"buffer_load_dwordx4 {rr(vIP+2*i,2)}, s[16:19], 0 idxen offen lds"]
    return out

def h_reads(dst=vH):
    return [f"ds_read_b128 {rr(dst+4*s,4)}, v{vHR+s}" for s in range(4)]

def pd_read():
    return ["s_mov_b64 exec, s[44:45]",
            f"ds_read_b128 {rr(vPD,4)}, v{vDL} offset:{L_PDT}",
            "s_mov_b64 exec, -1"]

def ps_load():
    ex = []
    if 'eatest' in ABL:
        ex = ["s_mov_b64 exec, s[48:49]", f"buffer_load_dwordx2 {rr(vPS,2)}, v{vSE}, s[76:79], 0 idxen nt"]
    return ex + ["s_mov_b64 exec, s[50:51]",
            f"buffer_load_dwordx3 {rr(vPS,3)}, v{vSE}, s[24:27], 0 idxen",
            "s_mov_b64 exec, -1"]

def xa_build(eaoff, wait="s_waitcnt lgkmcnt(4)"):
    return [f"v_lshrrev_b32 v{vSG}, 1, v{vDL}",
            f"v_add_u32 v{vSG}, v{vSG}, v{vSGB}",
            f"v_add_u32 v{vDL}, v{vDL}, v{vOHB}",
            f"v_lshlrev_b32 v{vT}, 1, v{vMA}",
            wait,
            "s_and_b64 exec, s[44:45], s[50:51]",
            f"v_pk_add_f32 {rr(vPD,2)}, {rr(vPD,2)}, {rr(vPS,2)} neg_lo:[0,1] neg_hi:[0,1]",
            f"v_sub_f32 v{vPD+2}, v{vPD+2}, v{vPS+2}",
            f"v_mul_f32 v{vPD+3}, v{vPD}, v{vPD}",
            f"v_fmac_f32 v{vPD+3}, v{vPD+1}, v{vPD+1}",
            f"v_fmac_f32 v{vPD+3}, v{vPD+2}, v{vPD+2}",
            f"v_cvt_pk_bf16_f32 v{vXA+1}, v{vPD+1}, v{vPD+2}",
            f"v_cvt_pk_bf16_f32 v{vXA}, v{vPD+3}, v{vPD+3}",
            f"v_cvt_pk_bf16_f32 v{vPD}, 1.0, v{vPD}",
            f"ds_write2_b32 v{vSG}, v{vPD}, v{vXA+1} offset0:0 offset1:1",
            "s_and_b64 exec, s[44:45], s[48:49]",
            f"ds_read_b64 {rr(vXA,2)}, v{vT} offset:{L_REC + 2*eaoff}",
            "s_mov_b64 exec, s[44:45]",
            f"ds_read_b64 {rr(vXA+2,2)}, v{vDL}",
            "s_mov_b64 exec, -1",
            "s_and_b64 s[40:41], s[44:45], s[50:51]"]

def unwrite():
    return ["s_mov_b64 exec, s[40:41]",
            f"ds_write2_b32 v{vSG}, v{vZ}, v{vZ} offset0:0 offset1:1",
            "s_mov_b64 exec, -1"]

def dl_read():
    return [f"ds_read_u16 v{vDL}, v{vMA} offset:{L_META+2}",
            f"v_add_u32 v{vMA}, 128, v{vMA}"]

def src_reads(eoff=128):
    return [f"ds_read_u16 v{vIP+2*i}, v{vMS} offset:{L_META+32*i}" for i in range(4)] + \
           [f"ds_read_u16 v{vSE}, v{vMA} offset:{L_META+eoff}",
            f"v_add_u32 v{vMS}, 128, v{vMS}"]

def st_reads():
    return [f"ds_read_b64_tr_b16 {rr(vST+4*s+2*jq,2)}, v{vSR} offset:{1024*s+512*jq}" for s in range(2) for jq in range(2)]

def rebase(a):
    a(f"""
    s_sub_u32 s60, s59, s37
    s_mov_b32 s37, s59
    s_lshl_b32 s61, s60, 4
    s_lshl_b32 s60, s60, 3
    v_subrev_u32 v{vOHB}, s61, v{vOHB}
    v_subrev_u32 v{vSGB}, s60, v{vSGB}
    s_lshl_b32 s59, s37, 2
    v_mov_b32 v{vT}, s59
    ds_read_b32 v{vT+1}, v{vT} offset:{L_PREF+32}
    s_waitcnt lgkmcnt(0)
    v_readfirstlane_b32 s38, v{vT+1}
    """)

def wx_reload(a):
    lane_id(a, vT)
    a(f"""
    s_lshl_b32 s59, s37, 1
    s_add_u32 s59, s59, {L_ATAB}
    v_and_b32 v{vT+1}, 31, v{vT}
    v_lshrrev_b32 v{vT}, 5, v{vT}
    v_lshl_add_u32 v{vT}, v{vT}, 3, s59
    v_mad_u32_u24 v{vT}, v{vT+1}, s62, v{vT}
    v_add_u32 v{vT+1}, {32*ATAB_STRIDE}, v{vT}
    ds_read2_b32 {rr(vWX+2,2)}, v{vT} offset0:0 offset1:1
    ds_read2_b32 {rr(vWX+6,2)}, v{vT+1} offset0:0 offset1:1
    """)

def flush(a, sbase):
    A, X, S = vPD, vPD+1, vPD+2
    R = vD+8
    Y = R
    lane_id(a, X)
    a(f"""
    v_bfe_u32 v{Y}, v{X}, 2, 3
    v_add_u32 v{Y}, {sbase}, v{Y}
    v_lshlrev_b32 v{A}, 2, v{Y}
    ds_read_b32 v{S}, v{A} offset:{L_PREF}
    v_cmp_eq_u32 s[66:67], s70, v{Y}
    s_add_u32 s59, s32, 97
    v_mov_b32 v{A}, s59
    v_and_b32 v{S+1}, 3, v{X}
    v_lshrrev_b32 v{X}, 5, v{X}
    v_lshlrev_b32 v{X}, 4, v{X}
    ds_read_b128 {rr(vT,4)}, v{X} offset:{L_WXF}
    ds_read_b128 {rr(vT+4,4)}, v{X} offset:{L_WXF + 32}
    s_waitcnt lgkmcnt(2)
    v_cmp_le_u32 vcc, s68, v{S}
    v_cmp_gt_u32 s[64:65], s69, v{S}
    s_and_b64 s[64:65], s[64:65], vcc
    s_andn2_b64 s[66:67], s[66:67], vcc
    v_cndmask_b32 v{Y}, v{Y}, v{A}, s[66:67]
    s_or_b64 s[64:65], s[64:65], s[66:67]
    v_mad_u32_u24 v{A}, v{Y}, s63, v{X}
    v_lshl_add_u32 v{A}, v{S+1}, 2, v{A}
    v_add_u32 v{A}, {L_MACC}, v{A}
    s_and_b64 s[66:67], s[64:65], s[52:53]
    s_and_b64 s[64:65], s[64:65], s[54:55]
    """)
    for qd in range(4):
        t, j = qd>>1, 2*(qd&1)
        if qd:
            a(f"""
            ds_read_b128 {rr(vT,4)}, v{X} offset:{L_WXF + (32*t+8*j)*4}
            ds_read_b128 {rr(vT+4,4)}, v{X} offset:{L_WXF + (32*t+8*j+8)*4}
            """)
        a(f"""
        s_mov_b64 exec, s[66:67]
        ds_read_b128 {rr(R,4)}, v{A} offset:{t*128+j*32}
        ds_read_b128 {rr(R+4,4)}, v{A} offset:{t*128+j*32+32}
        s_mov_b64 exec, -1
        s_waitcnt lgkmcnt(2)
        """)
        for i in range(0,8,2):
            if qd == 0 and i == 0:
                a(f"v_pk_mul_f32 {rr(S,2)}, {rr(vACC,2)}, {rr(vT,2)}")
            else:
                a(f"v_pk_fma_f32 {rr(S,2)}, {rr(vACC+8*qd+i,2)}, {rr(vT+i,2)}, {rr(S,2)}")
        a("s_waitcnt lgkmcnt(0)")
        for i in range(0,8,2):
            a(f"v_pk_add_f32 {rr(R+i,2)}, {rr(R+i,2)}, {rr(vACC+8*qd+i,2)}")
        a(f"""
        s_mov_b64 exec, s[66:67]
        ds_write_b128 v{A}, {rr(R,4)} offset:{t*128+j*32}
        ds_write_b128 v{A}, {rr(R+4,4)} offset:{t*128+j*32+32}
        s_mov_b64 exec, -1
        """)
    a(f"""
    s_mov_b64 exec, s[64:65]
    ds_read_b32 v{X}, v{A} offset:256
    v_add_f32 v{S}, v{S}, v{S+1}
    s_waitcnt lgkmcnt(0)
    v_add_f32 v{X}, v{X}, v{S}
    ds_write_b32 v{A}, v{X} offset:256
    s_mov_b64 exec, -1
    """)

def mfma_z(flag, tag, d, a_, b_):
    return [f"s_cmp_eq_u32 {flag}, 0",
            f"s_cbranch_scc1 K2_MZ{tag}a",
            mfma(d, a_, b_, None),
            f"s_mov_b32 {flag}, 0",
            f"s_branch K2_MZ{tag}b",
            f"K2_MZ{tag}a:",
            mfma(d, a_, b_, d),
            f"K2_MZ{tag}b:"]

def merge(a, tag):
    a(f"""
    v_lshlrev_b32 v74, 2, v140
    ds_read2_b32 v[76:77], v74 offset0:{(L_MISC+16)//4} offset1:{(L_MISC+20)//4}
    s_waitcnt lgkmcnt(0)
    v_cmp_lt_u32 vcc, v76, v77
    v_cmp_ne_u32 s[64:65], 0, v76
    s_and_b64 vcc, vcc, s[64:65]
    s_and_b32 s64, vcc_lo, {(1<<(K2_WAVES-1))-1}
    s_cmp_eq_u32 s64, {(1<<(K2_WAVES-1))-1}
    s_cbranch_scc0 K2_MSLOW{tag}
    s_cmp_eq_u32 s32, 0
    s_cbranch_scc1 K2_MERGED{tag}
    s_mul_i32 s64, s70, {MACC_STRIDE}
    s_add_u32 s64, s64, {L_MACC}
    s_mul_i32 s65, s32, {MACC_STRIDE}
    s_add_u32 s65, s65, {L_MACC + 97*MACC_STRIDE}
    v_add_u32 v75, s64, v74
    v_add_u32 v76, s65, v74
    v_mov_b32 v77, 0
    ds_read_b32 v78, v75
    ds_read_b32 v79, v76
    s_mov_b64 exec, 0xff
    ds_read_b32 v80, v75 offset:256
    ds_read_b32 v81, v76 offset:256
    s_mov_b64 exec, -1
    s_waitcnt lgkmcnt(0)
    v_add_f32 v78, v78, v79
    v_add_f32 v80, v80, v81
    ds_write_b32 v75, v78
    ds_write_b32 v76, v77
    s_mov_b64 exec, 0xff
    ds_write_b32 v75, v80 offset:256
    ds_write_b32 v76, v77 offset:256
    s_mov_b64 exec, -1
    s_waitcnt lgkmcnt(0)
    s_branch K2_MERGED{tag}
    K2_MSLOW{tag}:
    s_cmp_gt_u32 s32, 1
    s_cbranch_scc1 K2_MERGED{tag}
    v_cmp_gt_u32 vcc, 72, v141
    s_mov_b64 exec, vcc
    v_mov_b32 v74, {L_MISC+16}
    ds_read_b128 v[80:83], v74
    ds_read_b128 v[84:87], v74 offset:16
    ds_read_b128 v[88:91], v74 offset:32
    v_lshlrev_b32 v75, 2, v141
    v_add_u32 v75, {L_MACC}, v75
    v_mov_b32 v76, 0
    """)
    for w in range(1,K2_WAVES):
        a(f"ds_read_b32 v{92+w}, v75 offset:{(97+w)*MACC_STRIDE}")
    a("s_waitcnt lgkmcnt(0)")
    for w in range(1,K2_WAVES):
        a(f"""
        v_max_u32 v77, 1, v{80+w}
        v_mul_u32_u24 v77, {MACC_STRIDE}, v77
        v_add_u32 v77, v77, v75
        v_subrev_u32 v77, {MACC_STRIDE}, v77
        ds_read_b32 v78, v77
        ds_write_b32 v75, v76 offset:{(97+w)*MACC_STRIDE}
        s_waitcnt lgkmcnt(0)
        v_add_f32 v78, v78, v{92+w}
        ds_write_b32 v77, v78
        """)
    a(f"""
    s_waitcnt lgkmcnt(0)
    s_mov_b64 exec, -1
    K2_MERGED{tag}:
    """)

def dma_consts(a, vl, t):
    a(f"""
    v_and_b32 v{t}, 7, v{vl}
    v_lshrrev_b32 v{t+1}, 4, v{vl}
    v_xor_b32 v{t}, v{t}, v{t+1}
    v_lshlrev_b32 v{vIP+1}, 4, v{t}
    v_lshlrev_b32 v{vIP+5}, 4, v{t}
    v_xor_b32 v{vIP+3}, 64, v{vIP+1}
    v_xor_b32 v{vIP+7}, 64, v{vIP+1}
    v_and_b32 v{t}, 31, v{vl}
    v_lshrrev_b32 v{t+1}, 5, v{vl}
    v_bfe_u32 v{t+2}, v{t}, 1, 3
    v_lshlrev_b32 v{t+1}, 2, v{t+1}
    v_xor_b32 v{t+1}, v{t+1}, v{t+2}
    v_lshlrev_b32 v{t+1}, 4, v{t+1}
    v_lshl_add_u32 v{t+1}, v{t}, 7, v{t+1}
    v_add_u32 v{vHR}, s43, v{t+1}
    v_xor_b32 v{vHR+1}, 16, v{vHR}
    v_xor_b32 v{vHR+2}, 32, v{vHR}
    v_xor_b32 v{vHR+3}, 48, v{vHR}
    """)

def gen_k2(name):
    global dma, h_reads, unwrite, st_reads, xa_build, mfma, src_reads
    a = Asm()
    REC, HA = 42, 114
    TID, LANE, QL, C1, S1, C2, S2 = 132, 133, 134, 135, 136, 137, 138
    X0 = 150
    AH, AW, AD = 2, 18, 142
    a(f"""
    s_cmp_ge_u32 s2, {K2_GRID}
    s_cbranch_scc1 K2_EXIT
    s_load_dwordx4 s[4:7], s[0:1], 0
    s_load_dwordx2 s[8:9], s[0:1], 48
    s_load_dwordx2 s[10:11], s[0:1], 64
    s_load_dwordx2 s[12:13], s[0:1], 80
    s_and_b32 s3, s2, 7
    s_lshl_b32 s3, s3, 5
    s_lshr_b32 s14, s2, 3
    s_add_u32 s3, s3, s14
    s_mul_i32 s33, s3, {BN}
    v_lshrrev_b32 v1, 6, v0
    s_nop 0
    v_readfirstlane_b32 s32, v1
    s_mov_b32 s48, -1
    s_mov_b32 s49, 0
    s_mov_b32 s50, 0
    s_mov_b32 s51, -1
    s_mov_b32 s52, 0x11111111
    s_mov_b32 s53, 0x11111111
    s_not_b64 s[54:55], s[52:53]
    s_mov_b32 s46, 0xbfb8aa3b
    s_mov_b32 s47, 0xbfb8aa3b
    s_mov_b32 s62, {ATAB_STRIDE}
    s_mov_b32 s63, {MACC_STRIDE}
    s_lshl_b32 s43, s32, 12
    s_add_u32 s43, s43, {L_HBUF}
    s_mov_b32 s56, 0
    s_mov_b32 s57, {RFAST}
    s_waitcnt lgkmcnt(0)
    s_mov_b32 s16, s4
    s_or_b32 s17, s5, {128<<16}
    s_mov_b32 s18, {N}
    s_mov_b32 s19, 0x00020000
    s_mov_b32 s20, s12
    s_mov_b32 s21, s13
    s_mov_b32 s22, 0x1200000
    s_mov_b32 s23, 0x00020000
    s_add_u32 s24, s12, {WS_POSF}
    s_addc_u32 s25, s13, 0
    s_or_b32 s25, s25, {16<<16}
    s_mov_b32 s26, {N}
    s_mov_b32 s27, 0x00020000
    s_mov_b32 s28, s8
    s_mov_b32 s29, s9
    s_mov_b32 s30, 128
    s_mov_b32 s31, 0x00020000
    s_mov_b32 s9, 0
    """)
    if DIAG:
        a(f"""
        s_lshl_b32 s15, s2, 10
        s_lshl_b32 s14, s32, 6
        s_add_u32 s15, s15, s14
        s_add_u32 s15, s15, {WS_STAMP + 0x50000}
        """)
    st_rt(a, 0); st(a, 1)
    a("K2_ROUND:")
    lane_id(a, LANE)
    a(f"""
    s_lshl_b32 s59, s32, 6
    v_add_u32 v{TID}, s59, v{LANE}
    v_lshrrev_b32 v{X0}, 2, v{TID}
    v_and_b32 v{QL}, 3, v{TID}
    v_mul_u32_u24 v{X0+1}, {TAB_STRIDE}, v{X0}
    s_lshl_b32 s14, s3, 2
    s_add_u32 s14, s14, {WS_TAB}
    s_add_u32 s59, s14, {NQ*TAB_STRIDE}
    v_cmp_gt_u32 vcc, {4*(P-NQ)}, v{TID}
    s_mov_b64 s[44:45], vcc
    buffer_load_dwordx2 v[162:163], v{X0+1}, s[20:23], s14 offen
    s_mov_b64 exec, s[44:45]
    buffer_load_dwordx2 v[164:165], v{X0+1}, s[20:23], s59 offen
    s_mov_b64 exec, -1
    v_mul_u32_u24 v{S1}, {CH}, v{X0}
    v_mov_b32 v44, -1
    v_mov_b32 v45, -1
    v_mov_b32 v46, -1
    v_mov_b32 v47, -1
    v_lshlrev_b32 v48, 4, v{TID}
    ds_write_b128 v48, v[44:47] offset:{L_META}
    v_cmp_gt_u32 vcc, {CAP*4//16-K2_THREADS}, v{TID}
    s_mov_b64 exec, vcc
    ds_write_b128 v48, v[44:47] offset:{L_META+K2_THREADS*16}
    s_mov_b64 exec, -1
    v_mov_b32 v44, 0
    v_mov_b32 v45, 0
    v_mov_b32 v46, 0
    v_mov_b32 v47, 0
    v_cmp_gt_u32 vcc, 36, v{TID}
    s_mov_b64 exec, vcc
    ds_write_b128 v48, v[44:47] offset:{L_HIST}
    s_mov_b64 exec, -1
    s_mov_b32 s39, 0
    s_cmp_lg_u32 s56, 0
    s_cbranch_scc1 K2_NOINIT
    s_cmp_lg_u32 s57, {RFAST}
    s_cbranch_scc1 K2_NOINIT
    s_mov_b32 s39, 1
    v_add_u32 v49, {ZERO_BEG}, v48
    """)
    nz = ZERO_N16 // K2_THREADS
    for r in range(nz):
        a(f"ds_write_b128 v49, v[44:47] offset:{r*K2_THREADS*16}")
    a(f"""
    v_cmp_gt_u32 vcc, {ZERO_N16-nz*K2_THREADS}, v{TID}
    s_mov_b64 exec, vcc
    ds_write_b128 v49, v[44:47] offset:{nz*K2_THREADS*16}
    s_mov_b64 exec, -1
    v_lshrrev_b32 v54, 1, v{TID}
    v_and_b32 v55, 1, v{TID}
    v_lshrrev_b32 v56, 2, v54
    v_and_b32 v57, 3, v54
    v_lshlrev_b32 v57, 4, v57
    v_mov_b32 v58, 0x3f80
    v_mov_b32 v59, 0
    v_lshlrev_b64 v[58:59], v57, v[58:59]
    v_cmp_eq_u32 vcc, v56, v55
    s_nop 1
    v_cndmask_b32 v58, 0, v58, vcc
    v_cndmask_b32 v59, 0, v59, vcc
    v_lshlrev_b32 v60, 3, v{TID}
    v_cmp_gt_u32 vcc, 16, v{TID}
    s_mov_b64 exec, vcc
    ds_write_b64 v60, v[58:59] offset:{L_OHT}
    s_mov_b64 exec, -1
    K2_NOINIT:
    """)
    dma_consts(a, LANE, X0+2)
    a(f"""
    v_mov_b32 v139, 1
    s_waitcnt lgkmcnt(0)
    s_barrier
    s_waitcnt vmcnt(0)
    """)
    st(a, 2)
    a(f"""
    v_and_b32 v{C1}, 0xffff, v162
    v_and_b32 v162, 0xffff, v163
    v_and_b32 v{C2}, 0xffff, v164
    v_and_b32 v164, 0xffff, v165
    v_add_u32 v{S2}, {NQ*CH}, v{S1}
    v_add_u32 v{S1}, v{S1}, v{C1}
    v_add_u32 v{S2}, v{S2}, v{C2}
    v_sub_u32 v{C1}, v162, v{C1}
    v_sub_u32 v{C2}, v164, v{C2}
    v_cndmask_b32 v{C2}, 0, v{C2}, s[44:45]
    """)
    for g, (vc, vs) in enumerate(((C1,S1),(C2,S2))):
        a(f"""
        v_subrev_u32 v162, s56, v{vc}
        v_min_i32 v162, s57, v162
        v_sub_u32 v162, v162, v{QL}
        v_add3_u32 v{164+g}, v{vs}, v{QL}, s56
        v_mul_u32_u24 v{164+g}, 12, v{164+g}
        """)
        for k in range(KS):
            a(f"v_cmp_lt_i32 s[{SM+2*(g*KS+k)}:{SM+1+2*(g*KS+k)}], {4*k}, v162")
        for k in range(KS):
            n = g*KS+k
            a(f"s_mov_b64 exec, s[{SM+2*n}:{SM+1+2*n}]")
            if k >= 3 or g: a(f"s_cbranch_execz K2_SKL{g}")
            a(f"buffer_load_dwordx3 {rr(REC+4*n,3)}, v{164+g}, s[20:23], 0 offen offset:{48*k}")
        a(f"K2_SKL{g}:\ns_mov_b64 exec, -1")
    a(f"""
    v_mov_b32 v163, {L_MISC}
    v_max_u32 v162, v{C1}, v{C2}
    ds_max_u32 v163, v162
    s_cmp_eq_u32 s39, 0
    s_cbranch_scc1 K2_NOLD
    v_lshlrev_b32 v{X0+2}, 4, v{LANE}
    s_lshl_b32 s59, s32, 10
    s_add_u32 m0, s59, {L_HBUF+8*4096}
    s_add_u32 s14, s59, {WS_WIMG}
    buffer_load_dwordx4 v{X0+2}, s[20:23], s14 offen lds
    s_min_u32 s60, s32, 4
    s_lshl_b32 s59, s60, 10
    s_add_u32 s61, s59, {L_HBUF+8*4096+12288}
    s_add_u32 s14, s59, {WS_WIMG+12288}
    s_cmp_eq_u32 s60, 4
    s_cselect_b32 s14, {WS_WIMG+32*1024}, s14
    s_cselect_b32 m0, {L_HBUF+4096}, s61
    s_nop 0
    buffer_load_dwordx4 v{X0+2}, s[20:23], s14 offen lds
    s_cmp_gt_u32 s32, 7
    s_cselect_b32 s61, 4, 0
    s_sub_u32 s61, s32, s61
    s_lshl_b32 s59, s61, 4
    s_add_u32 s59, s59, s33
    v_lshrrev_b32 v{vIP}, 3, v{LANE}
    v_add_u32 v{vIP}, s59, v{vIP}
    v_add_u32 v{vIP+2}, 8, v{vIP}
    s_lshr_b32 s59, s61, 1
    s_lshl_b32 s59, s59, 13
    s_and_b32 s60, s61, 1
    s_lshl_b32 s60, s60, 11
    s_add_u32 s59, s59, s60
    s_add_u32 m0, s59, {L_HBUF}
    s_nop 0
    buffer_load_dwordx4 {rr(vIP,2)}, s[16:19], 0 idxen offen lds
    s_add_u32 m0, s59, {L_HBUF+1024}
    s_nop 0
    buffer_load_dwordx4 {rr(vIP+2,2)}, s[16:19], 0 idxen offen lds
    v_lshlrev_b32 v{X0+2}, 1, v{LANE}
    buffer_load_ushort v166, v{X0+2}, s[28:31], 0 offen
    v_add_u32 v{X0+2}, s33, v{TID}
    buffer_load_dwordx4 v[34:37], v{X0+2}, s[24:27], 0 idxen
    s_waitcnt vmcnt(6)
    s_branch K2_RECOK
    K2_NOLD:
    s_waitcnt vmcnt(0)
    K2_RECOK:
    """)
    st(a, 3)
    st(a, 4)
    for n in range(NK):
        a(f"s_mov_b64 exec, s[{SM+2*n}:{SM+1+2*n}]")
        if n % KS >= 3 or n >= KS: a(f"s_cbranch_execz K2_SKA{n//KS}")
        a(f"""
        v_lshrrev_b32 v{HA+n}, 18, v{REC+4*n+2}
        ds_add_rtn_u32 v{REC+4*n+3}, v{HA+n}, v139 offset:{L_HIST}
        """)
        if n % KS == KS-1: a(f"K2_SKA{n//KS}:")
    a(f"""
    s_mov_b64 exec, -1
    s_waitcnt vmcnt(0) lgkmcnt(0)
    s_barrier
    """)
    st(a, 5)
    a(f"""
    v_lshlrev_b32 v150, 3, v{LANE}
    ds_read_b64 v[152:153], v150 offset:{L_HIST}
    ds_read_b32 v154, v163
    s_waitcnt lgkmcnt(0)
    v_readfirstlane_b32 s58, v154
    v_add_u32 v155, v152, v153
    s_mov_b32 s61, 0
    K2_SCAN:
    v_mov_b32 v156, v155
    s_nop 1
    v_add_u32_dpp v156, v156, v156 row_shr:1 row_mask:0xf bank_mask:0xf
    s_nop 1
    v_add_u32_dpp v156, v156, v156 row_shr:2 row_mask:0xf bank_mask:0xf
    s_nop 1
    v_add_u32_dpp v156, v156, v156 row_shr:4 row_mask:0xf bank_mask:0xf
    s_nop 1
    v_add_u32_dpp v156, v156, v156 row_shr:8 row_mask:0xf bank_mask:0xf
    s_nop 1
    v_add_u32_dpp v156, v156, v156 row_bcast:15 row_mask:0xa bank_mask:0xf
    s_nop 1
    v_add_u32_dpp v156, v156, v156 row_bcast:31 row_mask:0xc bank_mask:0xf
    s_nop 1
    v_readlane_b32 s34, v156, 63
    s_cmp_lg_u32 s57, {RFAST}
    s_cbranch_scc1 K2_CAPOK
    s_cmp_gt_u32 s58, {RFAST}
    s_cbranch_scc1 K2_TOSLOW
    s_cmp_gt_u32 s34, {CAP}
    s_cbranch_scc0 K2_CAPOK
    K2_TOSLOW:
    s_mov_b32 s57, {RSLOW}
    s_barrier
    s_branch K2_ROUND
    K2_CAPOK:
    s_cmp_lg_u32 s61, 0
    s_cbranch_scc1 K2_SCANDONE
    v_mov_b32 v157, v155
    s_nop 1
    v_add_u32_dpp v157, v155, v155 quad_perm:[1,0,3,2] row_mask:0xf bank_mask:0xf
    v_cmp_gt_u32 vcc, 31, v157
    v_cmp_gt_u32 s[44:45], s34, v156
    s_and_b64 vcc, vcc, s[44:45]
    s_mov_b32 s44, 0xaaaaaaaa
    s_mov_b32 s45, 0xaaaaaaaa
    s_and_b64 vcc, vcc, s[44:45]
    s_cbranch_vccz K2_SCANDONE
    v_mov_b32 v151, v157
    s_nop 1
    v_add_u32_dpp v151, v157, v157 quad_perm:[2,3,0,1] row_mask:0xf bank_mask:0xf
    v_sub_u32 v151, 0, v151
    v_and_b32 v151, 31, v151
    s_mov_b32 s44, 0x88888888
    s_mov_b32 s45, 0x88888888
    v_cndmask_b32 v151, 0, v151, s[44:45]
    v_add_u32 v155, v155, v151
    s_mov_b32 s61, 1
    s_branch K2_SCAN
    K2_SCANDONE:
    v_sub_u32 v156, v156, v155
    v_add_u32 v157, v156, v152
    ds_write_b64 v150, v[156:157] offset:{L_PREF}
    """)
    for n in range(NK):
        a(f"s_mov_b64 exec, s[{SM+2*n}:{SM+1+2*n}]")
        if n % KS >= 3 or n >= KS: a(f"s_cbranch_execz K2_SKB{n//KS}")
        a(f"ds_read_b32 v{HA+n}, v{HA+n} offset:{L_PREF}")
        if n % KS == KS-1: a(f"K2_SKB{n//KS}:")
    a("s_waitcnt lgkmcnt(0)")
    st(a, 6)
    for n in range(NK):
        a(f"s_mov_b64 exec, s[{SM+2*n}:{SM+1+2*n}]")
        if n % KS >= 3 or n >= KS: a(f"s_cbranch_execz K2_SKC{n//KS}")
        a(f"""
        v_add_lshl_u32 v{HA+n}, v{HA+n}, v{REC+4*n+3}, 2
        ds_write_b32 v{HA+n}, v{REC+4*n+2} offset:{L_META}
        v_lshlrev_b32 v{HA+n}, 1, v{HA+n}
        ds_write_b64 v{HA+n}, {rr(REC+4*n,2)} offset:{L_REC}
        """)
        if n % KS == KS-1: a(f"K2_SKC{n//KS}:")
    a(f"""
    s_mov_b64 exec, -1
    s_cmp_lg_u32 s9, 0
    s_cbranch_scc1 K2_NOATAB
    s_mov_b32 s9, 1
    v_lshlrev_b32 v162, 4, v{TID}
    v_cmp_gt_u32 vcc, 104, v{TID}
    s_mov_b64 exec, vcc
    ds_write_b128 v162, v[34:37] offset:{L_PDT}
    s_mov_b64 exec, -1
    s_cmp_lg_u32 s32, 8
    s_cbranch_scc1 K2_NOWXF
    v_lshlrev_b32 v166, 16, v166
    v_mul_f32 v166, 0xbf317218, v166
    v_lshlrev_b32 v167, 2, v{LANE}
    ds_write_b32 v167, v166 offset:{L_WXF}
    K2_NOWXF:
    v_lshlrev_b32 v167, 4, v{LANE}
    v_add_u32 v167, {L_HBUF+8*4096}, v167
    s_cmp_gt_u32 s32, 7
    s_cbranch_scc1 K2_ATABEND
    s_and_b32 s60, s32, 1
    s_lshl_b32 s59, s60, 12
    v_subrev_u32 v162, s59, v{vHR}
    v_xor_b32 v164, 16, v162
    v_xor_b32 v165, 32, v162
    v_xor_b32 v166, 48, v162
    ds_read_b128 {rr(AH,4)}, v162
    ds_read_b128 {rr(AH+4,4)}, v164
    ds_read_b128 {rr(AH+8,4)}, v165
    ds_read_b128 {rr(AH+12,4)}, v166
    v_add_u32 v162, s59, v167
    """)
    for s_ in range(4):
        a(f"ds_read_b128 {rr(AW+4*s_,4)}, v162 offset:{8192+1024*s_}")
    a(f"""
    v_and_b32 v164, 31, v{LANE}
    v_lshrrev_b32 v165, 5, v{LANE}
    v_mul_u32_u24 v164, {ATAB_STRIDE}, v164
    v_lshl_add_u32 v164, v165, 3, v164
    s_lshr_b32 s59, s32, 1
    s_mul_i32 s60, s60, {32*ATAB_STRIDE}
    s_lshl_b32 s61, s59, 6
    s_add_u32 s61, s61, s60
    s_add_u32 s61, s61, {L_ATAB}
    v_add_u32 v164, s61, v164
    s_waitcnt lgkmcnt(0)
    """)
    a(mfma(AD, AH, AW, None))
    for s_ in range(1,4): a(mfma(AD, AH+4*s_, AW+4*s_, AD))
    a("s_nop 7\ns_nop 3")
    for j in range(4):
        a(f"""
        v_pk_mul_f32 {rr(AD+4*j,2)}, {rr(AD+4*j,2)}, s[46:47]
        v_pk_mul_f32 {rr(AD+4*j+2,2)}, {rr(AD+4*j+2,2)}, s[46:47]
        v_cvt_pk_bf16_f32 v{AD+4*j}, v{AD+4*j}, v{AD+1+4*j}
        v_cvt_pk_bf16_f32 v{AD+1+4*j}, v{AD+2+4*j}, v{AD+3+4*j}
        ds_write_b64 v164, {rr(AD+4*j,2)} offset:{16*j}
        """)
        if j == 0: a("s_cmp_eq_u32 s59, 3\ns_cbranch_scc1 K2_ATABEND")
    a("K2_ATABEND:")
    for o in range(8):
        a(f"ds_read_b128 {rr(vW2+4*o,4)}, v167 offset:{1024*o}")
    a(f"""
    v_lshlrev_b32 v162, 3, v{LANE}
    v_add_u32 v162, {L_HBUF+4096}, v162
    ds_read_b64 {rr(vWX,2)}, v162
    ds_read_b64 {rr(vWX+4,2)}, v162 offset:512
    K2_NOATAB:
    s_add_u32 s59, s34, 31
    s_lshr_b32 s59, s59, 5
    s_lshr_b32 s60, s32, 2
    s_and_b32 s61, s32, 3
    s_cmp_eq_u32 s60, 0
    s_cselect_b32 s35, 0, {4*WA}
    s_cselect_b32 s36, {WA}, {WB}
    s_cmp_eq_u32 s60, 2
    s_cselect_b32 s35, {4*WA+4*WB}, s35
    s_cselect_b32 s36, {WC}, s36
    s_mul_i32 s61, s61, s36
    s_add_u32 s35, s35, s61
    s_add_u32 s36, s36, s35
    s_mul_i32 s35, s35, s59
    s_mul_i32 s36, s36, s59
    s_lshr_b32 s35, s35, 8
    s_lshr_b32 s36, s36, 8
    s_cmp_eq_u32 s60, 0
    s_cbranch_scc0 K2_P1
    s_setprio 2
    K2_P1:
    s_cmp_eq_u32 s60, 1
    s_cbranch_scc0 K2_P2
    s_setprio 1
    K2_P2:
    s_lshl_b32 s68, s35, 5
    s_lshl_b32 s69, s36, 5
    s_min_u32 s69, s69, s34
    """)
    dma_consts(a, LANE, 44)
    a(f"""
    v_and_b32 v44, 31, v{LANE}
    v_lshrrev_b32 v45, 5, v{LANE}
    s_lshl_b32 s59, s35, 7
    v_lshl_add_u32 v{vMA}, v44, 2, s59
    v_lshrrev_b32 v46, 3, v{LANE}
    v_lshl_add_u32 v{vMS}, v46, 2, s59
    v_lshlrev_b32 v{vOHB}, 3, v45
    v_add_u32 v{vOHB}, {L_OHT}, v{vOHB}
    s_lshl_b32 s59, s32, 11
    s_add_u32 s59, s59, {L_STG}
    v_lshl_add_u32 v{vSGB}, v44, 6, s59
    v_bfe_u32 v46, v{LANE}, 2, 2
    v_lshl_add_u32 v46, v45, 2, v46
    v_lshlrev_b32 v{vSR}, 6, v46
    v_bfe_u32 v46, v{LANE}, 4, 1
    v_lshl_add_u32 v{vSR}, v46, 5, v{vSR}
    v_and_b32 v46, 3, v{LANE}
    v_lshl_add_u32 v{vSR}, v46, 3, v{vSR}
    v_add_u32 v{vSR}, s59, v{vSR}
    v_mov_b32 v{vZ}, 0
    s_mov_b32 s37, 0
    s_waitcnt lgkmcnt(0)
    s_barrier
    """)
    st(a, 7)
    a(f"""
    s_cmp_ge_u32 s35, s36
    s_cbranch_scc1 K2_MAINDONE
    """)
    if 'eatest' in ABL:
        a(f"""
        s_load_dwordx2 s[76:77], s[0:1], 16
        s_waitcnt lgkmcnt(0)
        s_or_b32 s77, s77, {256<<16}
        s_mov_b32 s78, {N}
        s_mov_b32 s79, 0x00020000
        """)
    for l in src_reads(0) + dl_read(): a(l)
    a("s_mov_b32 s73, 1\ns_mov_b32 s74, 1")
    for r in range(vD+16, vD+24, 2): a(f"v_mov_b64 {rr(r,2)}, 0")
    for r in range(vST, vST+8, 2): a(f"v_mov_b64 {rr(r,2)}, 0")
    for r in range(vXA, vXA+4, 2): a(f"v_mov_b64 {rr(r,2)}, 0")
    a(f"""
    s_waitcnt lgkmcnt(0)
    v_readfirstlane_b32 s70, v{vDL}
    v_cmp_ne_u32 vcc, 0xffff, v{vDL}
    s_mov_b64 s[44:45], vcc
    s_lshr_b32 s70, s70, 4
    s_lshl_b32 s59, s32, 2
    v_mov_b32 v{vT}, s59
    s_add_u32 s60, s70, 1
    v_mov_b32 v{vT+1}, s60
    ds_write_b32 v{vT}, v{vT+1} offset:{L_MISC+16}
    """)
    for l in dma() + ps_load() + src_reads(0) + pd_read(): a(l)
    a("s_and_b32 s59, s70, -2")
    rebase(a)
    wx_reload(a)
    a(f"s_waitcnt vmcnt({0})")
    for l in h_reads(): a(l)
    for l in xa_build(-128): a(l)
    a("s_waitcnt lgkmcnt(0)")
    for l in dma() + ps_load() + src_reads(128) + dl_read(): a(l)
    a("s_mov_b32 s39, 0")
    a(mfma(vD, vXA, vWX, None))
    for s_ in range(4): a(mfma(vD, vH+4*s_, vW2+4*s_, vD))
    a("s_nop 7\ns_nop 3")
    st(a, 8)
    a("K2_LOOP:")
    a(f"""
    s_waitcnt lgkmcnt(0)
    v_cmp_ne_u32 vcc, 0xffff, v{vDL}
    s_mov_b32 s42, 0
    s_add_u32 s59, s35, 1
    s_cmp_ge_u32 s59, s36
    s_cselect_b64 s[44:45], 0, vcc
    s_cbranch_scc1 K2_NOREBASE
    s_add_u32 s59, s59, 1
    s_lshl_b32 s59, s59, 5
    s_min_u32 s59, s59, s34
    s_cmp_le_u32 s59, s38
    s_cbranch_scc1 K2_NOREBASE
    s_mov_b32 s71, s37
    v_readfirstlane_b32 s59, v{vDL}
    s_mov_b32 s42, 1
    s_lshr_b32 s59, s59, 4
    s_and_b32 s59, s59, -2
    """)
    rebase(a)
    a("K2_NOREBASE:")
    for l in pd_read(): a(l)
    D0, D1 = vD, vD+16
    _sv = (dma, h_reads, unwrite, st_reads, xa_build, mfma, src_reads)
    if 'nodma' in ABL: dma = lambda: []
    if 'nohr' in ABL: h_reads = lambda dst=vH: []
    if 'nost' in ABL: st_reads = lambda: []; unwrite = lambda: []
    if 'noxa' in ABL: xa_build = lambda e: []
    if 'nomfma' in ABL: mfma = lambda *x: "s_nop 0"
    if 'nometa' in ABL: src_reads = lambda e=0: []
    slotsA = [
        mfma_z("s74", "A", vACC+16, D1, vST),
        [mfma(vACC+16, D1+4, vST+4, vACC+16)] + st_reads() + unwrite(),
        [mfma(D1, vH, vW2+16, None)],
        [mfma(D1, vH+4, vW2+20, D1)],
        [mfma(D1, vH+8, vW2+24, D1)],
        [mfma(D1, vH+12, vW2+28, D1), "s_waitcnt vmcnt(0)"] + h_reads(),
        [mfma(D1, vXA, vWX+4, D1)] + xa_build(-128),
        [],
    ]
    elementwise(a, 0, slotsA)
    a("""
    s_cmp_eq_u32 s39, 0
    s_cbranch_scc1 K2_NOFLUSH
    """)
    if 'noflush' not in ABL: flush(a, "s72")
    a("s_mov_b32 s73, 1\ns_mov_b32 s74, 1")
    a("""
    K2_NOFLUSH:
    s_mov_b32 s39, s42
    s_mov_b32 s72, s71
    s_cmp_eq_u32 s42, 0
    s_cbranch_scc1 K2_NOWX
    """)
    wx_reload(a)
    a("K2_NOWX:")
    slotsB = [
        ["s_waitcnt lgkmcnt(0)"] + mfma_z("s73", "B", vACC, D0, vST) + dma() + ps_load(),
        [mfma(vACC, D0+4, vST+4, vACC)] + src_reads(128) + dl_read(),
        [mfma(D0, vXA, vWX, None)],
        [mfma(D0, vH, vW2, D0)],
        [mfma(D0, vH+4, vW2+4, D0)],
        [mfma(D0, vH+8, vW2+8, D0)],
        [mfma(D0, vH+12, vW2+12, D0)],
        [],
    ]
    elementwise(a, 1, slotsB)
    dma, h_reads, unwrite, st_reads, xa_build, mfma, src_reads = _sv
    a("""
    s_add_u32 s35, s35, 1
    s_cmp_lt_u32 s35, s36
    s_cbranch_scc1 K2_LOOP
    """)
    for l in mfma_z("s74", "C", vACC+16, D1, vST): a(l)
    a(mfma(vACC+16, D1+4, vST+4, vACC+16))
    a("s_nop 7\ns_nop 3")
    flush(a, "s37")
    a(f"""
    K2_MAINDONE:
    s_waitcnt vmcnt(0) lgkmcnt(0)
    """)
    st(a, 9)
    lane_id(a, 140)
    a(f"""
    s_lshl_b32 s59, s32, 6
    v_add_u32 v141, s59, v140
    s_add_u32 s56, s56, s57
    s_cmp_lt_u32 s56, s58
    s_cbranch_scc0 K2_EPI
    s_barrier
    """)
    merge(a, "A")
    a(f"""
    s_barrier
    s_branch K2_ROUND
    K2_EPI:
    """)
    vWH, vRES = 2, 34
    a(f"""
    s_cmp_gt_u32 s32, 7
    s_cbranch_scc1 K2_EPI_POS
    s_lshr_b32 s59, s32, 1
    s_lshl_b32 s59, s59, 5
    s_add_u32 s59, s59, s33
    v_lshrrev_b32 v{vIP}, 3, v140
    v_add_u32 v{vIP}, s59, v{vIP}
    v_add_u32 v{vIP+2}, 8, v{vIP}
    v_add_u32 v{vIP+4}, 16, v{vIP}
    v_add_u32 v{vIP+6}, 24, v{vIP}
    """)
    for l in dma(): a(l)
    a(f"""
    s_lshr_b32 s59, s32, 1
    s_and_b32 s60, s32, 1
    v_lshlrev_b32 v44, 4, v140
    s_lshl_b32 s14, s60, 13
    s_add_u32 s14, s14, {WS_WIMG+16*1024}
    s_add_u32 s61, s14, 4096
    """)
    for s_ in range(8):
        a(f"buffer_load_dwordx4 {rr(vWH+4*s_,4)}, v44, s[20:23], {'s14' if s_<4 else 's61'} offen offset:{1024*(s_%4)}")
    a(f"""
    s_mov_b32 s24, s10
    s_mov_b32 s25, s11
    s_mov_b32 s26, {N*128}
    s_mov_b32 s27, 0x00020000
    v_and_b32 v48, 31, v140
    v_lshrrev_b32 v49, 5, v140
    s_lshl_b32 s61, s59, 5
    v_add_u32 v50, s61, v48
    v_min_u32 v53, {NROWS-1}, v50
    v_mul_u32_u24 v53, {MACC_STRIDE}, v53
    v_lshl_add_u32 v53, v49, 7, v53
    v_add_u32 v53, {L_MACC}, v53
    v_bfe_u32 v54, v48, 1, 3
    s_lshl_b32 s61, s60, 2
    v_xor_b32 v54, s61, v54
    v_lshlrev_b32 v54, 4, v54
    v_lshl_add_u32 v54, v48, 7, v54
    v_lshl_add_u32 v54, v49, 3, v54
    v_add_u32 v54, s43, v54
    v_xor_b32 v55, 16, v54
    v_xor_b32 v59, 32, v54
    v_xor_b32 v60, 48, v54
    v_add_u32 v61, s33, v50
    v_lshlrev_b32 v61, 7, v61
    v_lshl_add_u32 v61, v49, 3, v61
    s_lshl_b32 s61, s60, 6
    v_add_u32 v61, s61, v61
    s_barrier
    """)
    merge(a, "B")
    a("s_barrier")
    st(a, 10)
    for s_ in range(4):
        a(f"ds_read_b128 {rr(74+8*s_,4)}, v53 offset:{32*s_}\nds_read_b128 {rr(78+8*s_,4)}, v53 offset:{32*s_+16}")
    a(f"s_waitcnt vmcnt({8})" if not DIAG else "s_waitcnt vmcnt(0)")
    for l in h_reads(): a(l)
    a(f"""
    ds_read_b64 {rr(vRES,2)}, v54
    ds_read_b64 {rr(vRES+2,2)}, v55
    ds_read_b64 {rr(vRES+4,2)}, v59
    ds_read_b64 {rr(vRES+6,2)}, v60
    s_waitcnt lgkmcnt(8)
    """)
    a("s_mov_b32 s64, 0xbf317218\ns_mov_b32 s65, 0xbf317218")
    for s_ in range(4):
        for i in range(4):
            a(f"v_pk_mul_f32 {rr(74+8*s_+2*i,2)}, {rr(74+8*s_+2*i,2)}, s[64:65]")
            a(f"v_cvt_pk_bf16_f32 v{122+4*s_+i}, v{74+8*s_+2*i}, v{75+8*s_+2*i}")
    a("s_waitcnt vmcnt(0) lgkmcnt(0)")
    a(mfma(74, vWH, vH, None))
    for s_ in range(1,4): a(mfma(74, vWH+4*s_, vH+4*s_, 74))
    for s_ in range(4): a(mfma(74, vWH+16+4*s_, 122+4*s_, 74))
    a(f"""
    v_cmp_gt_u32 vcc, {BN}, v50
    s_nop 7
    s_nop 3
    """)
    for r in range(0,16,2):
        a(f"""
        v_pk_mul_f32 v[92:93], {rr(74+r,2)}, s[46:47]
        v_exp_f32 v92, v92
        v_exp_f32 v93, v93
        s_nop 0
        v_pk_add_f32 v[92:93], v[92:93], 1.0 op_sel_hi:[1,0]
        v_rcp_f32 v92, v92
        v_rcp_f32 v93, v93
        s_nop 0
        v_pk_mul_f32 {rr(74+r,2)}, {rr(74+r,2)}, v[92:93]
        """)
    for j in range(4):
        for hh in range(2):
            src = vRES+2*j+hh
            a(f"""
            v_lshlrev_b32 v92, 16, v{src}
            v_and_b32 v93, 0xffff0000, v{src}
            v_add_f32 v92, v92, v{74+4*j+2*hh}
            v_add_f32 v93, v93, v{75+4*j+2*hh}
            v_cvt_pk_bf16_f32 v{96+2*j+hh}, v92, v93
            """)
    a("s_mov_b64 exec, vcc")
    for j in range(4):
        a(f"buffer_store_dwordx2 {rr(96+2*j,2)}, v61, s[24:27], 0 offen offset:{16*j}")
    if DIAG: a("s_waitcnt vmcnt(0)\ns_mov_b64 exec, -1")
    st(a, 11); st_rt(a, 12)
    a(f"""
    s_endpgm
    K2_EPI_POS:
    v_subrev_u32 v50, 512, v141
    v_lshlrev_b32 v52, 4, v50
    v_add_u32 v51, s33, v50
    v_mul_u32_u24 v51, 6, v51
    v_min_u32 v53, {NROWS-1}, v50
    v_mul_u32_u24 v53, {MACC_STRIDE}, v53
    v_add_u32 v53, {L_MACC}, v53
    s_add_u32 s28, s10, {N*128}
    s_addc_u32 s29, s11, 0
    s_mov_b32 s30, {N*6}
    s_barrier
    """)
    merge(a, "C")
    a(f"""
    s_barrier
    v_cmp_gt_u32 vcc, {BN}, v50
    s_mov_b64 exec, vcc
    s_cbranch_execz K2_EXIT
    ds_read_b128 v[44:47], v53 offset:256
    ds_read_b128 v[56:59], v53 offset:272
    ds_read_b128 v[60:63], v52 offset:{L_PDT}
    s_waitcnt lgkmcnt(0)
    v_add_f32 v45, v45, v57
    v_add_f32 v46, v46, v58
    v_add_f32 v47, v47, v59
    v_add_f32 v60, v60, v45
    v_add_f32 v61, v61, v46
    v_add_f32 v62, v62, v47
    v_cvt_pk_bf16_f32 v60, v60, v61
    v_cvt_pk_bf16_f32 v62, v62, v62
    buffer_store_short v60, v51, s[28:31], 0 offen
    buffer_store_short_d16_hi v60, v51, s[28:31], 0 offen offset:2
    buffer_store_short v62, v51, s[28:31], 0 offen offset:4
    K2_EXIT:
    s_endpgm
    """)
    return a.text()
```

```python
import sys, os
from common import *
import k1, k2
ref = open('standalone__cheap_equivariant_egnn__graph.s.ref').read()
head = [l for l in ref.split('\n') if l.startswith(';') and '@launch' not in l and 'Override' not in l and 'grid=ceil' not in l]
def kd(name, vg, sg):
    return f""".amdhsa_kernel {name}
  .amdhsa_next_free_vgpr {vg}
  .amdhsa_next_free_sgpr {sg}
  .amdhsa_accum_offset {(vg+3)//4*4}
  .amdhsa_group_segment_fixed_size 0
  .amdhsa_kernarg_size 88
  .amdhsa_user_sgpr_count 2
  .amdhsa_user_sgpr_kernarg_segment_ptr 1
  .amdhsa_system_sgpr_workgroup_id_x 1
.end_amdhsa_kernel
"""
n1, n2 = "egnn_part_kernel", "egnn_main_kernel"
s = "\n".join(head) + "\n"
s += f"; @launch kernel={n1} grid=({k1.K1_GRID},1,1) block=({k1.K1_THREADS},1,1) lds={k1.K1_LDS}\n"
s += f"; @launch kernel={n2} grid=({k2.K2_GRID},1,1) block=({k2.K2_THREADS},1,1) lds={k2.K2_LDS}\n"
s += '.amdgcn_target "amdgcn-amd-amdhsa--gfx950"\n.text\n'
for n, body in ((n1, k1.gen_k1(n1)), (n2, k2.gen_k2(n2))):
    s += f".globl {n}\n.p2align 8\n.type {n},@function\n{n}:\n" + body
s += '.section .rodata,"a"\n.p2align 6\n' + kd(n1, 120, 102 if DIAG else 64) + ".p2align 6\n" + kd(n2, k2.K2_VGPRS, 102)
if os.environ.get('DBGT'):
    k1s = ".type egnn_part_kernel,@function\negnn_part_kernel:\n"
    pre1 = """    s_memrealtime s[90:91]
    s_memtime s[92:93]
    s_load_dwordx2 s[94:95], s[0:1], 72
    s_waitcnt lgkmcnt(0)
"""
    s = s.replace(k1s, k1s + pre1)
    end1 = """K1_EXIT:
    s_memrealtime s[96:97]
    s_memtime s[98:99]
    s_waitcnt vmcnt(0) lgkmcnt(0)
    s_mov_b64 exec, 1
    s_not_b32 s90, s90
    s_sub_u32 s98, s98, s92
    v_mov_b32 v1, 0
    v_mov_b32 v2, s90
    v_mov_b32 v3, s96
    v_mov_b32 v4, s98
    global_atomic_umax v1, v2, s[94:95]
    global_atomic_umax v1, v3, s[94:95] offset:4
    global_atomic_umax v1, v4, s[94:95] offset:8
"""
    s = s.replace("K1_EXIT:\n", end1)
    k2s = ".type egnn_main_kernel,@function\negnn_main_kernel:\n"
    pre2 = """    s_memrealtime s[100:101]
    s_waitcnt lgkmcnt(0)
    s_mov_b32 s15, s100
    s_memtime s[100:101]
    s_waitcnt lgkmcnt(0)
    s_mov_b32 s101, s100
"""
    s = s.replace(k2s, k2s + pre2)
    end2 = """    s_memrealtime s[96:97]
    s_memtime s[98:99]
    s_load_dwordx2 s[94:95], s[0:1], 72
    s_waitcnt vmcnt(0) lgkmcnt(0)
    s_sub_u32 s94, s94, 512
    s_subb_u32 s95, s95, 0
    s_mov_b64 exec, 1
    s_not_b32 s15, s15
    s_sub_u32 s98, s98, s101
    v_mov_b32 v1, 0
    v_mov_b32 v2, s15
    v_mov_b32 v3, s96
    v_mov_b32 v4, s98
    global_atomic_umax v1, v2, s[94:95] offset:16
    global_atomic_umax v1, v3, s[94:95] offset:20
    global_atomic_umax v1, v4, s[94:95] offset:24
    s_endpgm
K2_EPI_POS:
"""
    s = s.replace("    s_endpgm\nK2_EPI_POS:\n", end2)
    s = s.replace(".amdhsa_next_free_sgpr 64", ".amdhsa_next_free_sgpr 102")
out = sys.argv[1] if len(sys.argv) > 1 else 'standalone__cheap_equivariant_egnn__graph.s'
open(out, 'w').write(s)
print("wrote", out, len(s))
```

```python
import sys, os
from common import *
import k1, k2
ref = open('standalone__cheap_equivariant_egnn__graph.s.ref').read()
head = [l for l in ref.split('\n') if l.startswith(';') and '@launch' not in l and 'Override' not in l and 'grid=ceil' not in l]
def kd(name, vg, sg):
    return f""".amdhsa_kernel {name}
  .amdhsa_next_free_vgpr {vg}
  .amdhsa_next_free_sgpr {sg}
  .amdhsa_accum_offset {(vg+3)//4*4}
  .amdhsa_group_segment_fixed_size 0
  .amdhsa_kernarg_size 88
  .amdhsa_user_sgpr_count 2
  .amdhsa_user_sgpr_kernarg_segment_ptr 1
  .amdhsa_system_sgpr_workgroup_id_x 1
.end_amdhsa_kernel
"""
n1, n2 = "egnn_part_kernel", "egnn_main_kernel"
s = "\n".join(head) + "\n"
s += f"; @launch kernel={n1} grid=({k1.K1_GRID},1,1) block=({k1.K1_THREADS},1,1) lds={k1.K1_LDS}\n"
s += f"; @launch kernel={n2} grid=({k2.K2_GRID},1,1) block=({k2.K2_THREADS},1,1) lds={k2.K2_LDS}\n"
s += '.amdgcn_target "amdgcn-amd-amdhsa--gfx950"\n.text\n'
for n, body in ((n1, k1.gen_k1(n1)), (n2, k2.gen_k2(n2))):
    s += f".globl {n}\n.p2align 8\n.type {n},@function\n{n}:\n" + body
s += '.section .rodata,"a"\n.p2align 6\n' + kd(n1, 120, 102 if DIAG else 64) + ".p2align 6\n" + kd(n2, k2.K2_VGPRS, 102)
if os.environ.get('DBGT'):
    k1s = ".type egnn_part_kernel,@function\negnn_part_kernel:\n"
    pre1 = """    s_memrealtime s[90:91]
    s_memtime s[92:93]
    s_load_dwordx2 s[94:95], s[0:1], 72
    s_waitcnt lgkmcnt(0)
"""
    s = s.replace(k1s, k1s + pre1)
    end1 = """K1_EXIT:
    s_memrealtime s[96:97]
    s_memtime s[98:99]
    s_waitcnt vmcnt(0) lgkmcnt(0)
    v_cmp_eq_u32 vcc, 0, v0
    s_mov_b64 exec, vcc
    s_cbranch_execz K1_X2
    s_not_b32 s90, s90
    s_sub_u32 s98, s98, s92
    v_mov_b32 v1, 0
    v_mov_b32 v2, s90
    v_mov_b32 v3, s96
    v_mov_b32 v4, s98
    global_atomic_umax v1, v2, s[94:95]
    global_atomic_umax v1, v3, s[94:95] offset:4
    global_atomic_umax v1, v4, s[94:95] offset:8
K1_X2:
"""
    s = s.replace("K1_EXIT:\n", end1)
    k2s = ".type egnn_main_kernel,@function\negnn_main_kernel:\n"
    pre2 = """    s_memrealtime s[100:101]
    s_waitcnt lgkmcnt(0)
    s_mov_b32 s15, s100
    s_memtime s[100:101]
    s_waitcnt lgkmcnt(0)
    s_mov_b32 s101, s100
"""
    s = s.replace(k2s, k2s + pre2)
    end2 = """    s_memrealtime s[96:97]
    s_memtime s[98:99]
    s_load_dwordx2 s[94:95], s[0:1], 72
    s_waitcnt vmcnt(0) lgkmcnt(0)
    s_cmp_lg_u32 s32, 0
    s_cbranch_scc1 K2_EXIT
    s_mov_b64 exec, 1
    v_mov_b32 v1, 0
    global_load_dwordx4 v[8:11], v1, s[94:95] offset:-512
    s_waitcnt vmcnt(0)
    global_store_dwordx4 v1, v[8:11], s[94:95]
    s_not_b32 s15, s15
    s_sub_u32 s98, s98, s101
    v_mov_b32 v1, 0
    v_mov_b32 v2, s15
    v_mov_b32 v3, s96
    v_mov_b32 v4, s98
    global_atomic_umax v1, v2, s[94:95] offset:16
    global_atomic_umax v1, v3, s[94:95] offset:20
    global_atomic_umax v1, v4, s[94:95] offset:24
    s_endpgm
K2_EPI_POS:
"""
    s = s.replace("    s_endpgm\nK2_EPI_POS:\n", end2)
    s = s.replace(".amdhsa_next_free_sgpr 64", ".amdhsa_next_free_sgpr 102")
out = sys.argv[1] if len(sys.argv) > 1 else 'standalone__cheap_equivariant_egnn__graph.s'
open(out, 'w').write(s)
print("wrote", out, len(s))
```

```python
import sys, os
from common import *
import k1, k2
ref = open('standalone__cheap_equivariant_egnn__graph.s.ref').read()
head = [l for l in ref.split('\n') if l.startswith(';') and '@launch' not in l and 'Override' not in l and 'grid=ceil' not in l]
def kd(name, vg, sg):
    return f""".amdhsa_kernel {name}
  .amdhsa_next_free_vgpr {vg}
  .amdhsa_next_free_sgpr {sg}
  .amdhsa_accum_offset {(vg+3)//4*4}
  .amdhsa_group_segment_fixed_size 0
  .amdhsa_kernarg_size 88
  .amdhsa_user_sgpr_count 2
  .amdhsa_user_sgpr_kernarg_segment_ptr 1
  .amdhsa_system_sgpr_workgroup_id_x 1
.end_amdhsa_kernel
"""
n1, n2 = "egnn_part_kernel", "egnn_main_kernel"
s = "\n".join(head) + "\n"
s += f"; @launch kernel={n1} grid=({k1.K1_GRID},1,1) block=({k1.K1_THREADS},1,1) lds={k1.K1_LDS}\n"
s += f"; @launch kernel={n2} grid=({k2.K2_GRID},1,1) block=({k2.K2_THREADS},1,1) lds={k2.K2_LDS + (min(640, 163840-k2.K2_LDS) if DIAG else 0)}\n"
s += '.amdgcn_target "amdgcn-amd-amdhsa--gfx950"\n.text\n'
for n, body in ((n1, k1.gen_k1(n1)), (n2, k2.gen_k2(n2))):
    s += f".globl {n}\n.p2align 8\n.type {n},@function\n{n}:\n" + body
s += '.section .rodata,"a"\n.p2align 6\n' + kd(n1, 120, 102 if DIAG else 64) + ".p2align 6\n" + kd(n2, k2.K2_VGPRS, 102)
if os.environ.get('DBGT'):
    k1s = ".type egnn_part_kernel,@function\negnn_part_kernel:\n"
    pre1 = """    s_memrealtime s[90:91]
    s_memtime s[92:93]
    s_load_dwordx2 s[94:95], s[0:1], 72
    s_waitcnt lgkmcnt(0)
"""
    s = s.replace(k1s, k1s + pre1)
    end1 = """K1_EXIT:
    s_memrealtime s[96:97]
    s_memtime s[98:99]
    s_waitcnt vmcnt(0) lgkmcnt(0)
    s_and_b32 s91, s2, 63
    s_cmp_lg_u32 s91, 0
    s_cbranch_scc1 K1_X2
    v_cmp_eq_u32 vcc, 0, v0
    s_mov_b64 exec, vcc
    s_cbranch_execz K1_X2
    s_not_b32 s90, s90
    s_sub_u32 s98, s98, s92
    v_mov_b32 v1, 0
    v_mov_b32 v2, s90
    v_mov_b32 v3, s96
    v_mov_b32 v4, s98
    global_atomic_umax v1, v2, s[94:95]
    global_atomic_umax v1, v3, s[94:95] offset:4
    global_atomic_umax v1, v4, s[94:95] offset:8
K1_X2:
"""
    s = s.replace("K1_EXIT:\n", end1)
    k2s = ".type egnn_main_kernel,@function\negnn_main_kernel:\n"
    pre2 = """    s_memrealtime s[100:101]
    s_waitcnt lgkmcnt(0)
    s_mov_b32 s15, s100
    s_memtime s[100:101]
    s_waitcnt lgkmcnt(0)
    s_mov_b32 s101, s100
"""
    s = s.replace(k2s, k2s + pre2)
    end2 = """    s_memrealtime s[96:97]
    s_memtime s[98:99]
    s_load_dwordx2 s[94:95], s[0:1], 72
    s_waitcnt vmcnt(0) lgkmcnt(0)
    s_cmp_lg_u32 s32, 0
    s_cbranch_scc1 K2_EXIT
    s_and_b32 s91, s2, 63
    s_cmp_lg_u32 s91, 0
    s_cbranch_scc1 K2_EXIT
    s_mov_b64 exec, 1
    v_mov_b32 v1, 0
    global_load_dwordx4 v[8:11], v1, s[94:95] offset:-512
    s_waitcnt vmcnt(0)
    global_store_dwordx4 v1, v[8:11], s[94:95]
    s_not_b32 s15, s15
    s_sub_u32 s98, s98, s101
    v_mov_b32 v1, 0
    v_mov_b32 v2, s15
    v_mov_b32 v3, s96
    v_mov_b32 v4, s98
    global_atomic_umax v1, v2, s[94:95] offset:16
    global_atomic_umax v1, v3, s[94:95] offset:20
    global_atomic_umax v1, v4, s[94:95] offset:24
    s_endpgm
K2_EPI_POS:
"""
    s = s.replace("    s_endpgm\nK2_EPI_POS:\n", end2)
    s = s.replace(".amdhsa_next_free_sgpr 64", ".amdhsa_next_free_sgpr 102")
out = sys.argv[1] if len(sys.argv) > 1 else 'standalone__cheap_equivariant_egnn__graph.s'
open(out, 'w').write(s)
print("wrote", out, len(s))
```

```python
from common import *

REMAP = int(os.environ.get('REMAP','0'))
HT = int(os.environ.get('HT','0'))
LDP = os.environ.get('LDP','')
STP = os.environ.get('STP','')
K1_THREADS = 832
K1_WAVES = 13
K1_GRID = 253
K1_LDS_HIST = 0
K1_LDS_REC = 4096
K1_LDS = K1_LDS_REC + CH*12

def gen_k1(name):
    a = Asm()
    a(f"""
    s_cmp_ge_u32 s2, {K1_GRID}
    s_cbranch_scc1 K1_EXIT
    s_cmp_ge_u32 s2, {P}
    s_cbranch_scc1 K1_WEIGHTS
    s_load_dwordx4 s[4:7], s[0:1], 8
    s_load_dwordx4 s[8:11], s[0:1], 24
    s_load_dwordx2 s[12:13], s[0:1], 80
    s_load_dwordx2 s[14:15], s[0:1], 0
    """)
    stamp_rt(a, 0, 119); stamp(a, 1, 119)
    a(f"""
    v_lshlrev_b32 v1, 2, v0
    v_mov_b32 v2, 0
    ds_write_b32 v1, v2
    v_cmp_gt_u32 vcc, 800, v0
    s_mov_b64 s[38:39], vcc
    v_lshlrev_b32 v1, 4, v0
    v_lshlrev_b32 v2, 5, v0
    v_mov_b32 v3, 1
    v_readfirstlane_b32 s40, v0
    s_mul_i32 s36, s2, {CH*4}
    s_mul_i32 s37, s2, {CH*8}
    s_waitcnt lgkmcnt(0)
    s_mov_b32 s16, s4
    s_mov_b32 s17, s5
    s_mov_b32 s18, {N*6}
    s_mov_b32 s19, 0x00020000
    s_mov_b32 s20, s6
    s_mov_b32 s21, s7
    s_mov_b32 s22, {E*8}
    s_mov_b32 s23, 0x00020000
    s_mov_b32 s24, s8
    s_mov_b32 s25, s9
    s_mov_b32 s26, {E*4}
    s_mov_b32 s27, 0x00020000
    s_mov_b32 s28, s10
    s_mov_b32 s29, s11
    s_mov_b32 s30, {E*4}
    s_mov_b32 s31, 0x00020000
    s_mov_b32 s32, s12
    s_mov_b32 s33, s13
    s_mov_b32 s34, 0x1200000
    s_mov_b32 s35, 0x00020000
    s_mov_b64 exec, s[38:39]
    """)
    if REMAP:
        a(f"""
        v_lshlrev_b32 v2, 3, v0
        s_add_u32 s46, s36, 6400
        s_add_u32 s47, s37, 12800
        buffer_load_dwordx2 v[4:5], v2, s[28:31], s36 offen {LDP}
        buffer_load_dwordx2 v[6:7], v2, s[28:31], s46 offen {LDP}
        s_barrier
        buffer_load_dwordx2 v[8:9], v2, s[24:27], s36 offen {LDP}
        buffer_load_dwordx2 v[10:11], v2, s[24:27], s46 offen {LDP}
        buffer_load_dwordx4 v[12:15], v1, s[20:23], s37 offen {LDP}
        buffer_load_dwordx4 v[16:19], v1, s[20:23], s47 offen {LDP}
        """)
    else:
        a(f"""
        buffer_load_dwordx4 v[4:7], v1, s[28:31], s36 offen {LDP}
        s_barrier
        buffer_load_dwordx4 v[8:11], v1, s[24:27], s36 offen {LDP}
        buffer_load_dwordx4 v[12:15], v2, s[20:23], s37 offen {LDP}
        buffer_load_dwordx4 v[16:19], v2, s[20:23], s37 offen offset:16 {LDP}
        """)
    a(f"""
    v_subrev_u32 v30, 128, v0
    v_mul_u32_u24 v31, 6, v30
    s_mul_i32 s41, s2, 600
    v_cmp_gt_u32 vcc, 100, v30
    s_mov_b64 s[44:45], vcc
    s_mov_b64 exec, vcc
    buffer_load_ushort v32, v31, s[16:19], s41 offen
    buffer_load_ushort v33, v31, s[16:19], s41 offen offset:2
    buffer_load_ushort v34, v31, s[16:19], s41 offen offset:4
    """)
    if HT:
        a(f"""
        s_mov_b32 s48, s14
        s_mov_b32 s49, s15
        s_mov_b32 s50, {N*128}
        s_mov_b32 s51, 0x00020000
        v_lshlrev_b32 v36, 7, v30
        s_mul_i32 s41, s2, 12800
        buffer_load_dword v37, v36, s[48:51], s41 offen
        """)
    a(f"""
    s_mov_b64 exec, s[38:39]
    s_waitcnt vmcnt({(7 if HT else 6)+(1 if REMAP else 0)})
    """)
    stamp(a, 2, 119)
    for i in range(4):
        a(f"""
        v_mul_u32_u24 v{44+i}, 85599, v{4+i}
        v_lshrrev_b32 v{44+i}, 22, v{44+i}
        v_lshrrev_b32 v{68+i}, 1, v{44+i}
        v_lshlrev_b32 v{44+i}, 2, v{44+i}
        ds_add_rtn_u32 v{48+i}, v{44+i}, v3
        v_mul_u32_u24 v{68+i}, {BN}, v{68+i}
        v_sub_u32 v{68+i}, v{4+i}, v{68+i}
        """)
    a("""
    s_waitcnt lgkmcnt(0)
    s_barrier
    """)
    stamp(a, 3, 119)
    a(f"""
    s_cmp_ge_u32 s40, 64
    s_cbranch_scc1 K1_NOSCAN
    v_lshlrev_b32 v80, 5, v0
    ds_read_b128 v[84:87], v80
    ds_read_b128 v[88:91], v80 offset:16
    s_waitcnt lgkmcnt(0)
    v_add_u32 v92, v84, v85
    v_add_u32 v93, v92, v86
    v_add_u32 v94, v93, v87
    v_add_u32 v95, v94, v88
    v_add_u32 v96, v95, v89
    v_add_u32 v97, v96, v90
    v_add_u32 v98, v97, v91
    v_mov_b32 v99, v98
    s_nop 1
    v_add_u32_dpp v99, v99, v99 row_shr:1 row_mask:0xf bank_mask:0xf
    s_nop 1
    v_add_u32_dpp v99, v99, v99 row_shr:2 row_mask:0xf bank_mask:0xf
    s_nop 1
    v_add_u32_dpp v99, v99, v99 row_shr:4 row_mask:0xf bank_mask:0xf
    s_nop 1
    v_add_u32_dpp v99, v99, v99 row_shr:8 row_mask:0xf bank_mask:0xf
    s_nop 1
    v_add_u32_dpp v99, v99, v99 row_bcast:15 row_mask:0xa bank_mask:0xf
    s_nop 1
    v_add_u32_dpp v99, v99, v99 row_bcast:31 row_mask:0xc bank_mask:0xf
    v_sub_u32 v100, v99, v98
    v_add_u32 v101, v100, v84
    v_add_u32 v102, v100, v92
    v_add_u32 v103, v100, v93
    v_add_u32 v104, v100, v94
    v_add_u32 v105, v100, v95
    v_add_u32 v106, v100, v96
    v_add_u32 v107, v100, v97
    ds_write_b128 v80, v[100:103]
    ds_write_b128 v80, v[104:107] offset:16
    v_lshl_or_b32 v108, v101, 16, v100
    v_lshl_or_b32 v109, v103, 16, v102
    v_lshl_or_b32 v110, v105, 16, v104
    v_lshl_or_b32 v111, v107, 16, v106
    s_mul_i32 s41, s2, {TAB_STRIDE}
    s_add_u32 s41, s41, {WS_TAB}
    buffer_store_dwordx4 v[108:111], v1, s[32:35], s41 offen
    v_mov_b32 v112, {CH | (CH<<16)}
    v_mov_b32 v113, v112
    v_mov_b32 v114, v112
    v_mov_b32 v115, v112
    s_mov_b64 exec, 1
    buffer_store_dwordx4 v[112:115], v1, s[32:35], s41 offen offset:1024
    s_mov_b64 exec, -1
    s_waitcnt lgkmcnt(0)
    K1_NOSCAN:
    s_barrier
    """)
    stamp(a, 4, 119)
    for i in range(4):
        a(f"ds_read_b32 v{80+i}, v{44+i}")
    a("s_waitcnt vmcnt(0)")
    stamp(a, 5, 119)
    for i in range(4):
        a(f"v_lshl_or_b32 v{68+i}, v{68+i}, 20, v{8+i}")
    a("s_waitcnt lgkmcnt(0)")
    for i in range(4):
        a(f"""
        v_add_u32 v{80+i}, v{80+i}, v{48+i}
        v_mul_u32_u24 v{80+i}, 12, v{80+i}
        v_add_u32 v{80+i}, {K1_LDS_REC}, v{80+i}
        ds_write2_b32 v{80+i}, v{12+2*i}, v{13+2*i} offset0:0 offset1:1
        ds_write_b32 v{80+i}, v{68+i} offset:8
        """)
    a(f"""
    s_mov_b64 exec, s[44:45]
    v_lshlrev_b32 v32, 16, v32
    v_lshlrev_b32 v33, 16, v33
    v_lshlrev_b32 v34, 16, v34
    v_mov_b32 v35, 0
    v_lshlrev_b32 v31, 4, v30
    s_mul_i32 s41, s2, 1600
    s_add_u32 s41, s41, {WS_POSF}
    buffer_store_dwordx4 v[32:35], v31, s[32:35], s41 offen
    s_mov_b64 exec, s[38:39]
    s_waitcnt lgkmcnt(0)
    s_barrier
    """)
    stamp(a, 6, 119)
    a(f"""
    ds_read_b128 v[4:7], v1 offset:{K1_LDS_REC}
    ds_read_b128 v[8:11], v1 offset:{K1_LDS_REC+12800}
    ds_read_b128 v[12:15], v1 offset:{K1_LDS_REC+25600}
    s_mul_i32 s42, s2, {CH*12}
    s_add_u32 s43, s42, 12800
    s_add_u32 s44, s42, 25600
    s_waitcnt lgkmcnt(2)
    buffer_store_dwordx4 v[4:7], v1, s[32:35], s42 offen {STP}
    s_waitcnt lgkmcnt(1)
    buffer_store_dwordx4 v[8:11], v1, s[32:35], s43 offen {STP}
    s_waitcnt lgkmcnt(0)
    buffer_store_dwordx4 v[12:15], v1, s[32:35], s44 offen {STP}
    """)
    stamp(a, 7, 119)
    if DIAG: a("s_waitcnt vmcnt(0)")
    stamp(a, 8, 119); stamp_rt(a, 9, 119)
    stamp_dump(a, 10, 119, 0, "s[32:35]", 30)
    for _ in range(int(os.environ.get('K1SLEEP','0'))):
        a("s_sleep 36")
    a(f"""
    K1_EXIT:
    s_endpgm
    """)
    a(f"""
    K1_WEIGHTS:
    s_load_dwordx2 s[4:5], s[0:1], 40
    s_load_dwordx2 s[6:7], s[0:1], 56
    s_load_dwordx2 s[12:13], s[0:1], 80
    v_lshrrev_b32 v1, 6, v0
    s_nop 0
    v_readfirstlane_b32 s40, v1
    s_sub_u32 s41, s2, {P}
    s_mul_i32 s41, s41, 13
    s_add_u32 s40, s40, s41
    s_cmp_gt_u32 s40, 32
    s_cbranch_scc1 K1_EXIT
    v_and_b32 v1, 63, v0
    v_and_b32 v2, 31, v1
    v_lshrrev_b32 v3, 5, v1
    s_waitcnt lgkmcnt(0)
    s_mov_b32 s32, s12
    s_mov_b32 s33, s13
    s_mov_b32 s34, 0x1200000
    s_mov_b32 s35, 0x00020000
    s_cmp_lt_u32 s40, 16
    s_cselect_b32 s16, s4, s6
    s_cselect_b32 s17, s5, s7
    s_mov_b32 s47, {128*128}
    s_cselect_b32 s18, {133*128}, s47
    s_mov_b32 s19, 0x00020000
    s_cmp_eq_u32 s40, 32
    s_cbranch_scc1 K1_WXC
    s_cmp_lt_u32 s40, 16
    s_cbranch_scc0 K1_WH
    s_cmp_lt_u32 s40, 8
    s_cselect_b32 s42, 64, 0
    s_lshr_b32 s43, s40, 2
    s_and_b32 s43, s43, 1
    s_and_b32 s44, s40, 3
    s_branch K1_WGO
    K1_WH:
    s_sub_u32 s45, s40, 16
    s_lshr_b32 s43, s45, 3
    s_and_b32 s44, s45, 3
    s_and_b32 s45, s45, 4
    s_lshl_b32 s42, s45, 4
    K1_WGO:
    ; K0 = s42 + 8*s44 ; C0 = 32*s43
    s_lshl_b32 s44, s44, 3
    s_add_u32 s42, s42, s44
    s_lshl_b32 s42, s42, 7
    s_lshl_b32 s43, s43, 6
    s_add_u32 s42, s42, s43
    v_lshlrev_b32 v4, 12, v3
    v_lshl_add_u32 v4, v2, 1, v4
    """)
    for j in range(8):
        a(f"buffer_load_ushort v{8+j}, v4, s[16:19], s42 offen offset:{128*j}")
    a(f"""
    s_lshl_b32 s46, s40, 10
    s_add_u32 s46, s46, {WS_WIMG}
    v_lshlrev_b32 v5, 4, v1
    s_cmp_lt_u32 s40, 8
    s_cselect_b32 s47, 0xbfb8aa3b, 1.0
    s_waitcnt vmcnt(0)
    """)
    for j in range(8):
        a(f"v_lshlrev_b32 v{8+j}, 16, v{8+j}\nv_mul_f32 v{8+j}, s47, v{8+j}")
    a(f"""
    v_cvt_pk_bf16_f32 v16, v8, v9
    v_cvt_pk_bf16_f32 v17, v10, v11
    v_cvt_pk_bf16_f32 v18, v12, v13
    v_cvt_pk_bf16_f32 v19, v14, v15
    buffer_store_dwordx4 v[16:19], v5, s[32:35], s46 offen
    s_endpgm
    K1_WXC:
    s_mov_b32 s16, s4
    s_mov_b32 s17, s5
    s_mov_b32 s18, {133*128}
    s_mov_b32 s42, {128*128}
    v_lshlrev_b32 v4, 1, v2
    """)
    for t in range(2):
        for r in range(5):
            a(f"buffer_load_ushort v{8+5*t+r}, v4, s[16:19], s42 offen offset:{128*r+64*t}")
    a(f"""
    v_cmp_eq_u32 vcc, 0, v3
    v_lshlrev_b32 v5, 3, v1
    s_mov_b32 s46, {WS_WIMG + 32*1024}
    s_waitcnt vmcnt(0)
    """)
    for r in range(8,18):
        a(f"v_lshlrev_b32 v{r}, 16, v{r}\nv_mul_f32 v{r}, 0xbfb8aa3b, v{r}")
    for t in range(2):
        b = 8+5*t
        a(f"""
        v_cvt_pk_bf16_f32 v20, v{b+1}, v{b+2}
        v_cvt_pk_bf16_f32 v21, v{b+3}, v{b+4}
        v_cvt_pk_bf16_f32 v26, v{b}, 0
        v_lshlrev_b32 v26, 16, v26
        v_sub_f32 v27, v{b}, v26
        v_cvt_pk_bf16_f32 v{b}, v26, v27
        v_cndmask_b32 v{22+2*t}, v{b}, v20, vcc
        v_cndmask_b32 v{23+2*t}, 0, v21, vcc
        """)
    a("""
    buffer_store_dwordx2 v[22:23], v5, s[32:35], s46 offen
    buffer_store_dwordx2 v[24:25], v5, s[32:35], s46 offen offset:512
    s_endpgm
    """)
    return a.text()
```

```python
from common import *

K2_WAVES = 12
K2_THREADS = 64*K2_WAVES
K2_GRID = 256
NQ = K2_THREADS//4
CAP = 3456
L_HIST = 0
L_MISC = 512
L_PREF = 576
L_OHT  = 1152
L_WXF  = 1280
L_META = 1536
L_REC  = L_META + CAP*4
L_PDT  = L_REC + CAP*8
L_ATAB = L_PDT + 104*16
ATAB_STRIDE = 208
L_MACC = L_ATAB + 64*ATAB_STRIDE
MACC_STRIDE = 288
NROWS = 98 + K2_WAVES - 1
L_STG  = L_MACC + NROWS*MACC_STRIDE
STG_SZ = 2048
L_HBUF = (L_STG + K2_WAVES*STG_SZ + 127)//128*128
K2_LDS = L_HBUF + K2_WAVES*4096
ZERO_BEG = L_MACC
ZERO_N16 = (L_STG + K2_WAVES*STG_SZ - L_MACC)//16
assert K2_LDS <= 163840, K2_LDS

vSR, vZ = 0, 1
vW2, vWX, vACC, vD, vH, vXA, vST, vT, vIP, vPS, vPD, vHR = 2, 34, 42, 74, 106, 122, 126, 134, 142, 150, 154, 158
vSE = vPS+3
vDL, vMA, vMS, vOHB, vSGB, vSG = 162, 163, 164, 165, 166, 167
K2_VGPRS = 168 if not DIAG else 168
vSTAMP = None
KS = 9
NK = 2*KS
RFAST = 4*KS
RSLOW = 12
SM = 64
KORD = int(os.environ.get('KORD','0'))
RLP = os.environ.get('RLP','')
OSP = os.environ.get('OSP','')
WARM = int(os.environ.get('WARM','0'))
WA, WB, WC = [int(x) for x in os.environ.get('WTS','35,19,10').split(',')]
assert 4*(WA+WB+WC) == 256
ABL = os.environ.get('ABL','').split(',')

def rr(b, n): return f"v[{b}:{b+n-1}]"

def mfma(d, a_, b_, c):
    cs = rr(c,16) if c is not None else "0"
    return f"v_mfma_f32_32x32x16_bf16 {rr(d,16)}, {rr(a_,4)}, {rr(b_,4)}, {cs}"

def st(a, i):
    if not DIAG: return
    a(f"""
    s_memtime s[100:101]
    s_waitcnt lgkmcnt(0)
    s_mov_b64 vcc, exec
    s_mov_b64 exec, 1
    v_mov_b32 v141, s100
    v_mov_b32 v140, 0
    buffer_store_dword v141, v140, s[20:23], s15 offen offset:{4*i}
    s_mov_b64 exec, vcc
    """)
def st_rt(a, i):
    if not DIAG: return
    a(f"""
    s_memrealtime s[100:101]
    s_waitcnt lgkmcnt(0)
    s_mov_b64 vcc, exec
    s_mov_b64 exec, 1
    v_mov_b32 v141, s100
    v_mov_b32 v140, 0
    buffer_store_dword v141, v140, s[20:23], s15 offen offset:{4*i}
    s_mov_b64 exec, vcc
    """)

def lane_id(a, v):
    a(f"v_mbcnt_lo_u32_b32 v{v}, -1, 0\nv_mbcnt_hi_u32_b32 v{v}, -1, v{v}")

def elementwise(a, t, slots):
    D = vD + 16*t
    if 'noew' in ABL:
        for sl in slots:
            for l in sl: a(l)
            a("s_nop 7\ns_nop 7")
        return
    for g in range(4):
        ps = (2*g, 2*g+1)
        tmp = [vT + 4*(g%2), vT + 4*(g%2) + 2]
        for l in slots[2*g]: a(l)
        for p, tm in zip(ps, tmp):
            a(f"v_exp_f32 v{tm}, v{D+2*p}\nv_exp_f32 v{tm+1}, v{D+2*p+1}")
        for tm in tmp:
            a(f"v_pk_add_f32 {rr(tm,2)}, {rr(tm,2)}, 1.0 op_sel_hi:[1,0]")
        for l in slots[2*g+1]: a(l)
        for tm in tmp:
            a(f"v_rcp_f32 v{tm}, v{tm}\nv_rcp_f32 v{tm+1}, v{tm+1}")
        for p, tm in zip(ps, tmp):
            a(f"v_pk_mul_f32 {rr(tm,2)}, {rr(tm,2)}, {rr(D+2*p,2)}")
        for p, tm in zip(ps, tmp):
            a(f"v_cvt_pk_bf16_f32 v{D+p}, v{tm}, v{tm+1}")

def dma():
    out = []
    for i in range(4):
        out += [f"s_add_u32 m0, s43, {1024*i}" if i else "s_mov_b32 m0, s43", "s_nop 0",
                f"buffer_load_dwordx4 {rr(vIP+2*i,2)}, s[16:19], 0 idxen offen lds"]
    return out

def h_reads(dst=vH):
    return [f"ds_read_b128 {rr(dst+4*s,4)}, v{vHR+s}" for s in range(4)]

def pd_read():
    return ["s_mov_b64 exec, s[44:45]",
            f"ds_read_b128 {rr(vPD,4)}, v{vDL} offset:{L_PDT}",
            "s_mov_b64 exec, -1"]

def ps_load():
    ex = []
    if 'eatest' in ABL:
        ex = ["s_mov_b64 exec, s[48:49]", f"buffer_load_dwordx2 {rr(vPS,2)}, v{vSE}, s[76:79], 0 idxen nt"]
    return ex + ["s_mov_b64 exec, s[50:51]",
            f"buffer_load_dwordx3 {rr(vPS,3)}, v{vSE}, s[24:27], 0 idxen",
            "s_mov_b64 exec, -1"]

def xa_build(eaoff, wait="s_waitcnt lgkmcnt(4)"):
    return [f"v_lshrrev_b32 v{vSG}, 1, v{vDL}",
            f"v_add_u32 v{vSG}, v{vSG}, v{vSGB}",
            f"v_add_u32 v{vDL}, v{vDL}, v{vOHB}",
            f"v_lshlrev_b32 v{vT}, 1, v{vMA}",
            wait,
            "s_and_b64 exec, s[44:45], s[50:51]",
            f"v_pk_add_f32 {rr(vPD,2)}, {rr(vPD,2)}, {rr(vPS,2)} neg_lo:[0,1] neg_hi:[0,1]",
            f"v_sub_f32 v{vPD+2}, v{vPD+2}, v{vPS+2}",
            f"v_mul_f32 v{vPD+3}, v{vPD}, v{vPD}",
            f"v_fmac_f32 v{vPD+3}, v{vPD+1}, v{vPD+1}",
            f"v_fmac_f32 v{vPD+3}, v{vPD+2}, v{vPD+2}",
            f"v_cvt_pk_bf16_f32 v{vXA+1}, v{vPD+1}, v{vPD+2}",
            f"v_cvt_pk_bf16_f32 v{vXA}, v{vPD+3}, v{vPD+3}",
            f"v_cvt_pk_bf16_f32 v{vPD}, 1.0, v{vPD}",
            f"ds_write2_b32 v{vSG}, v{vPD}, v{vXA+1} offset0:0 offset1:1",
            "s_and_b64 exec, s[44:45], s[48:49]",
            f"ds_read_b64 {rr(vXA,2)}, v{vT} offset:{L_REC + 2*eaoff}",
            "s_mov_b64 exec, s[44:45]",
            f"ds_read_b64 {rr(vXA+2,2)}, v{vDL}",
            "s_mov_b64 exec, -1",
            "s_and_b64 s[40:41], s[44:45], s[50:51]"]

def unwrite():
    return ["s_mov_b64 exec, s[40:41]",
            f"ds_write2_b32 v{vSG}, v{vZ}, v{vZ} offset0:0 offset1:1",
            "s_mov_b64 exec, -1"]

def dl_read():
    return [f"ds_read_u16 v{vDL}, v{vMA} offset:{L_META+2}",
            f"v_add_u32 v{vMA}, 128, v{vMA}"]

def src_reads(eoff=128):
    return [f"ds_read_u16 v{vIP+2*i}, v{vMS} offset:{L_META+32*i}" for i in range(4)] + \
           [f"ds_read_u16 v{vSE}, v{vMA} offset:{L_META+eoff}",
            f"v_add_u32 v{vMS}, 128, v{vMS}"]

def st_reads():
    return [f"ds_read_b64_tr_b16 {rr(vST+4*s+2*jq,2)}, v{vSR} offset:{1024*s+512*jq}" for s in range(2) for jq in range(2)]

def rebase(a):
    a(f"""
    s_sub_u32 s60, s59, s37
    s_mov_b32 s37, s59
    s_lshl_b32 s61, s60, 4
    s_lshl_b32 s60, s60, 3
    v_subrev_u32 v{vOHB}, s61, v{vOHB}
    v_subrev_u32 v{vSGB}, s60, v{vSGB}
    s_lshl_b32 s59, s37, 2
    v_mov_b32 v{vT}, s59
    ds_read_b32 v{vT+1}, v{vT} offset:{L_PREF+32}
    s_waitcnt lgkmcnt(0)
    v_readfirstlane_b32 s38, v{vT+1}
    """)

def wx_reload(a):
    lane_id(a, vT)
    a(f"""
    s_lshl_b32 s59, s37, 1
    s_add_u32 s59, s59, {L_ATAB}
    v_and_b32 v{vT+1}, 31, v{vT}
    v_lshrrev_b32 v{vT}, 5, v{vT}
    v_lshl_add_u32 v{vT}, v{vT}, 3, s59
    v_mad_u32_u24 v{vT}, v{vT+1}, s62, v{vT}
    v_add_u32 v{vT+1}, {32*ATAB_STRIDE}, v{vT}
    ds_read2_b32 {rr(vWX+2,2)}, v{vT} offset0:0 offset1:1
    ds_read2_b32 {rr(vWX+6,2)}, v{vT+1} offset0:0 offset1:1
    """)

def flush(a, sbase):
    A, X, S = vPD, vPD+1, vPD+2
    R = vD+8
    Y = R
    lane_id(a, X)
    a(f"""
    v_bfe_u32 v{Y}, v{X}, 2, 3
    v_add_u32 v{Y}, {sbase}, v{Y}
    v_lshlrev_b32 v{A}, 2, v{Y}
    ds_read_b32 v{S}, v{A} offset:{L_PREF}
    v_cmp_eq_u32 s[66:67], s70, v{Y}
    s_add_u32 s59, s32, 97
    v_mov_b32 v{A}, s59
    v_and_b32 v{S+1}, 3, v{X}
    v_lshrrev_b32 v{X}, 5, v{X}
    v_lshlrev_b32 v{X}, 4, v{X}
    ds_read_b128 {rr(vT,4)}, v{X} offset:{L_WXF}
    ds_read_b128 {rr(vT+4,4)}, v{X} offset:{L_WXF + 32}
    s_waitcnt lgkmcnt(2)
    v_cmp_gt_u32 vcc, {BN}, v{Y}
    v_cmp_gt_u32 s[64:65], s69, v{S}
    s_and_b64 s[64:65], s[64:65], vcc
    v_cmp_le_u32 vcc, s68, v{S}
    s_and_b64 s[64:65], s[64:65], vcc
    s_andn2_b64 s[66:67], s[66:67], vcc
    v_cndmask_b32 v{Y}, v{Y}, v{A}, s[66:67]
    s_or_b64 s[64:65], s[64:65], s[66:67]
    v_mad_u32_u24 v{A}, v{Y}, s63, v{X}
    v_lshl_add_u32 v{A}, v{S+1}, 2, v{A}
    v_add_u32 v{A}, {L_MACC}, v{A}
    s_and_b64 s[66:67], s[64:65], s[52:53]
    s_and_b64 s[64:65], s[64:65], s[54:55]
    """)
    for qd in range(4):
        t, j = qd>>1, 2*(qd&1)
        if qd:
            a(f"""
            ds_read_b128 {rr(vT,4)}, v{X} offset:{L_WXF + (32*t+8*j)*4}
            ds_read_b128 {rr(vT+4,4)}, v{X} offset:{L_WXF + (32*t+8*j+8)*4}
            """)
        a(f"""
        s_mov_b64 exec, s[66:67]
        ds_read_b128 {rr(R,4)}, v{A} offset:{t*128+j*32}
        ds_read_b128 {rr(R+4,4)}, v{A} offset:{t*128+j*32+32}
        s_mov_b64 exec, -1
        s_waitcnt lgkmcnt(2)
        """)
        for i in range(0,8,2):
            if qd == 0 and i == 0:
                a(f"v_pk_mul_f32 {rr(S,2)}, {rr(vACC,2)}, {rr(vT,2)}")
            else:
                a(f"v_pk_fma_f32 {rr(S,2)}, {rr(vACC+8*qd+i,2)}, {rr(vT+i,2)}, {rr(S,2)}")
        a("s_waitcnt lgkmcnt(0)")
        for i in range(0,8,2):
            a(f"v_pk_add_f32 {rr(R+i,2)}, {rr(R+i,2)}, {rr(vACC+8*qd+i,2)}")
        a(f"""
        s_mov_b64 exec, s[66:67]
        ds_write_b128 v{A}, {rr(R,4)} offset:{t*128+j*32}
        ds_write_b128 v{A}, {rr(R+4,4)} offset:{t*128+j*32+32}
        s_mov_b64 exec, -1
        """)
    a(f"""
    s_mov_b64 exec, s[64:65]
    ds_read_b32 v{X}, v{A} offset:256
    v_add_f32 v{S}, v{S}, v{S+1}
    s_waitcnt lgkmcnt(0)
    v_add_f32 v{X}, v{X}, v{S}
    ds_write_b32 v{A}, v{X} offset:256
    s_mov_b64 exec, -1
    """)

def mfma_z(flag, tag, d, a_, b_):
    return [f"s_cmp_eq_u32 {flag}, 0",
            f"s_cbranch_scc1 K2_MZ{tag}a",
            mfma(d, a_, b_, None),
            f"s_mov_b32 {flag}, 0",
            f"s_branch K2_MZ{tag}b",
            f"K2_MZ{tag}a:",
            mfma(d, a_, b_, d),
            f"K2_MZ{tag}b:"]

def merge(a, tag):
    a(f"""
    v_lshlrev_b32 v74, 2, v140
    ds_read2_b32 v[76:77], v74 offset0:{(L_MISC+16)//4} offset1:{(L_MISC+20)//4}
    s_waitcnt lgkmcnt(0)
    v_cmp_lt_u32 vcc, v76, v77
    v_cmp_ne_u32 s[64:65], 0, v76
    s_and_b64 vcc, vcc, s[64:65]
    s_and_b32 s64, vcc_lo, {(1<<(K2_WAVES-1))-1}
    s_cmp_eq_u32 s64, {(1<<(K2_WAVES-1))-1}
    {"s_branch" if "slowmerge" in ABL else "s_cbranch_scc0"} K2_MSLOW{tag}
    s_cmp_eq_u32 s32, 0
    s_cbranch_scc1 K2_MERGED{tag}
    s_mul_i32 s64, s70, {MACC_STRIDE}
    s_add_u32 s64, s64, {L_MACC}
    s_mul_i32 s65, s32, {MACC_STRIDE}
    s_add_u32 s65, s65, {L_MACC + 97*MACC_STRIDE}
    v_add_u32 v75, s64, v74
    v_add_u32 v76, s65, v74
    v_mov_b32 v77, 0
    ds_read_b32 v78, v75
    ds_read_b32 v79, v76
    s_mov_b64 exec, 0xff
    ds_read_b32 v80, v75 offset:256
    ds_read_b32 v81, v76 offset:256
    s_mov_b64 exec, -1
    s_waitcnt lgkmcnt(0)
    v_add_f32 v78, v78, v79
    v_add_f32 v80, v80, v81
    ds_write_b32 v75, v78
    ds_write_b32 v76, v77
    s_mov_b64 exec, 0xff
    ds_write_b32 v75, v80 offset:256
    ds_write_b32 v76, v77 offset:256
    s_mov_b64 exec, -1
    s_waitcnt lgkmcnt(0)
    s_branch K2_MERGED{tag}
    K2_MSLOW{tag}:
    s_cmp_gt_u32 s32, 1
    s_cbranch_scc1 K2_MERGED{tag}
    v_cmp_gt_u32 vcc, 72, v141
    s_mov_b64 exec, vcc
    v_mov_b32 v74, {L_MISC+16}
    ds_read_b128 v[80:83], v74
    ds_read_b128 v[84:87], v74 offset:16
    ds_read_b128 v[88:91], v74 offset:32
    v_lshlrev_b32 v75, 2, v141
    v_add_u32 v75, {L_MACC}, v75
    v_mov_b32 v76, 0
    """)
    for w in range(1,K2_WAVES):
        a(f"ds_read_b32 v{92+w}, v75 offset:{(97+w)*MACC_STRIDE}")
    a("s_waitcnt lgkmcnt(0)")
    for w in range(1,K2_WAVES):
        a(f"""
        v_max_u32 v77, 1, v{80+w}
        v_mul_u32_u24 v77, {MACC_STRIDE}, v77
        v_add_u32 v77, v77, v75
        v_subrev_u32 v77, {MACC_STRIDE}, v77
        ds_read_b32 v78, v77
        ds_write_b32 v75, v76 offset:{(97+w)*MACC_STRIDE}
        s_waitcnt lgkmcnt(0)
        v_add_f32 v78, v78, v{92+w}
        ds_write_b32 v77, v78
        """)
    a(f"""
    s_waitcnt lgkmcnt(0)
    s_mov_b64 exec, -1
    K2_MERGED{tag}:
    """)

def dma_consts(a, vl, t):
    a(f"""
    v_and_b32 v{t}, 7, v{vl}
    v_lshrrev_b32 v{t+1}, 4, v{vl}
    v_xor_b32 v{t}, v{t}, v{t+1}
    v_lshlrev_b32 v{vIP+1}, 4, v{t}
    v_lshlrev_b32 v{vIP+5}, 4, v{t}
    v_xor_b32 v{vIP+3}, 64, v{vIP+1}
    v_xor_b32 v{vIP+7}, 64, v{vIP+1}
    v_and_b32 v{t}, 31, v{vl}
    v_lshrrev_b32 v{t+1}, 5, v{vl}
    v_bfe_u32 v{t+2}, v{t}, 1, 3
    v_lshlrev_b32 v{t+1}, 2, v{t+1}
    v_xor_b32 v{t+1}, v{t+1}, v{t+2}
    v_lshlrev_b32 v{t+1}, 4, v{t+1}
    v_lshl_add_u32 v{t+1}, v{t}, 7, v{t+1}
    v_add_u32 v{vHR}, s43, v{t+1}
    v_xor_b32 v{vHR+1}, 16, v{vHR}
    v_xor_b32 v{vHR+2}, 32, v{vHR}
    v_xor_b32 v{vHR+3}, 48, v{vHR}
    """)

def gen_k2(name):
    global dma, h_reads, unwrite, st_reads, xa_build, mfma, src_reads
    a = Asm()
    REC, HA = 42, 114
    TID, LANE, QL, C1, S1, C2, S2 = 132, 133, 134, 135, 136, 137, 138
    X0 = 150
    AH, AW, AD = 2, 18, 142
    a(f"""
    s_cmp_ge_u32 s2, {K2_GRID}
    s_cbranch_scc1 K2_EXIT
    s_load_dwordx4 s[4:7], s[0:1], 0
    s_load_dwordx2 s[8:9], s[0:1], 48
    s_load_dwordx2 s[10:11], s[0:1], 64
    s_load_dwordx2 s[12:13], s[0:1], 80
    s_and_b32 s3, s2, 7
    s_lshl_b32 s3, s3, 5
    s_lshr_b32 s14, s2, 3
    s_add_u32 s3, s3, s14
    s_mul_i32 s33, s3, {BN}
    v_lshrrev_b32 v1, 6, v0
    s_nop 0
    v_readfirstlane_b32 s32, v1
    s_mov_b32 s48, -1
    s_mov_b32 s49, 0
    s_mov_b32 s50, 0
    s_mov_b32 s51, -1
    s_mov_b32 s52, 0x11111111
    s_mov_b32 s53, 0x11111111
    s_not_b64 s[54:55], s[52:53]
    s_mov_b32 s46, 0xbfb8aa3b
    s_mov_b32 s47, 0xbfb8aa3b
    s_mov_b32 s62, {ATAB_STRIDE}
    s_mov_b32 s63, {MACC_STRIDE}
    s_lshl_b32 s43, s32, 12
    s_add_u32 s43, s43, {L_HBUF}
    s_mov_b32 s56, 0
    s_mov_b32 s57, {RFAST}
    s_waitcnt lgkmcnt(0)
    s_mov_b32 s16, s4
    s_or_b32 s17, s5, {128<<16}
    s_mov_b32 s18, {N}
    s_mov_b32 s19, 0x00020000
    s_mov_b32 s20, s12
    s_mov_b32 s21, s13
    s_mov_b32 s22, 0x1200000
    s_mov_b32 s23, 0x00020000
    s_add_u32 s24, s12, {WS_POSF}
    s_addc_u32 s25, s13, 0
    s_or_b32 s25, s25, {16<<16}
    s_mov_b32 s26, {N}
    s_mov_b32 s27, 0x00020000
    s_mov_b32 s28, s8
    s_mov_b32 s29, s9
    s_mov_b32 s30, 128
    s_mov_b32 s31, 0x00020000
    s_mov_b32 s9, 0
    """)
    if DIAG:
        a(f"""
        s_lshl_b32 s15, s2, 10
        s_lshl_b32 s14, s32, 6
        s_add_u32 s15, s15, s14
        s_add_u32 s15, s15, {WS_STAMP + 0x50000}
        """)
    st_rt(a, 0); st(a, 1)
    a("K2_ROUND:")
    lane_id(a, LANE)
    a(f"""
    s_lshl_b32 s59, s32, 6
    v_add_u32 v{TID}, s59, v{LANE}
    v_lshrrev_b32 v{X0}, 2, v{TID}
    v_and_b32 v{QL}, 3, v{TID}
    v_mul_u32_u24 v{X0+1}, {TAB_STRIDE}, v{X0}
    s_lshl_b32 s14, s3, 2
    s_add_u32 s14, s14, {WS_TAB}
    s_add_u32 s59, s14, {NQ*TAB_STRIDE}
    v_cmp_gt_u32 vcc, {4*(P-NQ)}, v{TID}
    s_mov_b64 s[44:45], vcc
    buffer_load_dwordx2 v[162:163], v{X0+1}, s[20:23], s14 offen
    s_mov_b64 exec, s[44:45]
    buffer_load_dwordx2 v[164:165], v{X0+1}, s[20:23], s59 offen
    s_mov_b64 exec, -1
    v_mul_u32_u24 v{S1}, {CH}, v{X0}
    v_mov_b32 v44, -1
    v_mov_b32 v45, -1
    v_mov_b32 v46, -1
    v_mov_b32 v47, -1
    v_lshlrev_b32 v48, 4, v{TID}
    ds_write_b128 v48, v[44:47] offset:{L_META}
    v_cmp_gt_u32 vcc, {CAP*4//16-K2_THREADS}, v{TID}
    s_mov_b64 exec, vcc
    ds_write_b128 v48, v[44:47] offset:{L_META+K2_THREADS*16}
    s_mov_b64 exec, -1
    v_mov_b32 v44, 0
    v_mov_b32 v45, 0
    v_mov_b32 v46, 0
    v_mov_b32 v47, 0
    v_cmp_gt_u32 vcc, 36, v{TID}
    s_mov_b64 exec, vcc
    ds_write_b128 v48, v[44:47] offset:{L_HIST}
    s_mov_b64 exec, -1
    s_mov_b32 s39, 0
    s_cmp_lg_u32 s56, 0
    s_cbranch_scc1 K2_NOINIT
    s_cmp_lg_u32 s57, {RFAST}
    s_cbranch_scc1 K2_NOINIT
    s_mov_b32 s39, 1
    v_add_u32 v49, {ZERO_BEG}, v48
    """)
    nz = ZERO_N16 // K2_THREADS
    for r in range(nz):
        a(f"ds_write_b128 v49, v[44:47] offset:{r*K2_THREADS*16}")
    a(f"""
    v_cmp_gt_u32 vcc, {ZERO_N16-nz*K2_THREADS}, v{TID}
    s_mov_b64 exec, vcc
    ds_write_b128 v49, v[44:47] offset:{nz*K2_THREADS*16}
    s_mov_b64 exec, -1
    v_lshrrev_b32 v54, 1, v{TID}
    v_and_b32 v55, 1, v{TID}
    v_lshrrev_b32 v56, 2, v54
    v_and_b32 v57, 3, v54
    v_lshlrev_b32 v57, 4, v57
    v_mov_b32 v58, 0x3f80
    v_mov_b32 v59, 0
    v_lshlrev_b64 v[58:59], v57, v[58:59]
    v_cmp_eq_u32 vcc, v56, v55
    s_nop 1
    v_cndmask_b32 v58, 0, v58, vcc
    v_cndmask_b32 v59, 0, v59, vcc
    v_lshlrev_b32 v60, 3, v{TID}
    v_cmp_gt_u32 vcc, 16, v{TID}
    s_mov_b64 exec, vcc
    ds_write_b64 v60, v[58:59] offset:{L_OHT}
    s_mov_b64 exec, -1
    K2_NOINIT:
    """)
    dma_consts(a, LANE, X0+2)
    a(f"""
    v_mov_b32 v139, 1
    s_waitcnt lgkmcnt(0)
    s_barrier
    s_waitcnt vmcnt(0)
    """)
    st(a, 2)
    a(f"""
    v_and_b32 v{C1}, 0xffff, v162
    v_and_b32 v162, 0xffff, v163
    v_and_b32 v{C2}, 0xffff, v164
    v_and_b32 v164, 0xffff, v165
    v_add_u32 v{S2}, {NQ*CH}, v{S1}
    v_add_u32 v{S1}, v{S1}, v{C1}
    v_add_u32 v{S2}, v{S2}, v{C2}
    v_sub_u32 v{C1}, v162, v{C1}
    v_sub_u32 v{C2}, v164, v{C2}
    v_cndmask_b32 v{C2}, 0, v{C2}, s[44:45]
    """)
    for g, (vc, vs) in enumerate(((C1,S1),(C2,S2))):
        a(f"""
        v_subrev_u32 v162, s56, v{vc}
        v_min_i32 v162, s57, v162
        v_sub_u32 v162, v162, v{QL}
        v_add3_u32 v{164+g}, v{vs}, v{QL}, s56
        v_mul_u32_u24 v{164+g}, 12, v{164+g}
        """)
        for k in range(KS):
            a(f"v_cmp_lt_i32 s[{SM+2*(g*KS+k)}:{SM+1+2*(g*KS+k)}], {4*k}, v162")
    if KORD:
        for (g, k) in [(0,0),(1,0),(0,3),(1,3),(0,1),(1,1),(0,2),(1,2),(0,6),(1,6),(0,4),(1,4),(0,5),(1,5),(0,7),(1,7),(0,8),(1,8)]:
            n = g*KS+k
            a(f"s_mov_b64 exec, s[{SM+2*n}:{SM+1+2*n}]")
            a(f"s_cbranch_execz K2_SKL{n}")
            a(f"buffer_load_dwordx3 {rr(REC+4*n,3)}, v{164+g}, s[20:23], 0 offen offset:{48*k} {RLP}")
            a(f"K2_SKL{n}:")
        a("s_mov_b64 exec, -1")
    else:
      for g in range(2):
        for k in range(KS):
            n = g*KS+k
            a(f"s_mov_b64 exec, s[{SM+2*n}:{SM+1+2*n}]")
            if k >= 3 or g: a(f"s_cbranch_execz K2_SKL{g}")
            a(f"buffer_load_dwordx3 {rr(REC+4*n,3)}, v{164+g}, s[20:23], 0 offen offset:{48*k} {RLP}")
        a(f"K2_SKL{g}:\ns_mov_b64 exec, -1")
    a(f"""
    v_mov_b32 v163, {L_MISC}
    v_max_u32 v162, v{C1}, v{C2}
    ds_max_u32 v163, v162
    s_cmp_eq_u32 s39, 0
    s_cbranch_scc1 K2_NOLD
    v_lshlrev_b32 v{X0+2}, 4, v{LANE}
    s_lshl_b32 s59, s32, 10
    s_add_u32 m0, s59, {L_HBUF+8*4096}
    s_add_u32 s14, s59, {WS_WIMG}
    buffer_load_dwordx4 v{X0+2}, s[20:23], s14 offen lds
    s_min_u32 s60, s32, 4
    s_lshl_b32 s59, s60, 10
    s_add_u32 s61, s59, {L_HBUF+8*4096+12288}
    s_add_u32 s14, s59, {WS_WIMG+12288}
    s_cmp_eq_u32 s60, 4
    s_cselect_b32 s14, {WS_WIMG+32*1024}, s14
    s_cselect_b32 m0, {L_HBUF+4096}, s61
    s_nop 0
    buffer_load_dwordx4 v{X0+2}, s[20:23], s14 offen lds
    s_cmp_gt_u32 s32, 7
    s_cselect_b32 s61, 4, 0
    s_sub_u32 s61, s32, s61
    s_lshl_b32 s59, s61, 4
    s_add_u32 s59, s59, s33
    v_lshrrev_b32 v{vIP}, 3, v{LANE}
    v_add_u32 v{vIP}, s59, v{vIP}
    v_add_u32 v{vIP+2}, 8, v{vIP}
    s_lshr_b32 s59, s61, 1
    s_lshl_b32 s59, s59, 13
    s_and_b32 s60, s61, 1
    s_lshl_b32 s60, s60, 11
    s_add_u32 s59, s59, s60
    s_add_u32 m0, s59, {L_HBUF}
    s_nop 0
    buffer_load_dwordx4 {rr(vIP,2)}, s[16:19], 0 idxen offen lds
    s_add_u32 m0, s59, {L_HBUF+1024}
    s_nop 0
    buffer_load_dwordx4 {rr(vIP+2,2)}, s[16:19], 0 idxen offen lds
    v_lshlrev_b32 v{X0+2}, 1, v{LANE}
    buffer_load_ushort v166, v{X0+2}, s[28:31], 0 offen
    v_add_u32 v{X0+2}, s33, v{TID}
    buffer_load_dwordx4 v[34:37], v{X0+2}, s[24:27], 0 idxen
    """)
    if WARM:
        a(f"""
        s_lshr_b32 s59, s2, 3
        s_mul_i32 s60, s59, 782
        v_add_u32 v{X0+2}, s60, v{TID}
        v_mov_b32 v{X0+3}, 0
        buffer_load_dword v167, {rr(X0+2,2)}, s[16:19], 0 idxen offen
        v_add_u32 v{X0+2}, 768, v{X0+2}
        v_cmp_gt_u32 vcc, 14, v{TID}
        s_mov_b64 exec, vcc
        buffer_load_dword v167, {rr(X0+2,2)}, s[16:19], 0 idxen offen
        v_cmp_gt_u32 vcc, 98, v{TID}
        s_mov_b64 exec, vcc
        s_mul_i32 s60, s59, 784
        v_lshl_add_u32 v{X0+2}, v{TID}, 3, s60
        buffer_load_dword v167, v{X0+2}, s[24:27], 0 idxen
        s_mov_b64 exec, -1
        """)
    a(f"""
    s_waitcnt vmcnt({9 if WARM else 6})
    s_branch K2_RECOK
    K2_NOLD:
    s_waitcnt vmcnt(0)
    K2_RECOK:
    """)
    st(a, 3)
    st(a, 4)
    for n in range(NK):
        a(f"s_mov_b64 exec, s[{SM+2*n}:{SM+1+2*n}]")
        if n % KS >= 3 or n >= KS: a(f"s_cbranch_execz K2_SKA{n//KS}")
        a(f"""
        v_lshrrev_b32 v{HA+n}, 18, v{REC+4*n+2}
        ds_add_rtn_u32 v{REC+4*n+3}, v{HA+n}, v139 offset:{L_HIST}
        """)
        if n % KS == KS-1: a(f"K2_SKA{n//KS}:")
    a(f"""
    s_mov_b64 exec, -1
    s_waitcnt {("vmcnt(3) lgkmcnt(0)" if not DIAG else "vmcnt(5) lgkmcnt(0)") if WARM else "vmcnt(0) lgkmcnt(0)"}
    s_barrier
    """)
    st(a, 5)
    a(f"""
    v_lshlrev_b32 v150, 3, v{LANE}
    ds_read_b64 v[152:153], v150 offset:{L_HIST}
    ds_read_b32 v154, v163
    s_waitcnt lgkmcnt(0)
    v_readfirstlane_b32 s58, v154
    v_add_u32 v155, v152, v153
    s_mov_b32 s61, 0
    K2_SCAN:
    v_mov_b32 v156, v155
    s_nop 1
    v_add_u32_dpp v156, v156, v156 row_shr:1 row_mask:0xf bank_mask:0xf
    s_nop 1
    v_add_u32_dpp v156, v156, v156 row_shr:2 row_mask:0xf bank_mask:0xf
    s_nop 1
    v_add_u32_dpp v156, v156, v156 row_shr:4 row_mask:0xf bank_mask:0xf
    s_nop 1
    v_add_u32_dpp v156, v156, v156 row_shr:8 row_mask:0xf bank_mask:0xf
    s_nop 1
    v_add_u32_dpp v156, v156, v156 row_bcast:15 row_mask:0xa bank_mask:0xf
    s_nop 1
    v_add_u32_dpp v156, v156, v156 row_bcast:31 row_mask:0xc bank_mask:0xf
    s_nop 1
    v_readlane_b32 s34, v156, 63
    s_cmp_lg_u32 s57, {RFAST}
    s_cbranch_scc1 K2_CAPOK
    s_cmp_gt_u32 s58, {RFAST}
    s_cbranch_scc1 K2_TOSLOW
    s_cmp_gt_u32 s34, {CAP}
    s_cbranch_scc0 K2_CAPOK
    K2_TOSLOW:
    s_mov_b32 s57, {RSLOW}
    s_barrier
    s_branch K2_ROUND
    K2_CAPOK:
    s_cmp_lg_u32 s61, 0
    s_cbranch_scc1 K2_SCANDONE
    v_mov_b32 v157, v155
    s_nop 1
    v_add_u32_dpp v157, v155, v155 quad_perm:[1,0,3,2] row_mask:0xf bank_mask:0xf
    v_cmp_gt_u32 vcc, 31, v157
    v_cmp_gt_u32 s[44:45], s34, v156
    s_and_b64 vcc, vcc, s[44:45]
    s_mov_b32 s44, 0xaaaaaaaa
    s_mov_b32 s45, 0xaaaaaaaa
    s_and_b64 vcc, vcc, s[44:45]
    {"" if "forcepad" in ABL else "s_cbranch_vccz K2_SCANDONE"}
    v_mov_b32 v151, v157
    s_nop 1
    v_add_u32_dpp v151, v157, v157 quad_perm:[2,3,0,1] row_mask:0xf bank_mask:0xf
    v_sub_u32 v151, 0, v151
    v_and_b32 v151, 31, v151
    s_mov_b32 s44, 0x88888888
    s_mov_b32 s45, 0x88888888
    v_cndmask_b32 v151, 0, v151, s[44:45]
    v_add_u32 v155, v155, v151
    s_mov_b32 s61, 1
    s_branch K2_SCAN
    K2_SCANDONE:
    v_sub_u32 v156, v156, v155
    v_add_u32 v157, v156, v152
    ds_write_b64 v150, v[156:157] offset:{L_PREF}
    """)
    for n in range(NK):
        a(f"s_mov_b64 exec, s[{SM+2*n}:{SM+1+2*n}]")
        if n % KS >= 3 or n >= KS: a(f"s_cbranch_execz K2_SKB{n//KS}")
        a(f"ds_read_b32 v{HA+n}, v{HA+n} offset:{L_PREF}")
        if n % KS == KS-1: a(f"K2_SKB{n//KS}:")
    a("s_waitcnt lgkmcnt(0)")
    st(a, 6)
    for n in range(NK):
        a(f"s_mov_b64 exec, s[{SM+2*n}:{SM+1+2*n}]")
        if n % KS >= 3 or n >= KS: a(f"s_cbranch_execz K2_SKC{n//KS}")
        a(f"""
        v_add_lshl_u32 v{HA+n}, v{HA+n}, v{REC+4*n+3}, 2
        ds_write_b32 v{HA+n}, v{REC+4*n+2} offset:{L_META}
        v_lshlrev_b32 v{HA+n}, 1, v{HA+n}
        ds_write_b64 v{HA+n}, {rr(REC+4*n,2)} offset:{L_REC}
        """)
        if n % KS == KS-1: a(f"K2_SKC{n//KS}:")
    a(f"""
    s_mov_b64 exec, -1
    s_cmp_lg_u32 s9, 0
    s_cbranch_scc1 K2_NOATAB
    s_mov_b32 s9, 1
    v_lshlrev_b32 v162, 4, v{TID}
    v_cmp_gt_u32 vcc, 104, v{TID}
    s_mov_b64 exec, vcc
    ds_write_b128 v162, v[34:37] offset:{L_PDT}
    s_mov_b64 exec, -1
    s_cmp_lg_u32 s32, 3
    s_cbranch_scc1 K2_NOWXF
    v_lshlrev_b32 v166, 16, v166
    v_mul_f32 v166, 0xbf317218, v166
    v_lshlrev_b32 v167, 2, v{LANE}
    ds_write_b32 v167, v166 offset:{L_WXF}
    K2_NOWXF:
    v_lshlrev_b32 v167, 4, v{LANE}
    v_add_u32 v167, {L_HBUF+8*4096}, v167
    s_cmp_lt_u32 s32, 4
    s_cbranch_scc1 K2_ATABEND
    s_and_b32 s60, s32, 1
    s_lshl_b32 s59, s60, 12
    s_add_u32 s61, s59, 16384
    v_subrev_u32 v162, s61, v{vHR}
    v_xor_b32 v164, 16, v162
    v_xor_b32 v165, 32, v162
    v_xor_b32 v166, 48, v162
    ds_read_b128 {rr(AH,4)}, v162
    ds_read_b128 {rr(AH+4,4)}, v164
    ds_read_b128 {rr(AH+8,4)}, v165
    ds_read_b128 {rr(AH+12,4)}, v166
    v_add_u32 v162, s59, v167
    """)
    for s_ in range(4):
        a(f"ds_read_b128 {rr(AW+4*s_,4)}, v162 offset:{8192+1024*s_}")
    a(f"""
    v_and_b32 v164, 31, v{LANE}
    v_lshrrev_b32 v165, 5, v{LANE}
    v_mul_u32_u24 v164, {ATAB_STRIDE}, v164
    v_lshl_add_u32 v164, v165, 3, v164
    s_lshr_b32 s59, s32, 1
    s_sub_u32 s59, s59, 2
    s_mul_i32 s60, s60, {32*ATAB_STRIDE}
    s_lshl_b32 s61, s59, 6
    s_add_u32 s61, s61, s60
    s_add_u32 s61, s61, {L_ATAB}
    v_add_u32 v164, s61, v164
    s_waitcnt lgkmcnt(0)
    """)
    a(mfma(AD, AH, AW, None))
    for s_ in range(1,4): a(mfma(AD, AH+4*s_, AW+4*s_, AD))
    a("s_nop 7\ns_nop 3")
    for j in range(4):
        a(f"""
        v_pk_mul_f32 {rr(AD+4*j,2)}, {rr(AD+4*j,2)}, s[46:47]
        v_pk_mul_f32 {rr(AD+4*j+2,2)}, {rr(AD+4*j+2,2)}, s[46:47]
        v_cvt_pk_bf16_f32 v{AD+4*j}, v{AD+4*j}, v{AD+1+4*j}
        v_cvt_pk_bf16_f32 v{AD+1+4*j}, v{AD+2+4*j}, v{AD+3+4*j}
        ds_write_b64 v164, {rr(AD+4*j,2)} offset:{16*j}
        """)
        if j == 0: a("s_cmp_eq_u32 s59, 3\ns_cbranch_scc1 K2_ATABEND")
    a("K2_ATABEND:")
    for o in range(8):
        a(f"ds_read_b128 {rr(vW2+4*o,4)}, v167 offset:{1024*o}")
    a(f"""
    v_lshlrev_b32 v162, 3, v{LANE}
    v_add_u32 v162, {L_HBUF+4096}, v162
    ds_read_b64 {rr(vWX,2)}, v162
    ds_read_b64 {rr(vWX+4,2)}, v162 offset:512
    K2_NOATAB:
    s_add_u32 s59, s34, 31
    s_lshr_b32 s59, s59, 5
    s_lshr_b32 s60, s32, 2
    s_and_b32 s61, s32, 3
    s_cmp_eq_u32 s60, 0
    s_cselect_b32 s35, 0, {4*WA}
    s_cselect_b32 s36, {WA}, {WB}
    s_cmp_eq_u32 s60, 2
    s_cselect_b32 s35, {4*WA+4*WB}, s35
    s_cselect_b32 s36, {WC}, s36
    s_mul_i32 s61, s61, s36
    s_add_u32 s35, s35, s61
    s_add_u32 s36, s36, s35
    s_mul_i32 s35, s35, s59
    s_mul_i32 s36, s36, s59
    s_lshr_b32 s35, s35, 8
    s_lshr_b32 s36, s36, 8
    s_cmp_eq_u32 s60, 0
    s_cbranch_scc0 K2_P1
    s_setprio 2
    K2_P1:
    s_cmp_eq_u32 s60, 1
    s_cbranch_scc0 K2_P2
    s_setprio 1
    K2_P2:
    s_lshl_b32 s68, s35, 5
    s_lshl_b32 s69, s36, 5
    s_min_u32 s69, s69, s34
    """)
    dma_consts(a, LANE, 44)
    a(f"""
    v_and_b32 v44, 31, v{LANE}
    v_lshrrev_b32 v45, 5, v{LANE}
    s_lshl_b32 s59, s35, 7
    v_lshl_add_u32 v{vMA}, v44, 2, s59
    v_lshrrev_b32 v46, 3, v{LANE}
    v_lshl_add_u32 v{vMS}, v46, 2, s59
    v_lshlrev_b32 v{vOHB}, 3, v45
    v_add_u32 v{vOHB}, {L_OHT}, v{vOHB}
    s_lshl_b32 s59, s32, 11
    s_add_u32 s59, s59, {L_STG}
    v_lshl_add_u32 v{vSGB}, v44, 6, s59
    v_bfe_u32 v46, v{LANE}, 2, 2
    v_lshl_add_u32 v46, v45, 2, v46
    v_lshlrev_b32 v{vSR}, 6, v46
    v_bfe_u32 v46, v{LANE}, 4, 1
    v_lshl_add_u32 v{vSR}, v46, 5, v{vSR}
    v_and_b32 v46, 3, v{LANE}
    v_lshl_add_u32 v{vSR}, v46, 3, v{vSR}
    v_add_u32 v{vSR}, s59, v{vSR}
    v_mov_b32 v{vZ}, 0
    s_mov_b32 s37, 0
    s_waitcnt lgkmcnt(0)
    s_barrier
    """)
    st(a, 7)
    a(f"""
    s_cmp_ge_u32 s35, s36
    s_cbranch_scc1 K2_MAINDONE
    """)
    if 'eatest' in ABL:
        a(f"""
        s_load_dwordx2 s[76:77], s[0:1], 16
        s_waitcnt lgkmcnt(0)
        s_or_b32 s77, s77, {256<<16}
        s_mov_b32 s78, {N}
        s_mov_b32 s79, 0x00020000
        """)
    for l in src_reads(0) + dl_read(): a(l)
    a("s_mov_b32 s73, 1\ns_mov_b32 s74, 1")
    for r in range(vD+16, vD+24, 2): a(f"v_mov_b64 {rr(r,2)}, 0")
    for r in range(vST, vST+8, 2): a(f"v_mov_b64 {rr(r,2)}, 0")
    for r in range(vXA, vXA+4, 2): a(f"v_mov_b64 {rr(r,2)}, 0")
    a(f"""
    s_waitcnt lgkmcnt(0)
    v_readfirstlane_b32 s70, v{vDL}
    v_cmp_ne_u32 vcc, 0xffff, v{vDL}
    s_mov_b64 s[44:45], vcc
    s_lshr_b32 s70, s70, 4
    s_lshl_b32 s59, s32, 2
    v_mov_b32 v{vT}, s59
    s_add_u32 s60, s70, 1
    v_mov_b32 v{vT+1}, s60
    ds_write_b32 v{vT}, v{vT+1} offset:{L_MISC+16}
    """)
    for l in dma() + ps_load() + src_reads(0) + pd_read(): a(l)
    a("s_and_b32 s59, s70, -2")
    rebase(a)
    wx_reload(a)
    a(f"s_waitcnt vmcnt({0})")
    for l in h_reads(): a(l)
    for l in xa_build(-128): a(l)
    a("s_waitcnt lgkmcnt(0)")
    for l in dma() + ps_load() + src_reads(128) + dl_read(): a(l)
    a("s_mov_b32 s39, 0")
    a(mfma(vD, vXA, vWX, None))
    for s_ in range(4): a(mfma(vD, vH+4*s_, vW2+4*s_, vD))
    a("s_nop 7\ns_nop 3")
    st(a, 8)
    a("K2_LOOP:")
    a(f"""
    s_waitcnt lgkmcnt(0)
    v_cmp_ne_u32 vcc, 0xffff, v{vDL}
    s_mov_b32 s42, 0
    s_add_u32 s59, s35, 1
    s_cmp_ge_u32 s59, s36
    s_cselect_b64 s[44:45], 0, vcc
    s_cbranch_scc1 K2_NOREBASE
    s_add_u32 s59, s59, 1
    s_lshl_b32 s59, s59, 5
    s_min_u32 s59, s59, s34
    s_cmp_le_u32 s59, s38
    s_cbranch_scc1 K2_NOREBASE
    s_mov_b32 s71, s37
    v_readfirstlane_b32 s59, v{vDL}
    s_mov_b32 s42, 1
    s_lshr_b32 s59, s59, 4
    s_and_b32 s59, s59, -2
    """)
    rebase(a)
    a("K2_NOREBASE:")
    for l in pd_read(): a(l)
    D0, D1 = vD, vD+16
    _sv = (dma, h_reads, unwrite, st_reads, xa_build, mfma, src_reads)
    if 'nodma' in ABL: dma = lambda: []
    if 'nohr' in ABL: h_reads = lambda dst=vH: []
    if 'nost' in ABL: st_reads = lambda: []; unwrite = lambda: []
    if 'noxa' in ABL: xa_build = lambda e: []
    if 'nomfma' in ABL: mfma = lambda *x: "s_nop 0"
    if 'nometa' in ABL: src_reads = lambda e=0: []
    slotsA = [
        mfma_z("s74", "A", vACC+16, D1, vST),
        [mfma(vACC+16, D1+4, vST+4, vACC+16)] + st_reads() + unwrite(),
        [mfma(D1, vH, vW2+16, None)],
        [mfma(D1, vH+4, vW2+20, D1)],
        [mfma(D1, vH+8, vW2+24, D1)],
        [mfma(D1, vH+12, vW2+28, D1), "s_waitcnt vmcnt(0)"] + h_reads(),
        [mfma(D1, vXA, vWX+4, D1)] + xa_build(-128),
        [],
    ]
    elementwise(a, 0, slotsA)
    a("""
    s_cmp_eq_u32 s39, 0
    s_cbranch_scc1 K2_NOFLUSH
    """)
    if 'noflush' not in ABL: flush(a, "s72")
    a("s_mov_b32 s73, 1\ns_mov_b32 s74, 1")
    a("""
    K2_NOFLUSH:
    s_mov_b32 s39, s42
    s_mov_b32 s72, s71
    s_cmp_eq_u32 s42, 0
    s_cbranch_scc1 K2_NOWX
    """)
    wx_reload(a)
    a("K2_NOWX:")
    slotsB = [
        ["s_waitcnt lgkmcnt(0)"] + mfma_z("s73", "B", vACC, D0, vST) + dma() + ps_load(),
        [mfma(vACC, D0+4, vST+4, vACC)] + src_reads(128) + dl_read(),
        [mfma(D0, vXA, vWX, None)],
        [mfma(D0, vH, vW2, D0)],
        [mfma(D0, vH+4, vW2+4, D0)],
        [mfma(D0, vH+8, vW2+8, D0)],
        [mfma(D0, vH+12, vW2+12, D0)],
        [],
    ]
    elementwise(a, 1, slotsB)
    dma, h_reads, unwrite, st_reads, xa_build, mfma, src_reads = _sv
    a("""
    s_add_u32 s35, s35, 1
    s_cmp_lt_u32 s35, s36
    s_cbranch_scc1 K2_LOOP
    """)
    for l in mfma_z("s74", "C", vACC+16, D1, vST): a(l)
    a(mfma(vACC+16, D1+4, vST+4, vACC+16))
    a("s_nop 7\ns_nop 3")
    flush(a, "s37")
    a(f"""
    K2_MAINDONE:
    s_waitcnt vmcnt(0) lgkmcnt(0)
    """)
    st(a, 9)
    lane_id(a, 140)
    a(f"""
    s_lshl_b32 s59, s32, 6
    v_add_u32 v141, s59, v140
    s_add_u32 s56, s56, s57
    s_cmp_lt_u32 s56, s58
    s_cbranch_scc0 K2_EPI
    s_barrier
    """)
    merge(a, "A")
    a(f"""
    s_barrier
    s_branch K2_ROUND
    K2_EPI:
    """)
    vWH, vRES = 2, 34
    a(f"""
    s_cmp_gt_u32 s32, 7
    s_cbranch_scc1 K2_EPI_POS
    s_lshr_b32 s59, s32, 1
    s_lshl_b32 s59, s59, 5
    s_add_u32 s59, s59, s33
    v_lshrrev_b32 v{vIP}, 3, v140
    v_add_u32 v{vIP}, s59, v{vIP}
    v_add_u32 v{vIP+2}, 8, v{vIP}
    v_add_u32 v{vIP+4}, 16, v{vIP}
    v_add_u32 v{vIP+6}, 24, v{vIP}
    """)
    for l in dma(): a(l)
    a(f"""
    s_lshr_b32 s59, s32, 1
    s_and_b32 s60, s32, 1
    v_lshlrev_b32 v44, 4, v140
    s_lshl_b32 s14, s60, 13
    s_add_u32 s14, s14, {WS_WIMG+16*1024}
    s_add_u32 s61, s14, 4096
    """)
    for s_ in range(8):
        a(f"buffer_load_dwordx4 {rr(vWH+4*s_,4)}, v44, s[20:23], {'s14' if s_<4 else 's61'} offen offset:{1024*(s_%4)}")
    a(f"""
    s_mov_b32 s24, s10
    s_mov_b32 s25, s11
    s_mov_b32 s26, {N*128}
    s_mov_b32 s27, 0x00020000
    v_and_b32 v48, 31, v140
    v_lshrrev_b32 v49, 5, v140
    s_lshl_b32 s61, s59, 5
    v_add_u32 v50, s61, v48
    v_min_u32 v53, {NROWS-1}, v50
    v_mul_u32_u24 v53, {MACC_STRIDE}, v53
    v_lshl_add_u32 v53, v49, 7, v53
    v_add_u32 v53, {L_MACC}, v53
    v_bfe_u32 v54, v48, 1, 3
    s_lshl_b32 s61, s60, 2
    v_xor_b32 v54, s61, v54
    v_lshlrev_b32 v54, 4, v54
    v_lshl_add_u32 v54, v48, 7, v54
    v_lshl_add_u32 v54, v49, 3, v54
    v_add_u32 v54, s43, v54
    v_xor_b32 v55, 16, v54
    v_xor_b32 v59, 32, v54
    v_xor_b32 v60, 48, v54
    v_add_u32 v61, s33, v50
    v_lshlrev_b32 v61, 7, v61
    v_lshl_add_u32 v61, v49, 3, v61
    s_lshl_b32 s61, s60, 6
    v_add_u32 v61, s61, v61
    s_barrier
    """)
    merge(a, "B")
    a("s_barrier")
    if 'dumpm' in ABL:
        a(f"""
        s_add_u32 s64, s12, 0x2000000
        s_addc_u32 s65, s13, 0
        s_mov_b32 s66, 0x1000000
        s_mov_b32 s67, 0x00020000
        s_mul_i32 s68, s3, {98*MACC_STRIDE}
        v_lshlrev_b32 v62, 4, v141
        v_add_u32 v63, {L_MACC}, v62
        """)
        for r in range(4):
            a(f"""
            ds_read_b128 v[64:67], v63 offset:{r*8192}
            v_add_u32 v68, {r*8192}, v62
            v_cmp_gt_u32 vcc, {98*MACC_STRIDE}, v68
            s_waitcnt lgkmcnt(0)
            s_mov_b64 exec, vcc
            buffer_store_dwordx4 v[64:67], v68, s[64:67], s68 offen
            s_mov_b64 exec, -1
            s_nop 1
            """)
        a("s_waitcnt vmcnt(0)")
    st(a, 10)
    for s_ in range(4):
        a(f"ds_read_b128 {rr(74+8*s_,4)}, v53 offset:{32*s_}\nds_read_b128 {rr(78+8*s_,4)}, v53 offset:{32*s_+16}")
    a(f"s_waitcnt vmcnt({8})" if not DIAG else "s_waitcnt vmcnt(0)")
    for l in h_reads(): a(l)
    a(f"""
    ds_read_b64 {rr(vRES,2)}, v54
    ds_read_b64 {rr(vRES+2,2)}, v55
    ds_read_b64 {rr(vRES+4,2)}, v59
    ds_read_b64 {rr(vRES+6,2)}, v60
    s_waitcnt lgkmcnt(8)
    """)
    a("s_mov_b32 s64, 0xbf317218\ns_mov_b32 s65, 0xbf317218")
    for s_ in range(4):
        for i in range(4):
            a(f"v_pk_mul_f32 {rr(74+8*s_+2*i,2)}, {rr(74+8*s_+2*i,2)}, s[64:65]")
            a(f"v_cvt_pk_bf16_f32 v{122+4*s_+i}, v{74+8*s_+2*i}, v{75+8*s_+2*i}")
    a("s_waitcnt vmcnt(0) lgkmcnt(0)")
    a(mfma(74, vWH, vH, None))
    for s_ in range(1,4): a(mfma(74, vWH+4*s_, vH+4*s_, 74))
    for s_ in range(4): a(mfma(74, vWH+16+4*s_, 122+4*s_, 74))
    a(f"""
    v_cmp_gt_u32 vcc, {BN}, v50
    s_nop 7
    s_nop 3
    """)
    for r in range(0,16,2): a(f"v_pk_mul_f32 {rr(106+r,2)}, {rr(74+r,2)}, s[46:47]")
    for r in range(16): a(f"v_exp_f32 v{106+r}, v{106+r}")
    for j in range(4):
        for hh in range(2):
            src = vRES+2*j+hh
            a(f"v_lshlrev_b32 v{122+4*j+2*hh}, 16, v{src}\nv_and_b32 v{123+4*j+2*hh}, 0xffff0000, v{src}")
    for r in range(0,16,2): a(f"v_pk_add_f32 {rr(106+r,2)}, {rr(106+r,2)}, 1.0 op_sel_hi:[1,0]")
    for r in range(16): a(f"v_rcp_f32 v{106+r}, v{106+r}")
    a("s_nop 0")
    for r in range(0,16,2): a(f"v_pk_fma_f32 {rr(74+r,2)}, {rr(74+r,2)}, {rr(106+r,2)}, {rr(122+r,2)}")
    for r in range(0,16,2): a(f"v_cvt_pk_bf16_f32 v{96+r//2}, v{74+r}, v{75+r}")
    a("s_mov_b64 exec, vcc")
    for j in range(4):
        a(f"buffer_store_dwordx2 {rr(96+2*j,2)}, v61, s[24:27], 0 offen offset:{16*j} {OSP}")
    if DIAG: a("s_waitcnt vmcnt(0)\ns_mov_b64 exec, -1")
    st(a, 11); st_rt(a, 12)
    a(f"""
    s_endpgm
    K2_EPI_POS:
    v_subrev_u32 v50, 512, v141
    v_lshlrev_b32 v52, 4, v50
    v_add_u32 v51, s33, v50
    v_mul_u32_u24 v51, 6, v51
    v_min_u32 v53, {NROWS-1}, v50
    v_mul_u32_u24 v53, {MACC_STRIDE}, v53
    v_add_u32 v53, {L_MACC}, v53
    s_add_u32 s28, s10, {N*128}
    s_addc_u32 s29, s11, 0
    s_mov_b32 s30, {N*6}
    s_barrier
    """)
    merge(a, "C")
    a(f"""
    s_barrier
    v_cmp_gt_u32 vcc, {BN}, v50
    s_mov_b64 exec, vcc
    s_cbranch_execz K2_EXIT
    ds_read_b128 v[44:47], v53 offset:256
    ds_read_b128 v[56:59], v53 offset:272
    ds_read_b128 v[60:63], v52 offset:{L_PDT}
    s_waitcnt lgkmcnt(0)
    v_add_f32 v45, v45, v57
    v_add_f32 v46, v46, v58
    v_add_f32 v47, v47, v59
    v_add_f32 v60, v60, v45
    v_add_f32 v61, v61, v46
    v_add_f32 v62, v62, v47
    v_cvt_pk_bf16_f32 v60, v60, v61
    v_cvt_pk_bf16_f32 v62, v62, v62
    buffer_store_short v60, v51, s[28:31], 0 offen
    buffer_store_short_d16_hi v60, v51, s[28:31], 0 offen offset:2
    buffer_store_short v62, v51, s[28:31], 0 offen offset:4
    K2_EXIT:
    s_endpgm
    """)
    return a.text()
```

```python
from common import *

REMAP = int(os.environ.get('REMAP','0'))
HT = int(os.environ.get('HT','0'))
LDP = os.environ.get('LDP','nt')
STP = os.environ.get('STP','sc0 sc1')
STP2 = os.environ.get('STP2','')
K1_THREADS = 832
K1_WAVES = 13
K1_GRID = 253
K1_LDS_HIST = 0
K1_LDS_REC = 4096
K1_LDS = K1_LDS_REC + CH*12

def gen_k1(name):
    a = Asm()
    a(f"""
    s_cmp_ge_u32 s2, {K1_GRID}
    s_cbranch_scc1 K1_EXIT
    s_cmp_ge_u32 s2, {P}
    s_cbranch_scc1 K1_WEIGHTS
    s_load_dwordx4 s[4:7], s[0:1], 8
    s_load_dwordx4 s[8:11], s[0:1], 24
    s_load_dwordx2 s[12:13], s[0:1], 80
    s_load_dwordx2 s[14:15], s[0:1], 0
    """)
    stamp_rt(a, 0, 119); stamp(a, 1, 119)
    a(f"""
    v_lshlrev_b32 v1, 2, v0
    v_mov_b32 v2, 0
    ds_write_b32 v1, v2
    v_cmp_gt_u32 vcc, 800, v0
    s_mov_b64 s[38:39], vcc
    v_lshlrev_b32 v1, 4, v0
    v_lshlrev_b32 v2, 5, v0
    v_mov_b32 v3, 1
    v_readfirstlane_b32 s40, v0
    s_mul_i32 s36, s2, {CH*4}
    s_mul_i32 s37, s2, {CH*8}
    s_waitcnt lgkmcnt(0)
    s_mov_b32 s16, s4
    s_mov_b32 s17, s5
    s_mov_b32 s18, {N*6}
    s_mov_b32 s19, 0x00020000
    s_mov_b32 s20, s6
    s_mov_b32 s21, s7
    s_mov_b32 s22, {E*8}
    s_mov_b32 s23, 0x00020000
    s_mov_b32 s24, s8
    s_mov_b32 s25, s9
    s_mov_b32 s26, {E*4}
    s_mov_b32 s27, 0x00020000
    s_mov_b32 s28, s10
    s_mov_b32 s29, s11
    s_mov_b32 s30, {E*4}
    s_mov_b32 s31, 0x00020000
    s_mov_b32 s32, s12
    s_mov_b32 s33, s13
    s_mov_b32 s34, 0x1200000
    s_mov_b32 s35, 0x00020000
    s_mov_b64 exec, s[38:39]
    """)
    if REMAP:
        a(f"""
        v_lshlrev_b32 v2, 3, v0
        s_add_u32 s46, s36, 6400
        s_add_u32 s47, s37, 12800
        buffer_load_dwordx2 v[4:5], v2, s[28:31], s36 offen {LDP}
        buffer_load_dwordx2 v[6:7], v2, s[28:31], s46 offen {LDP}
        s_barrier
        buffer_load_dwordx2 v[8:9], v2, s[24:27], s36 offen {LDP}
        buffer_load_dwordx2 v[10:11], v2, s[24:27], s46 offen {LDP}
        buffer_load_dwordx4 v[12:15], v1, s[20:23], s37 offen {LDP}
        buffer_load_dwordx4 v[16:19], v1, s[20:23], s47 offen {LDP}
        """)
    else:
        a(f"""
        buffer_load_dwordx4 v[4:7], v1, s[28:31], s36 offen {LDP}
        s_barrier
        buffer_load_dwordx4 v[8:11], v1, s[24:27], s36 offen {LDP}
        buffer_load_dwordx4 v[12:15], v2, s[20:23], s37 offen {LDP}
        buffer_load_dwordx4 v[16:19], v2, s[20:23], s37 offen offset:16 {LDP}
        """)
    a(f"""
    v_subrev_u32 v30, 128, v0
    v_mul_u32_u24 v31, 6, v30
    s_mul_i32 s41, s2, 600
    v_cmp_gt_u32 vcc, 100, v30
    s_mov_b64 s[44:45], vcc
    s_mov_b64 exec, vcc
    buffer_load_ushort v32, v31, s[16:19], s41 offen
    buffer_load_ushort v33, v31, s[16:19], s41 offen offset:2
    buffer_load_ushort v34, v31, s[16:19], s41 offen offset:4
    """)
    if HT:
        a(f"""
        s_mov_b32 s48, s14
        s_mov_b32 s49, s15
        s_mov_b32 s50, {N*128}
        s_mov_b32 s51, 0x00020000
        v_lshlrev_b32 v36, 7, v30
        s_mul_i32 s41, s2, 12800
        buffer_load_dword v37, v36, s[48:51], s41 offen
        """)
    a(f"""
    s_mov_b64 exec, s[38:39]
    s_waitcnt vmcnt({(7 if HT else 6)+(1 if REMAP else 0)})
    """)
    stamp(a, 2, 119)
    for i in range(4):
        a(f"""
        v_mul_u32_u24 v{44+i}, 85599, v{4+i}
        v_lshrrev_b32 v{44+i}, 22, v{44+i}
        v_lshrrev_b32 v{68+i}, 1, v{44+i}
        v_lshlrev_b32 v{44+i}, 2, v{44+i}
        ds_add_rtn_u32 v{48+i}, v{44+i}, v3
        v_mul_u32_u24 v{68+i}, {BN}, v{68+i}
        v_sub_u32 v{68+i}, v{4+i}, v{68+i}
        """)
    a("""
    s_waitcnt lgkmcnt(0)
    s_barrier
    """)
    stamp(a, 3, 119)
    a(f"""
    s_cmp_ge_u32 s40, 64
    s_cbranch_scc1 K1_NOSCAN
    v_lshlrev_b32 v80, 5, v0
    ds_read_b128 v[84:87], v80
    ds_read_b128 v[88:91], v80 offset:16
    s_waitcnt lgkmcnt(0)
    v_add_u32 v92, v84, v85
    v_add_u32 v93, v92, v86
    v_add_u32 v94, v93, v87
    v_add_u32 v95, v94, v88
    v_add_u32 v96, v95, v89
    v_add_u32 v97, v96, v90
    v_add_u32 v98, v97, v91
    v_mov_b32 v99, v98
    s_nop 1
    v_add_u32_dpp v99, v99, v99 row_shr:1 row_mask:0xf bank_mask:0xf
    s_nop 1
    v_add_u32_dpp v99, v99, v99 row_shr:2 row_mask:0xf bank_mask:0xf
    s_nop 1
    v_add_u32_dpp v99, v99, v99 row_shr:4 row_mask:0xf bank_mask:0xf
    s_nop 1
    v_add_u32_dpp v99, v99, v99 row_shr:8 row_mask:0xf bank_mask:0xf
    s_nop 1
    v_add_u32_dpp v99, v99, v99 row_bcast:15 row_mask:0xa bank_mask:0xf
    s_nop 1
    v_add_u32_dpp v99, v99, v99 row_bcast:31 row_mask:0xc bank_mask:0xf
    v_sub_u32 v100, v99, v98
    v_add_u32 v101, v100, v84
    v_add_u32 v102, v100, v92
    v_add_u32 v103, v100, v93
    v_add_u32 v104, v100, v94
    v_add_u32 v105, v100, v95
    v_add_u32 v106, v100, v96
    v_add_u32 v107, v100, v97
    ds_write_b128 v80, v[100:103]
    ds_write_b128 v80, v[104:107] offset:16
    v_lshl_or_b32 v108, v101, 16, v100
    v_lshl_or_b32 v109, v103, 16, v102
    v_lshl_or_b32 v110, v105, 16, v104
    v_lshl_or_b32 v111, v107, 16, v106
    s_mul_i32 s41, s2, {TAB_STRIDE}
    s_add_u32 s41, s41, {WS_TAB}
    buffer_store_dwordx4 v[108:111], v1, s[32:35], s41 offen {STP2}
    v_mov_b32 v112, {CH | (CH<<16)}
    v_mov_b32 v113, v112
    v_mov_b32 v114, v112
    v_mov_b32 v115, v112
    s_mov_b64 exec, 1
    buffer_store_dwordx4 v[112:115], v1, s[32:35], s41 offen offset:1024 {STP2}
    s_mov_b64 exec, -1
    s_waitcnt lgkmcnt(0)
    K1_NOSCAN:
    s_barrier
    """)
    stamp(a, 4, 119)
    for i in range(4):
        a(f"ds_read_b32 v{80+i}, v{44+i}")
    a("s_waitcnt vmcnt(0)")
    stamp(a, 5, 119)
    for i in range(4):
        a(f"v_lshl_or_b32 v{68+i}, v{68+i}, 20, v{8+i}")
    a("s_waitcnt lgkmcnt(0)")
    for i in range(4):
        a(f"""
        v_add_u32 v{80+i}, v{80+i}, v{48+i}
        v_mul_u32_u24 v{80+i}, 12, v{80+i}
        v_add_u32 v{80+i}, {K1_LDS_REC}, v{80+i}
        ds_write2_b32 v{80+i}, v{12+2*i}, v{13+2*i} offset0:0 offset1:1
        ds_write_b32 v{80+i}, v{68+i} offset:8
        """)
    a(f"""
    s_mov_b64 exec, s[44:45]
    v_lshlrev_b32 v32, 16, v32
    v_lshlrev_b32 v33, 16, v33
    v_lshlrev_b32 v34, 16, v34
    v_mov_b32 v35, 0
    v_lshlrev_b32 v31, 4, v30
    s_mul_i32 s41, s2, 1600
    s_add_u32 s41, s41, {WS_POSF}
    buffer_store_dwordx4 v[32:35], v31, s[32:35], s41 offen {STP2}
    s_mov_b64 exec, s[38:39]
    s_waitcnt lgkmcnt(0)
    s_barrier
    """)
    stamp(a, 6, 119)
    a(f"""
    ds_read_b128 v[4:7], v1 offset:{K1_LDS_REC}
    ds_read_b128 v[8:11], v1 offset:{K1_LDS_REC+12800}
    ds_read_b128 v[12:15], v1 offset:{K1_LDS_REC+25600}
    s_mul_i32 s42, s2, {CH*12}
    s_add_u32 s43, s42, 12800
    s_add_u32 s44, s42, 25600
    s_waitcnt lgkmcnt(2)
    buffer_store_dwordx4 v[4:7], v1, s[32:35], s42 offen {STP}
    s_waitcnt lgkmcnt(1)
    buffer_store_dwordx4 v[8:11], v1, s[32:35], s43 offen {STP}
    s_waitcnt lgkmcnt(0)
    buffer_store_dwordx4 v[12:15], v1, s[32:35], s44 offen {STP}
    """)
    stamp(a, 7, 119)
    if DIAG: a("s_waitcnt vmcnt(0)")
    stamp(a, 8, 119); stamp_rt(a, 9, 119)
    stamp_dump(a, 10, 119, 0, "s[32:35]", 30)
    for _ in range(int(os.environ.get('K1SLEEP','0'))):
        a("s_sleep 36")
    a(f"""
    K1_EXIT:
    s_endpgm
    """)
    a(f"""
    K1_WEIGHTS:
    s_load_dwordx2 s[4:5], s[0:1], 40
    s_load_dwordx2 s[6:7], s[0:1], 56
    s_load_dwordx2 s[12:13], s[0:1], 80
    v_lshrrev_b32 v1, 6, v0
    s_nop 0
    v_readfirstlane_b32 s40, v1
    s_sub_u32 s41, s2, {P}
    s_mul_i32 s41, s41, 13
    s_add_u32 s40, s40, s41
    s_cmp_gt_u32 s40, 32
    s_cbranch_scc1 K1_EXIT
    v_and_b32 v1, 63, v0
    v_and_b32 v2, 31, v1
    v_lshrrev_b32 v3, 5, v1
    s_waitcnt lgkmcnt(0)
    s_mov_b32 s32, s12
    s_mov_b32 s33, s13
    s_mov_b32 s34, 0x1200000
    s_mov_b32 s35, 0x00020000
    s_cmp_lt_u32 s40, 16
    s_cselect_b32 s16, s4, s6
    s_cselect_b32 s17, s5, s7
    s_mov_b32 s47, {128*128}
    s_cselect_b32 s18, {133*128}, s47
    s_mov_b32 s19, 0x00020000
    s_cmp_eq_u32 s40, 32
    s_cbranch_scc1 K1_WXC
    s_cmp_lt_u32 s40, 16
    s_cbranch_scc0 K1_WH
    s_cmp_lt_u32 s40, 8
    s_cselect_b32 s42, 64, 0
    s_lshr_b32 s43, s40, 2
    s_and_b32 s43, s43, 1
    s_and_b32 s44, s40, 3
    s_branch K1_WGO
    K1_WH:
    s_sub_u32 s45, s40, 16
    s_lshr_b32 s43, s45, 3
    s_and_b32 s44, s45, 3
    s_and_b32 s45, s45, 4
    s_lshl_b32 s42, s45, 4
    K1_WGO:
    ; K0 = s42 + 8*s44 ; C0 = 32*s43
    s_lshl_b32 s44, s44, 3
    s_add_u32 s42, s42, s44
    s_lshl_b32 s42, s42, 7
    s_lshl_b32 s43, s43, 6
    s_add_u32 s42, s42, s43
    v_lshlrev_b32 v4, 12, v3
    v_lshl_add_u32 v4, v2, 1, v4
    """)
    for j in range(8):
        a(f"buffer_load_ushort v{8+j}, v4, s[16:19], s42 offen offset:{128*j}")
    a(f"""
    s_lshl_b32 s46, s40, 10
    s_add_u32 s46, s46, {WS_WIMG}
    v_lshlrev_b32 v5, 4, v1
    s_cmp_lt_u32 s40, 8
    s_cselect_b32 s47, 0xbfb8aa3b, 1.0
    s_waitcnt vmcnt(0)
    """)
    for j in range(8):
        a(f"v_lshlrev_b32 v{8+j}, 16, v{8+j}\nv_mul_f32 v{8+j}, s47, v{8+j}")
    a(f"""
    v_cvt_pk_bf16_f32 v16, v8, v9
    v_cvt_pk_bf16_f32 v17, v10, v11
    v_cvt_pk_bf16_f32 v18, v12, v13
    v_cvt_pk_bf16_f32 v19, v14, v15
    buffer_store_dwordx4 v[16:19], v5, s[32:35], s46 offen
    s_endpgm
    K1_WXC:
    s_mov_b32 s16, s4
    s_mov_b32 s17, s5
    s_mov_b32 s18, {133*128}
    s_mov_b32 s42, {128*128}
    v_lshlrev_b32 v4, 1, v2
    """)
    for t in range(2):
        for r in range(5):
            a(f"buffer_load_ushort v{8+5*t+r}, v4, s[16:19], s42 offen offset:{128*r+64*t}")
    a(f"""
    v_cmp_eq_u32 vcc, 0, v3
    v_lshlrev_b32 v5, 3, v1
    s_mov_b32 s46, {WS_WIMG + 32*1024}
    s_waitcnt vmcnt(0)
    """)
    for r in range(8,18):
        a(f"v_lshlrev_b32 v{r}, 16, v{r}\nv_mul_f32 v{r}, 0xbfb8aa3b, v{r}")
    for t in range(2):
        b = 8+5*t
        a(f"""
        v_cvt_pk_bf16_f32 v20, v{b+1}, v{b+2}
        v_cvt_pk_bf16_f32 v21, v{b+3}, v{b+4}
        v_cvt_pk_bf16_f32 v26, v{b}, 0
        v_lshlrev_b32 v26, 16, v26
        v_sub_f32 v27, v{b}, v26
        v_cvt_pk_bf16_f32 v{b}, v26, v27
        v_cndmask_b32 v{22+2*t}, v{b}, v20, vcc
        v_cndmask_b32 v{23+2*t}, 0, v21, vcc
        """)
    a("""
    buffer_store_dwordx2 v[22:23], v5, s[32:35], s46 offen
    buffer_store_dwordx2 v[24:25], v5, s[32:35], s46 offen offset:512
    s_endpgm
    """)
    return a.text()
```

```python
from common import *

K2_WAVES = 12
K2_THREADS = 64*K2_WAVES
K2_GRID = 256
NQ = K2_THREADS//4
CAP = 3456
L_HIST = 0
L_MISC = 512
L_PREF = 576
L_OHT  = 1152
L_WXF  = 1280
L_META = 1536
L_REC  = L_META + CAP*4
L_PDT  = L_REC + CAP*8
L_ATAB = L_PDT + 104*16
ATAB_STRIDE = 208
L_MACC = L_ATAB + 64*ATAB_STRIDE
MACC_STRIDE = 288
NROWS = 98 + K2_WAVES - 1
L_STG  = L_MACC + NROWS*MACC_STRIDE
STG_SZ = 2048
L_HBUF = (L_STG + K2_WAVES*STG_SZ + 127)//128*128
K2_LDS = L_HBUF + K2_WAVES*4096
ZERO_BEG = L_MACC
ZERO_N16 = (L_STG + K2_WAVES*STG_SZ - L_MACC)//16
assert K2_LDS <= 163840, K2_LDS

vSR, vZ = 0, 1
vW2, vWX, vACC, vD, vH, vXA, vST, vT, vIP, vPS, vPD, vHR = 2, 34, 42, 74, 106, 122, 126, 134, 142, 150, 154, 158
vSE = vPS+3
vDL, vMA, vMS, vOHB, vSGB, vSG = 162, 163, 164, 165, 166, 167
K2_VGPRS = 168 if not DIAG else 168
vSTAMP = None
KS = 9
NK = 2*KS
RFAST = 4*KS
RSLOW = 12
SM = 64
KORD = int(os.environ.get('KORD','0'))
RLP = os.environ.get('RLP','')
OSP = os.environ.get('OSP','')
OUTLDS = int(os.environ.get('OUTLDS','0'))
WARM = int(os.environ.get('WARM','0'))
WA, WB, WC = [int(x) for x in os.environ.get('WTS','35,19,10').split(',')]
assert 4*(WA+WB+WC) == 256
ABL = os.environ.get('ABL','').split(',')

def rr(b, n): return f"v[{b}:{b+n-1}]"

def mfma(d, a_, b_, c):
    cs = rr(c,16) if c is not None else "0"
    return f"v_mfma_f32_32x32x16_bf16 {rr(d,16)}, {rr(a_,4)}, {rr(b_,4)}, {cs}"

def st(a, i):
    if not DIAG: return
    a(f"""
    s_memtime s[100:101]
    s_waitcnt lgkmcnt(0)
    s_mov_b64 vcc, exec
    s_mov_b64 exec, 1
    v_mov_b32 v141, s100
    v_mov_b32 v140, 0
    buffer_store_dword v141, v140, s[20:23], s15 offen offset:{4*i}
    s_mov_b64 exec, vcc
    """)
def st_rt(a, i):
    if not DIAG: return
    a(f"""
    s_memrealtime s[100:101]
    s_waitcnt lgkmcnt(0)
    s_mov_b64 vcc, exec
    s_mov_b64 exec, 1
    v_mov_b32 v141, s100
    v_mov_b32 v140, 0
    buffer_store_dword v141, v140, s[20:23], s15 offen offset:{4*i}
    s_mov_b64 exec, vcc
    """)

def lane_id(a, v):
    a(f"v_mbcnt_lo_u32_b32 v{v}, -1, 0\nv_mbcnt_hi_u32_b32 v{v}, -1, v{v}")

def elementwise(a, t, slots):
    D = vD + 16*t
    if 'noew' in ABL:
        for sl in slots:
            for l in sl: a(l)
            a("s_nop 7\ns_nop 7")
        return
    for g in range(4):
        ps = (2*g, 2*g+1)
        tmp = [vT + 4*(g%2), vT + 4*(g%2) + 2]
        for l in slots[2*g]: a(l)
        for p, tm in zip(ps, tmp):
            a(f"v_exp_f32 v{tm}, v{D+2*p}\nv_exp_f32 v{tm+1}, v{D+2*p+1}")
        for tm in tmp:
            a(f"v_pk_add_f32 {rr(tm,2)}, {rr(tm,2)}, 1.0 op_sel_hi:[1,0]")
        for l in slots[2*g+1]: a(l)
        for tm in tmp:
            a(f"v_rcp_f32 v{tm}, v{tm}\nv_rcp_f32 v{tm+1}, v{tm+1}")
        for p, tm in zip(ps, tmp):
            a(f"v_pk_mul_f32 {rr(tm,2)}, {rr(tm,2)}, {rr(D+2*p,2)}")
        for p, tm in zip(ps, tmp):
            a(f"v_cvt_pk_bf16_f32 v{D+p}, v{tm}, v{tm+1}")

def dma():
    out = []
    for i in range(4):
        out += [f"s_add_u32 m0, s43, {1024*i}" if i else "s_mov_b32 m0, s43", "s_nop 0",
                f"buffer_load_dwordx4 {rr(vIP+2*i,2)}, s[16:19], 0 idxen offen lds"]
    return out

def h_reads(dst=vH):
    return [f"ds_read_b128 {rr(dst+4*s,4)}, v{vHR+s}" for s in range(4)]

def pd_read():
    return ["s_mov_b64 exec, s[44:45]",
            f"ds_read_b128 {rr(vPD,4)}, v{vDL} offset:{L_PDT}",
            "s_mov_b64 exec, -1"]

def ps_load():
    ex = []
    if 'eatest' in ABL:
        ex = ["s_mov_b64 exec, s[48:49]", f"buffer_load_dwordx2 {rr(vPS,2)}, v{vSE}, s[76:79], 0 idxen nt"]
    return ex + ["s_mov_b64 exec, s[50:51]",
            f"buffer_load_dwordx3 {rr(vPS,3)}, v{vSE}, s[24:27], 0 idxen",
            "s_mov_b64 exec, -1"]

def xa_build(eaoff, wait="s_waitcnt lgkmcnt(4)"):
    return [f"v_lshrrev_b32 v{vSG}, 1, v{vDL}",
            f"v_add_u32 v{vSG}, v{vSG}, v{vSGB}",
            f"v_add_u32 v{vDL}, v{vDL}, v{vOHB}",
            f"v_lshlrev_b32 v{vT}, 1, v{vMA}",
            wait,
            "s_and_b64 exec, s[44:45], s[50:51]",
            f"v_pk_add_f32 {rr(vPD,2)}, {rr(vPD,2)}, {rr(vPS,2)} neg_lo:[0,1] neg_hi:[0,1]",
            f"v_sub_f32 v{vPD+2}, v{vPD+2}, v{vPS+2}",
            f"v_mul_f32 v{vPD+3}, v{vPD}, v{vPD}",
            f"v_fmac_f32 v{vPD+3}, v{vPD+1}, v{vPD+1}",
            f"v_fmac_f32 v{vPD+3}, v{vPD+2}, v{vPD+2}",
            f"v_cvt_pk_bf16_f32 v{vXA+1}, v{vPD+1}, v{vPD+2}",
            f"v_cvt_pk_bf16_f32 v{vXA}, v{vPD+3}, v{vPD+3}",
            f"v_cvt_pk_bf16_f32 v{vPD}, 1.0, v{vPD}",
            f"ds_write2_b32 v{vSG}, v{vPD}, v{vXA+1} offset0:0 offset1:1",
            "s_and_b64 exec, s[44:45], s[48:49]",
            f"ds_read_b64 {rr(vXA,2)}, v{vT} offset:{L_REC + 2*eaoff}",
            "s_mov_b64 exec, s[44:45]",
            f"ds_read_b64 {rr(vXA+2,2)}, v{vDL}",
            "s_mov_b64 exec, -1",
            "s_and_b64 s[40:41], s[44:45], s[50:51]"]

def unwrite():
    return ["s_mov_b64 exec, s[40:41]",
            f"ds_write2_b32 v{vSG}, v{vZ}, v{vZ} offset0:0 offset1:1",
            "s_mov_b64 exec, -1"]

def dl_read():
    return [f"ds_read_u16 v{vDL}, v{vMA} offset:{L_META+2}",
            f"v_add_u32 v{vMA}, 128, v{vMA}"]

def src_reads(eoff=128):
    return [f"ds_read_u16 v{vIP+2*i}, v{vMS} offset:{L_META+32*i}" for i in range(4)] + \
           [f"ds_read_u16 v{vSE}, v{vMA} offset:{L_META+eoff}",
            f"v_add_u32 v{vMS}, 128, v{vMS}"]

def st_reads():
    return [f"ds_read_b64_tr_b16 {rr(vST+4*s+2*jq,2)}, v{vSR} offset:{1024*s+512*jq}" for s in range(2) for jq in range(2)]

def rebase(a):
    a(f"""
    s_sub_u32 s60, s59, s37
    s_mov_b32 s37, s59
    s_lshl_b32 s61, s60, 4
    s_lshl_b32 s60, s60, 3
    v_subrev_u32 v{vOHB}, s61, v{vOHB}
    v_subrev_u32 v{vSGB}, s60, v{vSGB}
    s_lshl_b32 s59, s37, 2
    v_mov_b32 v{vT}, s59
    ds_read_b32 v{vT+1}, v{vT} offset:{L_PREF+32}
    s_waitcnt lgkmcnt(0)
    v_readfirstlane_b32 s38, v{vT+1}
    """)

def wx_reload(a):
    lane_id(a, vT)
    a(f"""
    s_lshl_b32 s59, s37, 1
    s_add_u32 s59, s59, {L_ATAB}
    v_and_b32 v{vT+1}, 31, v{vT}
    v_lshrrev_b32 v{vT}, 5, v{vT}
    v_lshl_add_u32 v{vT}, v{vT}, 3, s59
    v_mad_u32_u24 v{vT}, v{vT+1}, s62, v{vT}
    v_add_u32 v{vT+1}, {32*ATAB_STRIDE}, v{vT}
    ds_read2_b32 {rr(vWX+2,2)}, v{vT} offset0:0 offset1:1
    ds_read2_b32 {rr(vWX+6,2)}, v{vT+1} offset0:0 offset1:1
    """)

def flush(a, sbase):
    A, X, S = vPD, vPD+1, vPD+2
    R = vD+8
    Y = R
    lane_id(a, X)
    a(f"""
    v_bfe_u32 v{Y}, v{X}, 2, 3
    v_add_u32 v{Y}, {sbase}, v{Y}
    v_lshlrev_b32 v{A}, 2, v{Y}
    ds_read_b32 v{S}, v{A} offset:{L_PREF}
    v_cmp_eq_u32 s[66:67], s70, v{Y}
    s_add_u32 s59, s32, 97
    v_mov_b32 v{A}, s59
    v_and_b32 v{S+1}, 3, v{X}
    v_lshrrev_b32 v{X}, 5, v{X}
    v_lshlrev_b32 v{X}, 4, v{X}
    ds_read_b128 {rr(vT,4)}, v{X} offset:{L_WXF}
    ds_read_b128 {rr(vT+4,4)}, v{X} offset:{L_WXF + 32}
    s_waitcnt lgkmcnt(2)
    v_cmp_gt_u32 vcc, {BN}, v{Y}
    v_cmp_gt_u32 s[64:65], s69, v{S}
    s_and_b64 s[64:65], s[64:65], vcc
    v_cmp_le_u32 vcc, s68, v{S}
    s_and_b64 s[64:65], s[64:65], vcc
    s_andn2_b64 s[66:67], s[66:67], vcc
    v_cndmask_b32 v{Y}, v{Y}, v{A}, s[66:67]
    s_or_b64 s[64:65], s[64:65], s[66:67]
    v_mad_u32_u24 v{A}, v{Y}, s63, v{X}
    v_lshl_add_u32 v{A}, v{S+1}, 2, v{A}
    v_add_u32 v{A}, {L_MACC}, v{A}
    s_and_b64 s[66:67], s[64:65], s[52:53]
    s_and_b64 s[64:65], s[64:65], s[54:55]
    """)
    for qd in range(4):
        t, j = qd>>1, 2*(qd&1)
        if qd:
            a(f"""
            ds_read_b128 {rr(vT,4)}, v{X} offset:{L_WXF + (32*t+8*j)*4}
            ds_read_b128 {rr(vT+4,4)}, v{X} offset:{L_WXF + (32*t+8*j+8)*4}
            """)
        a(f"""
        s_mov_b64 exec, s[66:67]
        ds_read_b128 {rr(R,4)}, v{A} offset:{t*128+j*32}
        ds_read_b128 {rr(R+4,4)}, v{A} offset:{t*128+j*32+32}
        s_mov_b64 exec, -1
        s_waitcnt lgkmcnt(2)
        """)
        for i in range(0,8,2):
            if qd == 0 and i == 0:
                a(f"v_pk_mul_f32 {rr(S,2)}, {rr(vACC,2)}, {rr(vT,2)}")
            else:
                a(f"v_pk_fma_f32 {rr(S,2)}, {rr(vACC+8*qd+i,2)}, {rr(vT+i,2)}, {rr(S,2)}")
        a("s_waitcnt lgkmcnt(0)")
        for i in range(0,8,2):
            a(f"v_pk_add_f32 {rr(R+i,2)}, {rr(R+i,2)}, {rr(vACC+8*qd+i,2)}")
        a(f"""
        s_mov_b64 exec, s[66:67]
        ds_write_b128 v{A}, {rr(R,4)} offset:{t*128+j*32}
        ds_write_b128 v{A}, {rr(R+4,4)} offset:{t*128+j*32+32}
        s_mov_b64 exec, -1
        """)
    a(f"""
    s_mov_b64 exec, s[64:65]
    ds_read_b32 v{X}, v{A} offset:256
    v_add_f32 v{S}, v{S}, v{S+1}
    s_waitcnt lgkmcnt(0)
    v_add_f32 v{X}, v{X}, v{S}
    ds_write_b32 v{A}, v{X} offset:256
    s_mov_b64 exec, -1
    """)

def mfma_z(flag, tag, d, a_, b_):
    return [f"s_cmp_eq_u32 {flag}, 0",
            f"s_cbranch_scc1 K2_MZ{tag}a",
            mfma(d, a_, b_, None),
            f"s_mov_b32 {flag}, 0",
            f"s_branch K2_MZ{tag}b",
            f"K2_MZ{tag}a:",
            mfma(d, a_, b_, d),
            f"K2_MZ{tag}b:"]

def merge(a, tag):
    a(f"""
    v_lshlrev_b32 v74, 2, v140
    ds_read2_b32 v[76:77], v74 offset0:{(L_MISC+16)//4} offset1:{(L_MISC+20)//4}
    s_waitcnt lgkmcnt(0)
    v_cmp_lt_u32 vcc, v76, v77
    v_cmp_ne_u32 s[64:65], 0, v76
    s_and_b64 vcc, vcc, s[64:65]
    s_and_b32 s64, vcc_lo, {(1<<(K2_WAVES-1))-1}
    s_cmp_eq_u32 s64, {(1<<(K2_WAVES-1))-1}
    {"s_branch" if "slowmerge" in ABL else "s_cbranch_scc0"} K2_MSLOW{tag}
    s_cmp_eq_u32 s32, 0
    s_cbranch_scc1 K2_MERGED{tag}
    s_mul_i32 s64, s70, {MACC_STRIDE}
    s_add_u32 s64, s64, {L_MACC}
    s_mul_i32 s65, s32, {MACC_STRIDE}
    s_add_u32 s65, s65, {L_MACC + 97*MACC_STRIDE}
    v_add_u32 v75, s64, v74
    v_add_u32 v76, s65, v74
    v_mov_b32 v77, 0
    ds_read_b32 v78, v75
    ds_read_b32 v79, v76
    s_mov_b64 exec, 0xff
    ds_read_b32 v80, v75 offset:256
    ds_read_b32 v81, v76 offset:256
    s_mov_b64 exec, -1
    s_waitcnt lgkmcnt(0)
    v_add_f32 v78, v78, v79
    v_add_f32 v80, v80, v81
    ds_write_b32 v75, v78
    ds_write_b32 v76, v77
    s_mov_b64 exec, 0xff
    ds_write_b32 v75, v80 offset:256
    ds_write_b32 v76, v77 offset:256
    s_mov_b64 exec, -1
    s_waitcnt lgkmcnt(0)
    s_branch K2_MERGED{tag}
    K2_MSLOW{tag}:
    s_cmp_gt_u32 s32, 1
    s_cbranch_scc1 K2_MERGED{tag}
    v_cmp_gt_u32 vcc, 72, v141
    s_mov_b64 exec, vcc
    v_mov_b32 v74, {L_MISC+16}
    ds_read_b128 v[80:83], v74
    ds_read_b128 v[84:87], v74 offset:16
    ds_read_b128 v[88:91], v74 offset:32
    v_lshlrev_b32 v75, 2, v141
    v_add_u32 v75, {L_MACC}, v75
    v_mov_b32 v76, 0
    """)
    for w in range(1,K2_WAVES):
        a(f"ds_read_b32 v{92+w}, v75 offset:{(97+w)*MACC_STRIDE}")
    a("s_waitcnt lgkmcnt(0)")
    for w in range(1,K2_WAVES):
        a(f"""
        v_max_u32 v77, 1, v{80+w}
        v_mul_u32_u24 v77, {MACC_STRIDE}, v77
        v_add_u32 v77, v77, v75
        v_subrev_u32 v77, {MACC_STRIDE}, v77
        ds_read_b32 v78, v77
        ds_write_b32 v75, v76 offset:{(97+w)*MACC_STRIDE}
        s_waitcnt lgkmcnt(0)
        v_add_f32 v78, v78, v{92+w}
        ds_write_b32 v77, v78
        """)
    a(f"""
    s_waitcnt lgkmcnt(0)
    s_mov_b64 exec, -1
    K2_MERGED{tag}:
    """)

def out_store(a):
    lane_id(a, 64)
    a(f"""
    s_movk_i32 s14, 144
    s_lshl_b32 s59, s32, 6
    v_add_u32 v64, s59, v64
    v_lshrrev_b32 v65, 3, v64
    v_and_b32 v66, 7, v64
    v_lshlrev_b32 v66, 4, v66
    v_mad_u32_u24 v67, v65, s14, v66
    ds_read_b128 v[68:71], v67 offset:{L_REC}
    ds_read_b128 v[72:75], v67 offset:{L_REC+96*144}
    s_lshl_b32 s59, s33, 7
    v_lshlrev_b32 v65, 4, v64
    v_cmp_gt_u32 vcc, 16, v64
    s_add_u32 s60, s59, {96*128}
    s_waitcnt lgkmcnt(1)
    buffer_store_dwordx4 v[68:71], v65, s[24:27], s59 offen {OSP}
    s_mov_b64 exec, vcc
    s_waitcnt lgkmcnt(0)
    buffer_store_dwordx4 v[72:75], v65, s[24:27], s60 offen {OSP}
    """)

def dma_consts(a, vl, t):
    a(f"""
    v_and_b32 v{t}, 7, v{vl}
    v_lshrrev_b32 v{t+1}, 4, v{vl}
    v_xor_b32 v{t}, v{t}, v{t+1}
    v_lshlrev_b32 v{vIP+1}, 4, v{t}
    v_lshlrev_b32 v{vIP+5}, 4, v{t}
    v_xor_b32 v{vIP+3}, 64, v{vIP+1}
    v_xor_b32 v{vIP+7}, 64, v{vIP+1}
    v_and_b32 v{t}, 31, v{vl}
    v_lshrrev_b32 v{t+1}, 5, v{vl}
    v_bfe_u32 v{t+2}, v{t}, 1, 3
    v_lshlrev_b32 v{t+1}, 2, v{t+1}
    v_xor_b32 v{t+1}, v{t+1}, v{t+2}
    v_lshlrev_b32 v{t+1}, 4, v{t+1}
    v_lshl_add_u32 v{t+1}, v{t}, 7, v{t+1}
    v_add_u32 v{vHR}, s43, v{t+1}
    v_xor_b32 v{vHR+1}, 16, v{vHR}
    v_xor_b32 v{vHR+2}, 32, v{vHR}
    v_xor_b32 v{vHR+3}, 48, v{vHR}
    """)

def gen_k2(name):
    global dma, h_reads, unwrite, st_reads, xa_build, mfma, src_reads
    a = Asm()
    REC, HA = 42, 114
    TID, LANE, QL, C1, S1, C2, S2 = 132, 133, 134, 135, 136, 137, 138
    X0 = 150
    AH, AW, AD = 2, 18, 142
    a(f"""
    s_cmp_ge_u32 s2, {K2_GRID}
    s_cbranch_scc1 K2_EXIT
    s_load_dwordx4 s[4:7], s[0:1], 0
    s_load_dwordx2 s[8:9], s[0:1], 48
    s_load_dwordx2 s[10:11], s[0:1], 64
    s_load_dwordx2 s[12:13], s[0:1], 80
    s_and_b32 s3, s2, 7
    s_lshl_b32 s3, s3, 5
    s_lshr_b32 s14, s2, 3
    s_add_u32 s3, s3, s14
    s_mul_i32 s33, s3, {BN}
    v_lshrrev_b32 v1, 6, v0
    s_nop 0
    v_readfirstlane_b32 s32, v1
    s_mov_b32 s48, -1
    s_mov_b32 s49, 0
    s_mov_b32 s50, 0
    s_mov_b32 s51, -1
    s_mov_b32 s52, 0x11111111
    s_mov_b32 s53, 0x11111111
    s_not_b64 s[54:55], s[52:53]
    s_mov_b32 s46, 0xbfb8aa3b
    s_mov_b32 s47, 0xbfb8aa3b
    s_mov_b32 s62, {ATAB_STRIDE}
    s_mov_b32 s63, {MACC_STRIDE}
    s_lshl_b32 s43, s32, 12
    s_add_u32 s43, s43, {L_HBUF}
    s_mov_b32 s56, 0
    s_mov_b32 s57, {RFAST}
    s_waitcnt lgkmcnt(0)
    s_mov_b32 s16, s4
    s_or_b32 s17, s5, {128<<16}
    s_mov_b32 s18, {N}
    s_mov_b32 s19, 0x00020000
    s_mov_b32 s20, s12
    s_mov_b32 s21, s13
    s_mov_b32 s22, 0x1200000
    s_mov_b32 s23, 0x00020000
    s_add_u32 s24, s12, {WS_POSF}
    s_addc_u32 s25, s13, 0
    s_or_b32 s25, s25, {16<<16}
    s_mov_b32 s26, {N}
    s_mov_b32 s27, 0x00020000
    s_mov_b32 s28, s8
    s_mov_b32 s29, s9
    s_mov_b32 s30, 128
    s_mov_b32 s31, 0x00020000
    s_mov_b32 s9, 0
    """)
    if DIAG:
        a(f"""
        s_lshl_b32 s15, s2, 10
        s_lshl_b32 s14, s32, 6
        s_add_u32 s15, s15, s14
        s_add_u32 s15, s15, {WS_STAMP + 0x50000}
        """)
    st_rt(a, 0); st(a, 1)
    a("K2_ROUND:")
    lane_id(a, LANE)
    a(f"""
    s_lshl_b32 s59, s32, 6
    v_add_u32 v{TID}, s59, v{LANE}
    v_lshrrev_b32 v{X0}, 2, v{TID}
    v_and_b32 v{QL}, 3, v{TID}
    v_mul_u32_u24 v{X0+1}, {TAB_STRIDE}, v{X0}
    s_lshl_b32 s14, s3, 2
    s_add_u32 s14, s14, {WS_TAB}
    s_add_u32 s59, s14, {NQ*TAB_STRIDE}
    v_cmp_gt_u32 vcc, {4*(P-NQ)}, v{TID}
    s_mov_b64 s[44:45], vcc
    buffer_load_dwordx2 v[162:163], v{X0+1}, s[20:23], s14 offen
    s_mov_b64 exec, s[44:45]
    buffer_load_dwordx2 v[164:165], v{X0+1}, s[20:23], s59 offen
    s_mov_b64 exec, -1
    v_mul_u32_u24 v{S1}, {CH}, v{X0}
    v_mov_b32 v44, -1
    v_mov_b32 v45, -1
    v_mov_b32 v46, -1
    v_mov_b32 v47, -1
    v_lshlrev_b32 v48, 4, v{TID}
    ds_write_b128 v48, v[44:47] offset:{L_META}
    v_cmp_gt_u32 vcc, {CAP*4//16-K2_THREADS}, v{TID}
    s_mov_b64 exec, vcc
    ds_write_b128 v48, v[44:47] offset:{L_META+K2_THREADS*16}
    s_mov_b64 exec, -1
    v_mov_b32 v44, 0
    v_mov_b32 v45, 0
    v_mov_b32 v46, 0
    v_mov_b32 v47, 0
    v_cmp_gt_u32 vcc, 36, v{TID}
    s_mov_b64 exec, vcc
    ds_write_b128 v48, v[44:47] offset:{L_HIST}
    s_mov_b64 exec, -1
    s_mov_b32 s39, 0
    s_cmp_lg_u32 s56, 0
    s_cbranch_scc1 K2_NOINIT
    s_cmp_lg_u32 s57, {RFAST}
    s_cbranch_scc1 K2_NOINIT
    s_mov_b32 s39, 1
    v_add_u32 v49, {ZERO_BEG}, v48
    """)
    nz = ZERO_N16 // K2_THREADS
    for r in range(nz):
        a(f"ds_write_b128 v49, v[44:47] offset:{r*K2_THREADS*16}")
    a(f"""
    v_cmp_gt_u32 vcc, {ZERO_N16-nz*K2_THREADS}, v{TID}
    s_mov_b64 exec, vcc
    ds_write_b128 v49, v[44:47] offset:{nz*K2_THREADS*16}
    s_mov_b64 exec, -1
    v_lshrrev_b32 v54, 1, v{TID}
    v_and_b32 v55, 1, v{TID}
    v_lshrrev_b32 v56, 2, v54
    v_and_b32 v57, 3, v54
    v_lshlrev_b32 v57, 4, v57
    v_mov_b32 v58, 0x3f80
    v_mov_b32 v59, 0
    v_lshlrev_b64 v[58:59], v57, v[58:59]
    v_cmp_eq_u32 vcc, v56, v55
    s_nop 1
    v_cndmask_b32 v58, 0, v58, vcc
    v_cndmask_b32 v59, 0, v59, vcc
    v_lshlrev_b32 v60, 3, v{TID}
    v_cmp_gt_u32 vcc, 16, v{TID}
    s_mov_b64 exec, vcc
    ds_write_b64 v60, v[58:59] offset:{L_OHT}
    s_mov_b64 exec, -1
    K2_NOINIT:
    """)
    dma_consts(a, LANE, X0+2)
    a(f"""
    v_mov_b32 v139, 1
    s_waitcnt lgkmcnt(0)
    s_barrier
    s_waitcnt vmcnt(0)
    """)
    st(a, 2)
    a(f"""
    v_and_b32 v{C1}, 0xffff, v162
    v_and_b32 v162, 0xffff, v163
    v_and_b32 v{C2}, 0xffff, v164
    v_and_b32 v164, 0xffff, v165
    v_add_u32 v{S2}, {NQ*CH}, v{S1}
    v_add_u32 v{S1}, v{S1}, v{C1}
    v_add_u32 v{S2}, v{S2}, v{C2}
    v_sub_u32 v{C1}, v162, v{C1}
    v_sub_u32 v{C2}, v164, v{C2}
    v_cndmask_b32 v{C2}, 0, v{C2}, s[44:45]
    """)
    for g, (vc, vs) in enumerate(((C1,S1),(C2,S2))):
        a(f"""
        v_subrev_u32 v162, s56, v{vc}
        v_min_i32 v162, s57, v162
        v_sub_u32 v162, v162, v{QL}
        v_add3_u32 v{164+g}, v{vs}, v{QL}, s56
        v_mul_u32_u24 v{164+g}, 12, v{164+g}
        """)
        for k in range(KS):
            a(f"v_cmp_lt_i32 s[{SM+2*(g*KS+k)}:{SM+1+2*(g*KS+k)}], {4*k}, v162")
    if KORD:
        for (g, k) in [(0,0),(1,0),(0,3),(1,3),(0,1),(1,1),(0,2),(1,2),(0,6),(1,6),(0,4),(1,4),(0,5),(1,5),(0,7),(1,7),(0,8),(1,8)]:
            n = g*KS+k
            a(f"s_mov_b64 exec, s[{SM+2*n}:{SM+1+2*n}]")
            a(f"s_cbranch_execz K2_SKL{n}")
            a(f"buffer_load_dwordx3 {rr(REC+4*n,3)}, v{164+g}, s[20:23], 0 offen offset:{48*k} {RLP}")
            a(f"K2_SKL{n}:")
        a("s_mov_b64 exec, -1")
    else:
      for g in range(2):
        for k in range(KS):
            n = g*KS+k
            a(f"s_mov_b64 exec, s[{SM+2*n}:{SM+1+2*n}]")
            if k >= 3 or g: a(f"s_cbranch_execz K2_SKL{g}")
            a(f"buffer_load_dwordx3 {rr(REC+4*n,3)}, v{164+g}, s[20:23], 0 offen offset:{48*k} {RLP}")
        a(f"K2_SKL{g}:\ns_mov_b64 exec, -1")
    a(f"""
    v_mov_b32 v163, {L_MISC}
    v_max_u32 v162, v{C1}, v{C2}
    ds_max_u32 v163, v162
    s_cmp_eq_u32 s39, 0
    s_cbranch_scc1 K2_NOLD
    v_lshlrev_b32 v{X0+2}, 4, v{LANE}
    s_lshl_b32 s59, s32, 10
    s_add_u32 m0, s59, {L_HBUF+8*4096}
    s_add_u32 s14, s59, {WS_WIMG}
    buffer_load_dwordx4 v{X0+2}, s[20:23], s14 offen lds
    s_min_u32 s60, s32, 4
    s_lshl_b32 s59, s60, 10
    s_add_u32 s61, s59, {L_HBUF+8*4096+12288}
    s_add_u32 s14, s59, {WS_WIMG+12288}
    s_cmp_eq_u32 s60, 4
    s_cselect_b32 s14, {WS_WIMG+32*1024}, s14
    s_cselect_b32 m0, {L_HBUF+4096}, s61
    s_nop 0
    buffer_load_dwordx4 v{X0+2}, s[20:23], s14 offen lds
    s_cmp_gt_u32 s32, 7
    s_cselect_b32 s61, 4, 0
    s_sub_u32 s61, s32, s61
    s_lshl_b32 s59, s61, 4
    s_add_u32 s59, s59, s33
    v_lshrrev_b32 v{vIP}, 3, v{LANE}
    v_add_u32 v{vIP}, s59, v{vIP}
    v_add_u32 v{vIP+2}, 8, v{vIP}
    s_lshr_b32 s59, s61, 1
    s_lshl_b32 s59, s59, 13
    s_and_b32 s60, s61, 1
    s_lshl_b32 s60, s60, 11
    s_add_u32 s59, s59, s60
    s_add_u32 m0, s59, {L_HBUF}
    s_nop 0
    buffer_load_dwordx4 {rr(vIP,2)}, s[16:19], 0 idxen offen lds
    s_add_u32 m0, s59, {L_HBUF+1024}
    s_nop 0
    buffer_load_dwordx4 {rr(vIP+2,2)}, s[16:19], 0 idxen offen lds
    v_lshlrev_b32 v{X0+2}, 1, v{LANE}
    buffer_load_ushort v166, v{X0+2}, s[28:31], 0 offen
    v_add_u32 v{X0+2}, s33, v{TID}
    buffer_load_dwordx4 v[34:37], v{X0+2}, s[24:27], 0 idxen
    """)
    if WARM:
        a(f"""
        s_lshr_b32 s59, s2, 3
        s_mul_i32 s60, s59, 782
        v_add_u32 v{X0+2}, s60, v{TID}
        v_mov_b32 v{X0+3}, 0
        buffer_load_dword v167, {rr(X0+2,2)}, s[16:19], 0 idxen offen
        v_add_u32 v{X0+2}, 768, v{X0+2}
        v_cmp_gt_u32 vcc, 14, v{TID}
        s_mov_b64 exec, vcc
        buffer_load_dword v167, {rr(X0+2,2)}, s[16:19], 0 idxen offen
        v_cmp_gt_u32 vcc, 98, v{TID}
        s_mov_b64 exec, vcc
        s_mul_i32 s60, s59, 784
        v_lshl_add_u32 v{X0+2}, v{TID}, 3, s60
        buffer_load_dword v167, v{X0+2}, s[24:27], 0 idxen
        s_mov_b64 exec, -1
        """)
    a(f"""
    s_waitcnt vmcnt({9 if WARM else 6})
    s_branch K2_RECOK
    K2_NOLD:
    s_waitcnt vmcnt(0)
    K2_RECOK:
    """)
    st(a, 3)
    st(a, 4)
    for n in range(NK):
        a(f"s_mov_b64 exec, s[{SM+2*n}:{SM+1+2*n}]")
        if n % KS >= 3 or n >= KS: a(f"s_cbranch_execz K2_SKA{n//KS}")
        a(f"""
        v_lshrrev_b32 v{HA+n}, 18, v{REC+4*n+2}
        ds_add_rtn_u32 v{REC+4*n+3}, v{HA+n}, v139 offset:{L_HIST}
        """)
        if n % KS == KS-1: a(f"K2_SKA{n//KS}:")
    a(f"""
    s_mov_b64 exec, -1
    s_waitcnt {("vmcnt(3) lgkmcnt(0)" if not DIAG else "vmcnt(5) lgkmcnt(0)") if WARM else "vmcnt(0) lgkmcnt(0)"}
    s_barrier
    """)
    st(a, 5)
    a(f"""
    v_lshlrev_b32 v150, 3, v{LANE}
    ds_read_b64 v[152:153], v150 offset:{L_HIST}
    ds_read_b32 v154, v163
    s_waitcnt lgkmcnt(0)
    v_readfirstlane_b32 s58, v154
    v_add_u32 v155, v152, v153
    s_mov_b32 s61, 0
    K2_SCAN:
    v_mov_b32 v156, v155
    s_nop 1
    v_add_u32_dpp v156, v156, v156 row_shr:1 row_mask:0xf bank_mask:0xf
    s_nop 1
    v_add_u32_dpp v156, v156, v156 row_shr:2 row_mask:0xf bank_mask:0xf
    s_nop 1
    v_add_u32_dpp v156, v156, v156 row_shr:4 row_mask:0xf bank_mask:0xf
    s_nop 1
    v_add_u32_dpp v156, v156, v156 row_shr:8 row_mask:0xf bank_mask:0xf
    s_nop 1
    v_add_u32_dpp v156, v156, v156 row_bcast:15 row_mask:0xa bank_mask:0xf
    s_nop 1
    v_add_u32_dpp v156, v156, v156 row_bcast:31 row_mask:0xc bank_mask:0xf
    s_nop 1
    v_readlane_b32 s34, v156, 63
    s_cmp_lg_u32 s57, {RFAST}
    s_cbranch_scc1 K2_CAPOK
    s_cmp_gt_u32 s58, {RFAST}
    s_cbranch_scc1 K2_TOSLOW
    s_cmp_gt_u32 s34, {CAP}
    s_cbranch_scc0 K2_CAPOK
    K2_TOSLOW:
    s_mov_b32 s57, {RSLOW}
    s_barrier
    s_branch K2_ROUND
    K2_CAPOK:
    s_cmp_lg_u32 s61, 0
    s_cbranch_scc1 K2_SCANDONE
    v_mov_b32 v157, v155
    s_nop 1
    v_add_u32_dpp v157, v155, v155 quad_perm:[1,0,3,2] row_mask:0xf bank_mask:0xf
    v_cmp_gt_u32 vcc, 31, v157
    v_cmp_gt_u32 s[44:45], s34, v156
    s_and_b64 vcc, vcc, s[44:45]
    s_mov_b32 s44, 0xaaaaaaaa
    s_mov_b32 s45, 0xaaaaaaaa
    s_and_b64 vcc, vcc, s[44:45]
    {"" if "forcepad" in ABL else "s_cbranch_vccz K2_SCANDONE"}
    v_mov_b32 v151, v157
    s_nop 1
    v_add_u32_dpp v151, v157, v157 quad_perm:[2,3,0,1] row_mask:0xf bank_mask:0xf
    v_sub_u32 v151, 0, v151
    v_and_b32 v151, 31, v151
    s_mov_b32 s44, 0x88888888
    s_mov_b32 s45, 0x88888888
    v_cndmask_b32 v151, 0, v151, s[44:45]
    v_add_u32 v155, v155, v151
    s_mov_b32 s61, 1
    s_branch K2_SCAN
    K2_SCANDONE:
    v_sub_u32 v156, v156, v155
    v_add_u32 v157, v156, v152
    ds_write_b64 v150, v[156:157] offset:{L_PREF}
    """)
    for n in range(NK):
        a(f"s_mov_b64 exec, s[{SM+2*n}:{SM+1+2*n}]")
        if n % KS >= 3 or n >= KS: a(f"s_cbranch_execz K2_SKB{n//KS}")
        a(f"ds_read_b32 v{HA+n}, v{HA+n} offset:{L_PREF}")
        if n % KS == KS-1: a(f"K2_SKB{n//KS}:")
    a("s_waitcnt lgkmcnt(0)")
    st(a, 6)
    for n in range(NK):
        a(f"s_mov_b64 exec, s[{SM+2*n}:{SM+1+2*n}]")
        if n % KS >= 3 or n >= KS: a(f"s_cbranch_execz K2_SKC{n//KS}")
        a(f"""
        v_add_lshl_u32 v{HA+n}, v{HA+n}, v{REC+4*n+3}, 2
        ds_write_b32 v{HA+n}, v{REC+4*n+2} offset:{L_META}
        v_lshlrev_b32 v{HA+n}, 1, v{HA+n}
        ds_write_b64 v{HA+n}, {rr(REC+4*n,2)} offset:{L_REC}
        """)
        if n % KS == KS-1: a(f"K2_SKC{n//KS}:")
    a(f"""
    s_mov_b64 exec, -1
    s_cmp_lg_u32 s9, 0
    s_cbranch_scc1 K2_NOATAB
    s_mov_b32 s9, 1
    v_lshlrev_b32 v162, 4, v{TID}
    v_cmp_gt_u32 vcc, 104, v{TID}
    s_mov_b64 exec, vcc
    ds_write_b128 v162, v[34:37] offset:{L_PDT}
    s_mov_b64 exec, -1
    s_cmp_lg_u32 s32, 3
    s_cbranch_scc1 K2_NOWXF
    v_lshlrev_b32 v166, 16, v166
    v_mul_f32 v166, 0xbf317218, v166
    v_lshlrev_b32 v167, 2, v{LANE}
    ds_write_b32 v167, v166 offset:{L_WXF}
    K2_NOWXF:
    v_lshlrev_b32 v167, 4, v{LANE}
    v_add_u32 v167, {L_HBUF+8*4096}, v167
    s_cmp_lt_u32 s32, 4
    s_cbranch_scc1 K2_ATABEND
    s_and_b32 s60, s32, 1
    s_lshl_b32 s59, s60, 12
    s_add_u32 s61, s59, 16384
    v_subrev_u32 v162, s61, v{vHR}
    v_xor_b32 v164, 16, v162
    v_xor_b32 v165, 32, v162
    v_xor_b32 v166, 48, v162
    ds_read_b128 {rr(AH,4)}, v162
    ds_read_b128 {rr(AH+4,4)}, v164
    ds_read_b128 {rr(AH+8,4)}, v165
    ds_read_b128 {rr(AH+12,4)}, v166
    v_add_u32 v162, s59, v167
    """)
    for s_ in range(4):
        a(f"ds_read_b128 {rr(AW+4*s_,4)}, v162 offset:{8192+1024*s_}")
    a(f"""
    v_and_b32 v164, 31, v{LANE}
    v_lshrrev_b32 v165, 5, v{LANE}
    v_mul_u32_u24 v164, {ATAB_STRIDE}, v164
    v_lshl_add_u32 v164, v165, 3, v164
    s_lshr_b32 s59, s32, 1
    s_sub_u32 s59, s59, 2
    s_mul_i32 s60, s60, {32*ATAB_STRIDE}
    s_lshl_b32 s61, s59, 6
    s_add_u32 s61, s61, s60
    s_add_u32 s61, s61, {L_ATAB}
    v_add_u32 v164, s61, v164
    s_waitcnt lgkmcnt(0)
    """)
    a(mfma(AD, AH, AW, None))
    for s_ in range(1,4): a(mfma(AD, AH+4*s_, AW+4*s_, AD))
    a("s_nop 7\ns_nop 3")
    for j in range(4):
        a(f"""
        v_pk_mul_f32 {rr(AD+4*j,2)}, {rr(AD+4*j,2)}, s[46:47]
        v_pk_mul_f32 {rr(AD+4*j+2,2)}, {rr(AD+4*j+2,2)}, s[46:47]
        v_cvt_pk_bf16_f32 v{AD+4*j}, v{AD+4*j}, v{AD+1+4*j}
        v_cvt_pk_bf16_f32 v{AD+1+4*j}, v{AD+2+4*j}, v{AD+3+4*j}
        ds_write_b64 v164, {rr(AD+4*j,2)} offset:{16*j}
        """)
        if j == 0: a("s_cmp_eq_u32 s59, 3\ns_cbranch_scc1 K2_ATABEND")
    a("K2_ATABEND:")
    for o in range(8):
        a(f"ds_read_b128 {rr(vW2+4*o,4)}, v167 offset:{1024*o}")
    a(f"""
    v_lshlrev_b32 v162, 3, v{LANE}
    v_add_u32 v162, {L_HBUF+4096}, v162
    ds_read_b64 {rr(vWX,2)}, v162
    ds_read_b64 {rr(vWX+4,2)}, v162 offset:512
    K2_NOATAB:
    s_add_u32 s59, s34, 31
    s_lshr_b32 s59, s59, 5
    s_lshr_b32 s60, s32, 2
    s_and_b32 s61, s32, 3
    s_cmp_eq_u32 s60, 0
    s_cselect_b32 s35, 0, {4*WA}
    s_cselect_b32 s36, {WA}, {WB}
    s_cmp_eq_u32 s60, 2
    s_cselect_b32 s35, {4*WA+4*WB}, s35
    s_cselect_b32 s36, {WC}, s36
    s_mul_i32 s61, s61, s36
    s_add_u32 s35, s35, s61
    s_add_u32 s36, s36, s35
    s_mul_i32 s35, s35, s59
    s_mul_i32 s36, s36, s59
    s_lshr_b32 s35, s35, 8
    s_lshr_b32 s36, s36, 8
    s_cmp_eq_u32 s60, 0
    s_cbranch_scc0 K2_P1
    s_setprio 2
    K2_P1:
    s_cmp_eq_u32 s60, 1
    s_cbranch_scc0 K2_P2
    s_setprio 1
    K2_P2:
    s_lshl_b32 s68, s35, 5
    s_lshl_b32 s69, s36, 5
    s_min_u32 s69, s69, s34
    """)
    dma_consts(a, LANE, 44)
    a(f"""
    v_and_b32 v44, 31, v{LANE}
    v_lshrrev_b32 v45, 5, v{LANE}
    s_lshl_b32 s59, s35, 7
    v_lshl_add_u32 v{vMA}, v44, 2, s59
    v_lshrrev_b32 v46, 3, v{LANE}
    v_lshl_add_u32 v{vMS}, v46, 2, s59
    v_lshlrev_b32 v{vOHB}, 3, v45
    v_add_u32 v{vOHB}, {L_OHT}, v{vOHB}
    s_lshl_b32 s59, s32, 11
    s_add_u32 s59, s59, {L_STG}
    v_lshl_add_u32 v{vSGB}, v44, 6, s59
    v_bfe_u32 v46, v{LANE}, 2, 2
    v_lshl_add_u32 v46, v45, 2, v46
    v_lshlrev_b32 v{vSR}, 6, v46
    v_bfe_u32 v46, v{LANE}, 4, 1
    v_lshl_add_u32 v{vSR}, v46, 5, v{vSR}
    v_and_b32 v46, 3, v{LANE}
    v_lshl_add_u32 v{vSR}, v46, 3, v{vSR}
    v_add_u32 v{vSR}, s59, v{vSR}
    v_mov_b32 v{vZ}, 0
    s_mov_b32 s37, 0
    s_waitcnt lgkmcnt(0)
    s_barrier
    """)
    st(a, 7)
    a(f"""
    s_cmp_ge_u32 s35, s36
    s_cbranch_scc1 K2_MAINDONE
    """)
    if 'eatest' in ABL:
        a(f"""
        s_load_dwordx2 s[76:77], s[0:1], 16
        s_waitcnt lgkmcnt(0)
        s_or_b32 s77, s77, {256<<16}
        s_mov_b32 s78, {N}
        s_mov_b32 s79, 0x00020000
        """)
    for l in src_reads(0) + dl_read(): a(l)
    a("s_mov_b32 s73, 1\ns_mov_b32 s74, 1")
    for r in range(vD+16, vD+24, 2): a(f"v_mov_b64 {rr(r,2)}, 0")
    for r in range(vST, vST+8, 2): a(f"v_mov_b64 {rr(r,2)}, 0")
    for r in range(vXA, vXA+4, 2): a(f"v_mov_b64 {rr(r,2)}, 0")
    a(f"""
    s_waitcnt lgkmcnt(0)
    v_readfirstlane_b32 s70, v{vDL}
    v_cmp_ne_u32 vcc, 0xffff, v{vDL}
    s_mov_b64 s[44:45], vcc
    s_lshr_b32 s70, s70, 4
    s_lshl_b32 s59, s32, 2
    v_mov_b32 v{vT}, s59
    s_add_u32 s60, s70, 1
    v_mov_b32 v{vT+1}, s60
    ds_write_b32 v{vT}, v{vT+1} offset:{L_MISC+16}
    """)
    for l in dma() + ps_load() + src_reads(0) + pd_read(): a(l)
    a("s_and_b32 s59, s70, -2")
    rebase(a)
    wx_reload(a)
    a(f"s_waitcnt vmcnt({0})")
    for l in h_reads(): a(l)
    for l in xa_build(-128): a(l)
    a("s_waitcnt lgkmcnt(0)")
    for l in dma() + ps_load() + src_reads(128) + dl_read(): a(l)
    a("s_mov_b32 s39, 0")
    a(mfma(vD, vXA, vWX, None))
    for s_ in range(4): a(mfma(vD, vH+4*s_, vW2+4*s_, vD))
    a("s_nop 7\ns_nop 3")
    st(a, 8)
    a("K2_LOOP:")
    a(f"""
    s_waitcnt lgkmcnt(0)
    v_cmp_ne_u32 vcc, 0xffff, v{vDL}
    s_mov_b32 s42, 0
    s_add_u32 s59, s35, 1
    s_cmp_ge_u32 s59, s36
    s_cselect_b64 s[44:45], 0, vcc
    s_cbranch_scc1 K2_NOREBASE
    s_add_u32 s59, s59, 1
    s_lshl_b32 s59, s59, 5
    s_min_u32 s59, s59, s34
    s_cmp_le_u32 s59, s38
    s_cbranch_scc1 K2_NOREBASE
    s_mov_b32 s71, s37
    v_readfirstlane_b32 s59, v{vDL}
    s_mov_b32 s42, 1
    s_lshr_b32 s59, s59, 4
    s_and_b32 s59, s59, -2
    """)
    rebase(a)
    a("K2_NOREBASE:")
    for l in pd_read(): a(l)
    D0, D1 = vD, vD+16
    _sv = (dma, h_reads, unwrite, st_reads, xa_build, mfma, src_reads)
    if 'nodma' in ABL: dma = lambda: []
    if 'nohr' in ABL: h_reads = lambda dst=vH: []
    if 'nost' in ABL: st_reads = lambda: []; unwrite = lambda: []
    if 'noxa' in ABL: xa_build = lambda e: []
    if 'nomfma' in ABL: mfma = lambda *x: "s_nop 0"
    if 'nometa' in ABL: src_reads = lambda e=0: []
    slotsA = [
        mfma_z("s74", "A", vACC+16, D1, vST),
        [mfma(vACC+16, D1+4, vST+4, vACC+16)] + st_reads() + unwrite(),
        [mfma(D1, vH, vW2+16, None)],
        [mfma(D1, vH+4, vW2+20, D1)],
        [mfma(D1, vH+8, vW2+24, D1)],
        [mfma(D1, vH+12, vW2+28, D1), "s_waitcnt vmcnt(0)"] + h_reads(),
        [mfma(D1, vXA, vWX+4, D1)] + xa_build(-128),
        [],
    ]
    elementwise(a, 0, slotsA)
    a("""
    s_cmp_eq_u32 s39, 0
    s_cbranch_scc1 K2_NOFLUSH
    """)
    if 'noflush' not in ABL: flush(a, "s72")
    a("s_mov_b32 s73, 1\ns_mov_b32 s74, 1")
    a("""
    K2_NOFLUSH:
    s_mov_b32 s39, s42
    s_mov_b32 s72, s71
    s_cmp_eq_u32 s42, 0
    s_cbranch_scc1 K2_NOWX
    """)
    wx_reload(a)
    a("K2_NOWX:")
    slotsB = [
        ["s_waitcnt lgkmcnt(0)"] + mfma_z("s73", "B", vACC, D0, vST) + dma() + ps_load(),
        [mfma(vACC, D0+4, vST+4, vACC)] + src_reads(128) + dl_read(),
        [mfma(D0, vXA, vWX, None)],
        [mfma(D0, vH, vW2, D0)],
        [mfma(D0, vH+4, vW2+4, D0)],
        [mfma(D0, vH+8, vW2+8, D0)],
        [mfma(D0, vH+12, vW2+12, D0)],
        [],
    ]
    elementwise(a, 1, slotsB)
    dma, h_reads, unwrite, st_reads, xa_build, mfma, src_reads = _sv
    a("""
    s_add_u32 s35, s35, 1
    s_cmp_lt_u32 s35, s36
    s_cbranch_scc1 K2_LOOP
    """)
    for l in mfma_z("s74", "C", vACC+16, D1, vST): a(l)
    a(mfma(vACC+16, D1+4, vST+4, vACC+16))
    a("s_nop 7\ns_nop 3")
    flush(a, "s37")
    a(f"""
    K2_MAINDONE:
    s_waitcnt vmcnt(0) lgkmcnt(0)
    """)
    st(a, 9)
    lane_id(a, 140)
    a(f"""
    s_lshl_b32 s59, s32, 6
    v_add_u32 v141, s59, v140
    s_add_u32 s56, s56, s57
    s_cmp_lt_u32 s56, s58
    s_cbranch_scc0 K2_EPI
    s_barrier
    """)
    merge(a, "A")
    a(f"""
    s_barrier
    s_branch K2_ROUND
    K2_EPI:
    s_mov_b32 s24, s10
    s_mov_b32 s25, s11
    s_mov_b32 s26, {N*128}
    s_mov_b32 s27, 0x00020000
    """)
    vWH, vRES = 2, 34
    a(f"""
    s_cmp_gt_u32 s32, 7
    s_cbranch_scc1 K2_EPI_POS
    s_lshr_b32 s59, s32, 1
    s_lshl_b32 s59, s59, 5
    s_add_u32 s59, s59, s33
    v_lshrrev_b32 v{vIP}, 3, v140
    v_add_u32 v{vIP}, s59, v{vIP}
    v_add_u32 v{vIP+2}, 8, v{vIP}
    v_add_u32 v{vIP+4}, 16, v{vIP}
    v_add_u32 v{vIP+6}, 24, v{vIP}
    """)
    for l in dma(): a(l)
    a(f"""
    s_lshr_b32 s59, s32, 1
    s_and_b32 s60, s32, 1
    v_lshlrev_b32 v44, 4, v140
    s_lshl_b32 s14, s60, 13
    s_add_u32 s14, s14, {WS_WIMG+16*1024}
    s_add_u32 s61, s14, 4096
    """)
    for s_ in range(8):
        a(f"buffer_load_dwordx4 {rr(vWH+4*s_,4)}, v44, s[20:23], {'s14' if s_<4 else 's61'} offen offset:{1024*(s_%4)}")
    a(f"""
    s_mov_b32 s24, s10
    s_mov_b32 s25, s11
    s_mov_b32 s26, {N*128}
    s_mov_b32 s27, 0x00020000
    v_and_b32 v48, 31, v140
    v_lshrrev_b32 v49, 5, v140
    s_lshl_b32 s61, s59, 5
    v_add_u32 v50, s61, v48
    v_min_u32 v53, {NROWS-1}, v50
    v_mul_u32_u24 v53, {MACC_STRIDE}, v53
    v_lshl_add_u32 v53, v49, 7, v53
    v_add_u32 v53, {L_MACC}, v53
    v_bfe_u32 v54, v48, 1, 3
    s_lshl_b32 s61, s60, 2
    v_xor_b32 v54, s61, v54
    v_lshlrev_b32 v54, 4, v54
    v_lshl_add_u32 v54, v48, 7, v54
    v_lshl_add_u32 v54, v49, 3, v54
    v_add_u32 v54, s43, v54
    v_xor_b32 v55, 16, v54
    v_xor_b32 v59, 32, v54
    v_xor_b32 v60, 48, v54
    v_add_u32 v61, s33, v50
    v_lshlrev_b32 v61, 7, v61
    v_lshl_add_u32 v61, v49, 3, v61
    s_lshl_b32 s61, s60, 6
    v_add_u32 v61, s61, v61
    s_barrier
    """)
    merge(a, "B")
    a("s_barrier")
    if 'dumpm' in ABL:
        a(f"""
        s_add_u32 s64, s12, 0x2000000
        s_addc_u32 s65, s13, 0
        s_mov_b32 s66, 0x1000000
        s_mov_b32 s67, 0x00020000
        s_mul_i32 s68, s3, {98*MACC_STRIDE}
        v_lshlrev_b32 v62, 4, v141
        v_add_u32 v63, {L_MACC}, v62
        """)
        for r in range(4):
            a(f"""
            ds_read_b128 v[64:67], v63 offset:{r*8192}
            v_add_u32 v68, {r*8192}, v62
            v_cmp_gt_u32 vcc, {98*MACC_STRIDE}, v68
            s_waitcnt lgkmcnt(0)
            s_mov_b64 exec, vcc
            buffer_store_dwordx4 v[64:67], v68, s[64:67], s68 offen
            s_mov_b64 exec, -1
            s_nop 1
            """)
        a("s_waitcnt vmcnt(0)")
    st(a, 10)
    for s_ in range(4):
        a(f"ds_read_b128 {rr(74+8*s_,4)}, v53 offset:{32*s_}\nds_read_b128 {rr(78+8*s_,4)}, v53 offset:{32*s_+16}")
    a(f"s_waitcnt vmcnt({8})" if not DIAG else "s_waitcnt vmcnt(0)")
    for l in h_reads(): a(l)
    a(f"""
    ds_read_b64 {rr(vRES,2)}, v54
    ds_read_b64 {rr(vRES+2,2)}, v55
    ds_read_b64 {rr(vRES+4,2)}, v59
    ds_read_b64 {rr(vRES+6,2)}, v60
    s_waitcnt lgkmcnt(8)
    """)
    a("s_mov_b32 s64, 0xbf317218\ns_mov_b32 s65, 0xbf317218")
    for s_ in range(4):
        for i in range(4):
            a(f"v_pk_mul_f32 {rr(74+8*s_+2*i,2)}, {rr(74+8*s_+2*i,2)}, s[64:65]")
            a(f"v_cvt_pk_bf16_f32 v{122+4*s_+i}, v{74+8*s_+2*i}, v{75+8*s_+2*i}")
    a("s_waitcnt vmcnt(0) lgkmcnt(0)")
    a(mfma(74, vWH, vH, None))
    for s_ in range(1,4): a(mfma(74, vWH+4*s_, vH+4*s_, 74))
    for s_ in range(4): a(mfma(74, vWH+16+4*s_, 122+4*s_, 74))
    a(f"""
    v_cmp_gt_u32 vcc, {BN}, v50
    s_nop 7
    s_nop 3
    """)
    for r in range(0,16,2): a(f"v_pk_mul_f32 {rr(106+r,2)}, {rr(74+r,2)}, s[46:47]")
    for r in range(16): a(f"v_exp_f32 v{106+r}, v{106+r}")
    for j in range(4):
        for hh in range(2):
            src = vRES+2*j+hh
            a(f"v_lshlrev_b32 v{122+4*j+2*hh}, 16, v{src}\nv_and_b32 v{123+4*j+2*hh}, 0xffff0000, v{src}")
    for r in range(0,16,2): a(f"v_pk_add_f32 {rr(106+r,2)}, {rr(106+r,2)}, 1.0 op_sel_hi:[1,0]")
    for r in range(16): a(f"v_rcp_f32 v{106+r}, v{106+r}")
    a("s_nop 0")
    for r in range(0,16,2): a(f"v_pk_fma_f32 {rr(74+r,2)}, {rr(74+r,2)}, {rr(106+r,2)}, {rr(122+r,2)}")
    for r in range(0,16,2): a(f"v_cvt_pk_bf16_f32 v{96+r//2}, v{74+r}, v{75+r}")
    if OUTLDS:
        a(f"""
        v_mul_u32_u24 v62, 144, v50
        v_lshl_add_u32 v62, v49, 3, v62
        s_lshl_b32 s61, s60, 6
        v_add_u32 v62, s61, v62
        """)
        for j in range(4):
            a(f"ds_write_b64 v62, {rr(96+2*j,2)} offset:{L_REC+16*j}")
        a("s_waitcnt lgkmcnt(0)\ns_barrier")
        out_store(a)
    else:
        a("s_mov_b64 exec, vcc")
        for j in range(4):
            a(f"buffer_store_dwordx2 {rr(96+2*j,2)}, v61, s[24:27], 0 offen offset:{16*j} {OSP}")
    if DIAG: a("s_waitcnt vmcnt(0)\ns_mov_b64 exec, -1")
    st(a, 11); st_rt(a, 12)
    a(f"""
    s_endpgm
    K2_EPI_POS:
    v_subrev_u32 v50, 512, v141
    v_lshlrev_b32 v52, 4, v50
    v_add_u32 v51, s33, v50
    v_mul_u32_u24 v51, 6, v51
    v_min_u32 v53, {NROWS-1}, v50
    v_mul_u32_u24 v53, {MACC_STRIDE}, v53
    v_add_u32 v53, {L_MACC}, v53
    s_add_u32 s28, s10, {N*128}
    s_addc_u32 s29, s11, 0
    s_mov_b32 s30, {N*6}
    s_barrier
    """)
    merge(a, "C")
    a(f"""
    s_barrier
    v_cmp_gt_u32 vcc, {BN}, v50
    s_mov_b64 exec, vcc
    s_cbranch_execz {"K2_POSDONE" if OUTLDS else "K2_EXIT"}
    ds_read_b128 v[44:47], v53 offset:256
    ds_read_b128 v[56:59], v53 offset:272
    ds_read_b128 v[60:63], v52 offset:{L_PDT}
    s_waitcnt lgkmcnt(0)
    v_add_f32 v45, v45, v57
    v_add_f32 v46, v46, v58
    v_add_f32 v47, v47, v59
    v_add_f32 v60, v60, v45
    v_add_f32 v61, v61, v46
    v_add_f32 v62, v62, v47
    v_cvt_pk_bf16_f32 v60, v60, v61
    v_cvt_pk_bf16_f32 v62, v62, v62
    buffer_store_short v60, v51, s[28:31], 0 offen
    buffer_store_short_d16_hi v60, v51, s[28:31], 0 offen offset:2
    buffer_store_short v62, v51, s[28:31], 0 offen offset:4
    """)
    if OUTLDS:
        a("K2_POSDONE:\ns_mov_b64 exec, -1\ns_barrier")
        out_store(a)
    a(f"""
    K2_EXIT:
    s_endpgm
    """)
    return a.text()
```

```python
from common import *

K2_WAVES = 12
K2_THREADS = 64*K2_WAVES
K2_GRID = 256
NQ = K2_THREADS//4
CAP = 3456
L_HIST = 0
L_MISC = 512
L_PREF = 576
L_OHT  = 1152
L_WXF  = 1280
L_META = 1536
L_REC  = L_META + CAP*4
L_PDT  = L_REC + CAP*8
L_ATAB = L_PDT + 104*16
ATAB_STRIDE = 208
L_MACC = L_ATAB + 64*ATAB_STRIDE
MACC_STRIDE = 288
NROWS = 98 + K2_WAVES - 1
L_STG  = L_MACC + NROWS*MACC_STRIDE
STG_SZ = 2048
L_HBUF = (L_STG + K2_WAVES*STG_SZ + 127)//128*128
K2_LDS = L_HBUF + K2_WAVES*4096
WARM2 = int(os.environ.get('WARM2','0'))
L_SCRAP = K2_LDS
if WARM2: K2_LDS += 256
ZERO_BEG = L_MACC
ZERO_N16 = (L_STG + K2_WAVES*STG_SZ - L_MACC)//16
assert K2_LDS <= 163840, K2_LDS

vSR, vZ = 0, 1
vW2, vWX, vACC, vD, vH, vXA, vST, vT, vIP, vPS, vPD, vHR = 2, 34, 42, 74, 106, 122, 126, 134, 142, 150, 154, 158
vSE = vPS+3
vDL, vMA, vMS, vOHB, vSGB, vSG = 162, 163, 164, 165, 166, 167
K2_VGPRS = 168 if not DIAG else 168
vSTAMP = None
KS = 9
NK = 2*KS
RFAST = 4*KS
RSLOW = 12
SM = 64
KORD = int(os.environ.get('KORD','0'))
RLP = os.environ.get('RLP','')
OSP = os.environ.get('OSP','')
OUTLDS = int(os.environ.get('OUTLDS','0'))
B15 = int(os.environ.get('B15','0'))
WARM = int(os.environ.get('WARM','0'))
WA, WB, WC = [int(x) for x in os.environ.get('WTS','35,19,10').split(',')]
assert 4*(WA+WB+WC) == 256
ABL = os.environ.get('ABL','').split(',')

def rr(b, n): return f"v[{b}:{b+n-1}]"

def mfma(d, a_, b_, c):
    cs = rr(c,16) if c is not None else "0"
    return f"v_mfma_f32_32x32x16_bf16 {rr(d,16)}, {rr(a_,4)}, {rr(b_,4)}, {cs}"

L_STAMP = K2_LDS
def _st(a, i, ins):
    if not DIAG: return
    a(f"""
    {ins} s[100:101]
    s_waitcnt lgkmcnt(0)
    s_mov_b64 vcc, exec
    s_mov_b64 exec, 1
    v_mov_b32 v141, s100
    v_mov_b32 v140, s8
    ds_write_b32 v140, v141 offset:{4*i}
    s_mov_b64 exec, vcc
    """)
def st(a, i): _st(a, i, "s_memtime")
def st_rt(a, i): _st(a, i, "s_memrealtime")
def st_dump(a):
    if not DIAG: return
    a(f"""
    s_mov_b64 exec, 0x1fff
    v_mbcnt_lo_u32_b32 v140, -1, 0
    v_lshlrev_b32 v140, 2, v140
    v_add_u32 v139, s8, v140
    s_waitcnt lgkmcnt(0)
    ds_read_b32 v141, v139
    s_waitcnt lgkmcnt(0)
    buffer_store_dword v141, v140, s[20:23], s15 offen
    """)

def lane_id(a, v):
    a(f"v_mbcnt_lo_u32_b32 v{v}, -1, 0\nv_mbcnt_hi_u32_b32 v{v}, -1, v{v}")

def elementwise(a, t, slots):
    D = vD + 16*t
    if 'noew' in ABL:
        for sl in slots:
            for l in sl: a(l)
            a("s_nop 7\ns_nop 7")
        return
    for g in range(4):
        ps = (2*g, 2*g+1)
        tmp = [vT + 4*(g%2), vT + 4*(g%2) + 2]
        for l in slots[2*g]: a(l)
        for p, tm in zip(ps, tmp):
            a(f"v_exp_f32 v{tm}, v{D+2*p}\nv_exp_f32 v{tm+1}, v{D+2*p+1}")
        for tm in tmp:
            a(f"v_pk_add_f32 {rr(tm,2)}, {rr(tm,2)}, 1.0 op_sel_hi:[1,0]")
        for l in slots[2*g+1]: a(l)
        for tm in tmp:
            a(f"v_rcp_f32 v{tm}, v{tm}\nv_rcp_f32 v{tm+1}, v{tm+1}")
        for p, tm in zip(ps, tmp):
            a(f"v_pk_mul_f32 {rr(tm,2)}, {rr(tm,2)}, {rr(D+2*p,2)}")
        for p, tm in zip(ps, tmp):
            a(f"v_cvt_pk_bf16_f32 v{D+p}, v{tm}, v{tm+1}")

def dma():
    out = []
    for i in range(4):
        out += [f"s_add_u32 m0, s43, {1024*i}" if i else "s_mov_b32 m0, s43", "s_nop 0",
                f"buffer_load_dwordx4 {rr(vIP+2*i,2)}, s[16:19], 0 idxen offen lds"]
    return out

def h_reads(dst=vH):
    return [f"ds_read_b128 {rr(dst+4*s,4)}, v{vHR+s}" for s in range(4)]

def pd_read():
    return ["s_mov_b64 exec, s[44:45]",
            f"ds_read_b128 {rr(vPD,4)}, v{vDL} offset:{L_PDT}",
            "s_mov_b64 exec, -1"]

def ps_load():
    ex = []
    if 'eatest' in ABL:
        ex = ["s_mov_b64 exec, s[48:49]", f"buffer_load_dwordx2 {rr(vPS,2)}, v{vSE}, s[76:79], 0 idxen nt"]
    return ex + ["s_mov_b64 exec, s[50:51]",
            f"buffer_load_dwordx3 {rr(vPS,3)}, v{vSE}, s[24:27], 0 idxen",
            "s_mov_b64 exec, -1"]

def xa_build(eaoff, wait="s_waitcnt lgkmcnt(4)"):
    return [f"v_lshrrev_b32 v{vSG}, 1, v{vDL}",
            f"v_add_u32 v{vSG}, v{vSG}, v{vSGB}",
            f"v_add_u32 v{vDL}, v{vDL}, v{vOHB}",
            f"v_lshlrev_b32 v{vT}, 1, v{vMA}",
            wait,
            "s_and_b64 exec, s[44:45], s[50:51]",
            f"v_pk_add_f32 {rr(vPD,2)}, {rr(vPD,2)}, {rr(vPS,2)} neg_lo:[0,1] neg_hi:[0,1]",
            f"v_sub_f32 v{vPD+2}, v{vPD+2}, v{vPS+2}",
            f"v_mul_f32 v{vPD+3}, v{vPD}, v{vPD}",
            f"v_fmac_f32 v{vPD+3}, v{vPD+1}, v{vPD+1}",
            f"v_fmac_f32 v{vPD+3}, v{vPD+2}, v{vPD+2}",
            f"v_cvt_pk_bf16_f32 v{vXA+1}, v{vPD+1}, v{vPD+2}",
            f"v_cvt_pk_bf16_f32 v{vXA}, v{vPD+3}, v{vPD+3}",
            f"v_cvt_pk_bf16_f32 v{vPD}, 1.0, v{vPD}",
            f"ds_write2_b32 v{vSG}, v{vPD}, v{vXA+1} offset0:0 offset1:1",
            "s_and_b64 exec, s[44:45], s[48:49]",
            f"ds_read_b64 {rr(vXA,2)}, v{vT} offset:{L_REC + 2*eaoff}",
            "s_mov_b64 exec, s[44:45]",
            f"ds_read_b64 {rr(vXA+2,2)}, v{vDL}",
            "s_mov_b64 exec, -1",
            "s_and_b64 s[40:41], s[44:45], s[50:51]"]

def unwrite():
    return ["s_mov_b64 exec, s[40:41]",
            f"ds_write2_b32 v{vSG}, v{vZ}, v{vZ} offset0:0 offset1:1",
            "s_mov_b64 exec, -1"]

def dl_read():
    return [f"ds_read_u16 v{vDL}, v{vMA} offset:{L_META+2}",
            f"v_add_u32 v{vMA}, 128, v{vMA}"]

def src_reads(eoff=128):
    return [f"ds_read_u16 v{vIP+2*i}, v{vMS} offset:{L_META+32*i}" for i in range(4)] + \
           [f"ds_read_u16 v{vSE}, v{vMA} offset:{L_META+eoff}",
            f"v_add_u32 v{vMS}, 128, v{vMS}"]

def st_reads():
    return [f"ds_read_b64_tr_b16 {rr(vST+4*s+2*jq,2)}, v{vSR} offset:{1024*s+512*jq}" for s in range(2) for jq in range(2)]

def rebase(a):
    a(f"""
    s_sub_u32 s60, s59, s37
    s_mov_b32 s37, s59
    s_lshl_b32 s61, s60, 4
    s_lshl_b32 s60, s60, 3
    v_subrev_u32 v{vOHB}, s61, v{vOHB}
    v_subrev_u32 v{vSGB}, s60, v{vSGB}
    s_lshl_b32 s59, s37, 2
    v_mov_b32 v{vT}, s59
    ds_read_b32 v{vT+1}, v{vT} offset:{L_PREF+32}
    s_waitcnt lgkmcnt(0)
    v_readfirstlane_b32 s38, v{vT+1}
    """)

def wx_reload(a):
    lane_id(a, vT)
    a(f"""
    s_lshl_b32 s59, s37, 1
    s_add_u32 s59, s59, {L_ATAB}
    v_and_b32 v{vT+1}, 31, v{vT}
    v_lshrrev_b32 v{vT}, 5, v{vT}
    v_lshl_add_u32 v{vT}, v{vT}, 3, s59
    v_mad_u32_u24 v{vT}, v{vT+1}, s62, v{vT}
    v_add_u32 v{vT+1}, {32*ATAB_STRIDE}, v{vT}
    ds_read2_b32 {rr(vWX+2,2)}, v{vT} offset0:0 offset1:1
    ds_read2_b32 {rr(vWX+6,2)}, v{vT+1} offset0:0 offset1:1
    """)

def flush(a, sbase):
    A, X, S = vPD, vPD+1, vPD+2
    R = vD+8
    Y = R
    lane_id(a, X)
    a(f"""
    v_bfe_u32 v{Y}, v{X}, 2, 3
    v_add_u32 v{Y}, {sbase}, v{Y}
    v_lshlrev_b32 v{A}, 2, v{Y}
    ds_read_b32 v{S}, v{A} offset:{L_PREF}
    v_cmp_eq_u32 s[66:67], s70, v{Y}
    s_add_u32 s59, s32, 97
    v_mov_b32 v{A}, s59
    v_and_b32 v{S+1}, 3, v{X}
    v_lshrrev_b32 v{X}, 5, v{X}
    v_lshlrev_b32 v{X}, 4, v{X}
    ds_read_b128 {rr(vT,4)}, v{X} offset:{L_WXF}
    ds_read_b128 {rr(vT+4,4)}, v{X} offset:{L_WXF + 32}
    s_waitcnt lgkmcnt(2)
    v_cmp_gt_u32 vcc, {BN}, v{Y}
    v_cmp_gt_u32 s[64:65], s69, v{S}
    s_and_b64 s[64:65], s[64:65], vcc
    v_cmp_le_u32 vcc, s68, v{S}
    s_and_b64 s[64:65], s[64:65], vcc
    s_andn2_b64 s[66:67], s[66:67], vcc
    v_cndmask_b32 v{Y}, v{Y}, v{A}, s[66:67]
    s_or_b64 s[64:65], s[64:65], s[66:67]
    v_mad_u32_u24 v{A}, v{Y}, s63, v{X}
    v_lshl_add_u32 v{A}, v{S+1}, 2, v{A}
    v_add_u32 v{A}, {L_MACC}, v{A}
    s_and_b64 s[66:67], s[64:65], s[52:53]
    s_and_b64 s[64:65], s[64:65], s[54:55]
    """)
    for qd in range(4):
        t, j = qd>>1, 2*(qd&1)
        if qd:
            a(f"""
            ds_read_b128 {rr(vT,4)}, v{X} offset:{L_WXF + (32*t+8*j)*4}
            ds_read_b128 {rr(vT+4,4)}, v{X} offset:{L_WXF + (32*t+8*j+8)*4}
            """)
        a(f"""
        s_mov_b64 exec, s[66:67]
        ds_read_b128 {rr(R,4)}, v{A} offset:{t*128+j*32}
        ds_read_b128 {rr(R+4,4)}, v{A} offset:{t*128+j*32+32}
        s_mov_b64 exec, -1
        s_waitcnt lgkmcnt(2)
        """)
        for i in range(0,8,2):
            if qd == 0 and i == 0:
                a(f"v_pk_mul_f32 {rr(S,2)}, {rr(vACC,2)}, {rr(vT,2)}")
            else:
                a(f"v_pk_fma_f32 {rr(S,2)}, {rr(vACC+8*qd+i,2)}, {rr(vT+i,2)}, {rr(S,2)}")
        a("s_waitcnt lgkmcnt(0)")
        for i in range(0,8,2):
            a(f"v_pk_add_f32 {rr(R+i,2)}, {rr(R+i,2)}, {rr(vACC+8*qd+i,2)}")
        a(f"""
        s_mov_b64 exec, s[66:67]
        ds_write_b128 v{A}, {rr(R,4)} offset:{t*128+j*32}
        ds_write_b128 v{A}, {rr(R+4,4)} offset:{t*128+j*32+32}
        s_mov_b64 exec, -1
        """)
    a(f"""
    s_mov_b64 exec, s[64:65]
    ds_read_b32 v{X}, v{A} offset:256
    v_add_f32 v{S}, v{S}, v{S+1}
    s_waitcnt lgkmcnt(0)
    v_add_f32 v{X}, v{X}, v{S}
    ds_write_b32 v{A}, v{X} offset:256
    s_mov_b64 exec, -1
    """)

def mfma_z(flag, tag, d, a_, b_):
    return [f"s_cmp_eq_u32 {flag}, 0",
            f"s_cbranch_scc1 K2_MZ{tag}a",
            mfma(d, a_, b_, None),
            f"s_mov_b32 {flag}, 0",
            f"s_branch K2_MZ{tag}b",
            f"K2_MZ{tag}a:",
            mfma(d, a_, b_, d),
            f"K2_MZ{tag}b:"]

def merge(a, tag):
    a(f"""
    v_lshlrev_b32 v74, 2, v140
    ds_read2_b32 v[76:77], v74 offset0:{(L_MISC+16)//4} offset1:{(L_MISC+20)//4}
    s_waitcnt lgkmcnt(0)
    v_cmp_lt_u32 vcc, v76, v77
    v_cmp_ne_u32 s[64:65], 0, v76
    s_and_b64 vcc, vcc, s[64:65]
    s_and_b32 s64, vcc_lo, {(1<<(K2_WAVES-1))-1}
    s_cmp_eq_u32 s64, {(1<<(K2_WAVES-1))-1}
    {"s_branch" if "slowmerge" in ABL else "s_cbranch_scc0"} K2_MSLOW{tag}
    s_cmp_eq_u32 s32, 0
    s_cbranch_scc1 K2_MERGED{tag}
    s_mul_i32 s64, s70, {MACC_STRIDE}
    s_add_u32 s64, s64, {L_MACC}
    s_mul_i32 s65, s32, {MACC_STRIDE}
    s_add_u32 s65, s65, {L_MACC + 97*MACC_STRIDE}
    v_add_u32 v75, s64, v74
    v_add_u32 v76, s65, v74
    v_mov_b32 v77, 0
    ds_read_b32 v78, v75
    ds_read_b32 v79, v76
    s_mov_b64 exec, 0xff
    ds_read_b32 v80, v75 offset:256
    ds_read_b32 v81, v76 offset:256
    s_mov_b64 exec, -1
    s_waitcnt lgkmcnt(0)
    v_add_f32 v78, v78, v79
    v_add_f32 v80, v80, v81
    ds_write_b32 v75, v78
    ds_write_b32 v76, v77
    s_mov_b64 exec, 0xff
    ds_write_b32 v75, v80 offset:256
    ds_write_b32 v76, v77 offset:256
    s_mov_b64 exec, -1
    s_waitcnt lgkmcnt(0)
    s_branch K2_MERGED{tag}
    K2_MSLOW{tag}:
    s_cmp_gt_u32 s32, 1
    s_cbranch_scc1 K2_MERGED{tag}
    v_cmp_gt_u32 vcc, 72, v141
    s_mov_b64 exec, vcc
    v_mov_b32 v74, {L_MISC+16}
    ds_read_b128 v[80:83], v74
    ds_read_b128 v[84:87], v74 offset:16
    ds_read_b128 v[88:91], v74 offset:32
    v_lshlrev_b32 v75, 2, v141
    v_add_u32 v75, {L_MACC}, v75
    v_mov_b32 v76, 0
    """)
    for w in range(1,K2_WAVES):
        a(f"ds_read_b32 v{92+w}, v75 offset:{(97+w)*MACC_STRIDE}")
    a("s_waitcnt lgkmcnt(0)")
    for w in range(1,K2_WAVES):
        a(f"""
        v_max_u32 v77, 1, v{80+w}
        v_mul_u32_u24 v77, {MACC_STRIDE}, v77
        v_add_u32 v77, v77, v75
        v_subrev_u32 v77, {MACC_STRIDE}, v77
        ds_read_b32 v78, v77
        ds_write_b32 v75, v76 offset:{(97+w)*MACC_STRIDE}
        s_waitcnt lgkmcnt(0)
        v_add_f32 v78, v78, v{92+w}
        ds_write_b32 v77, v78
        """)
    a(f"""
    s_waitcnt lgkmcnt(0)
    s_mov_b64 exec, -1
    K2_MERGED{tag}:
    """)

def out_store(a):
    lane_id(a, 64)
    a(f"""
    s_movk_i32 s14, 144
    s_lshl_b32 s59, s32, 6
    v_add_u32 v64, s59, v64
    v_lshrrev_b32 v65, 3, v64
    v_and_b32 v66, 7, v64
    v_lshlrev_b32 v66, 4, v66
    v_mad_u32_u24 v67, v65, s14, v66
    ds_read_b128 v[68:71], v67 offset:{L_REC}
    ds_read_b128 v[72:75], v67 offset:{L_REC+96*144}
    s_lshl_b32 s59, s33, 7
    v_lshlrev_b32 v65, 4, v64
    v_cmp_gt_u32 vcc, 16, v64
    s_add_u32 s60, s59, {96*128}
    s_waitcnt lgkmcnt(1)
    buffer_store_dwordx4 v[68:71], v65, s[24:27], s59 offen {OSP}
    s_mov_b64 exec, vcc
    s_waitcnt lgkmcnt(0)
    buffer_store_dwordx4 v[72:75], v65, s[24:27], s60 offen {OSP}
    """)

def dma_consts(a, vl, t):
    a(f"""
    v_and_b32 v{t}, 7, v{vl}
    v_lshrrev_b32 v{t+1}, 4, v{vl}
    v_xor_b32 v{t}, v{t}, v{t+1}
    v_lshlrev_b32 v{vIP+1}, 4, v{t}
    v_lshlrev_b32 v{vIP+5}, 4, v{t}
    v_xor_b32 v{vIP+3}, 64, v{vIP+1}
    v_xor_b32 v{vIP+7}, 64, v{vIP+1}
    v_and_b32 v{t}, 31, v{vl}
    v_lshrrev_b32 v{t+1}, 5, v{vl}
    v_bfe_u32 v{t+2}, v{t}, 1, 3
    v_lshlrev_b32 v{t+1}, 2, v{t+1}
    v_xor_b32 v{t+1}, v{t+1}, v{t+2}
    v_lshlrev_b32 v{t+1}, 4, v{t+1}
    v_lshl_add_u32 v{t+1}, v{t}, 7, v{t+1}
    v_add_u32 v{vHR}, s43, v{t+1}
    v_xor_b32 v{vHR+1}, 16, v{vHR}
    v_xor_b32 v{vHR+2}, 32, v{vHR}
    v_xor_b32 v{vHR+3}, 48, v{vHR}
    """)

def gen_k2(name):
    global dma, h_reads, unwrite, st_reads, xa_build, mfma, src_reads
    a = Asm()
    REC, HA = 42, 114
    TID, LANE, QL, C1, S1, C2, S2 = 132, 133, 134, 135, 136, 137, 138
    X0 = 150
    AH, AW, AD = 2, 18, 142
    a(f"""
    s_cmp_ge_u32 s2, {K2_GRID}
    s_cbranch_scc1 K2_EXIT
    s_load_dwordx4 s[4:7], s[0:1], 0
    s_load_dwordx2 s[8:9], s[0:1], 48
    s_load_dwordx2 s[10:11], s[0:1], 64
    s_load_dwordx2 s[12:13], s[0:1], 80
    s_and_b32 s3, s2, 7
    s_lshl_b32 s3, s3, 5
    s_lshr_b32 s14, s2, 3
    s_add_u32 s3, s3, s14
    s_mul_i32 s33, s3, {BN}
    v_lshrrev_b32 v1, 6, v0
    s_nop 0
    v_readfirstlane_b32 s32, v1
    s_mov_b32 s48, -1
    s_mov_b32 s49, 0
    s_mov_b32 s50, 0
    s_mov_b32 s51, -1
    s_mov_b32 s52, 0x11111111
    s_mov_b32 s53, 0x11111111
    s_not_b64 s[54:55], s[52:53]
    s_mov_b32 s46, 0xbfb8aa3b
    s_mov_b32 s47, 0xbfb8aa3b
    s_mov_b32 s62, {ATAB_STRIDE}
    s_mov_b32 s63, {MACC_STRIDE}
    s_lshl_b32 s43, s32, 12
    s_add_u32 s43, s43, {L_HBUF}
    s_mov_b32 s56, 0
    s_mov_b32 s57, {RFAST}
    s_waitcnt lgkmcnt(0)
    s_mov_b32 s16, s4
    s_or_b32 s17, s5, {128<<16}
    s_mov_b32 s18, {N}
    s_mov_b32 s19, 0x00020000
    s_mov_b32 s20, s12
    s_mov_b32 s21, s13
    s_mov_b32 s22, 0x1200000
    s_mov_b32 s23, 0x00020000
    s_add_u32 s24, s12, {WS_POSF}
    s_addc_u32 s25, s13, 0
    s_or_b32 s25, s25, {16<<16}
    s_mov_b32 s26, {N}
    s_mov_b32 s27, 0x00020000
    s_mov_b32 s28, s8
    s_mov_b32 s29, s9
    s_mov_b32 s30, 128
    s_mov_b32 s31, 0x00020000
    s_mov_b32 s9, 0
    """)
    if DIAG:
        a(f"""
        s_lshl_b32 s15, s2, 10
        s_lshl_b32 s14, s32, 6
        s_add_u32 s15, s15, s14
        s_add_u32 s15, s15, {WS_STAMP + 0x50000}
        s_min_u32 s8, s32, 6
        s_mul_i32 s8, s8, 52
        s_add_u32 s8, s8, {L_STAMP}
        """)
    st_rt(a, 0); st(a, 1)
    a("K2_ROUND:")
    lane_id(a, LANE)
    a(f"""
    s_lshl_b32 s59, s32, 6
    v_add_u32 v{TID}, s59, v{LANE}
    v_lshrrev_b32 v{X0}, 2, v{TID}
    v_and_b32 v{QL}, 3, v{TID}
    v_mul_u32_u24 v{X0+1}, {TAB_STRIDE}, v{X0}
    s_lshl_b32 s14, s3, 2
    s_add_u32 s14, s14, {WS_TAB}
    s_add_u32 s59, s14, {NQ*TAB_STRIDE}
    v_cmp_gt_u32 vcc, {4*(P-NQ)}, v{TID}
    s_mov_b64 s[44:45], vcc
    buffer_load_dwordx2 v[162:163], v{X0+1}, s[20:23], s14 offen
    s_mov_b64 exec, s[44:45]
    buffer_load_dwordx2 v[164:165], v{X0+1}, s[20:23], s59 offen
    s_mov_b64 exec, -1
    v_mul_u32_u24 v{S1}, {CH}, v{X0}
    v_mov_b32 v44, -1
    v_mov_b32 v45, -1
    v_mov_b32 v46, -1
    v_mov_b32 v47, -1
    v_lshlrev_b32 v48, 4, v{TID}
    ds_write_b128 v48, v[44:47] offset:{L_META}
    v_cmp_gt_u32 vcc, {CAP*4//16-K2_THREADS}, v{TID}
    s_mov_b64 exec, vcc
    ds_write_b128 v48, v[44:47] offset:{L_META+K2_THREADS*16}
    s_mov_b64 exec, -1
    v_mov_b32 v44, 0
    v_mov_b32 v45, 0
    v_mov_b32 v46, 0
    v_mov_b32 v47, 0
    v_cmp_gt_u32 vcc, 36, v{TID}
    s_mov_b64 exec, vcc
    ds_write_b128 v48, v[44:47] offset:{L_HIST}
    s_mov_b64 exec, -1
    s_mov_b32 s39, 0
    s_cmp_lg_u32 s56, 0
    s_cbranch_scc1 K2_NOINIT
    s_cmp_lg_u32 s57, {RFAST}
    s_cbranch_scc1 K2_NOINIT
    s_mov_b32 s39, 1
    v_add_u32 v49, {ZERO_BEG}, v48
    """)
    nz = ZERO_N16 // K2_THREADS
    for r in range(nz):
        a(f"ds_write_b128 v49, v[44:47] offset:{r*K2_THREADS*16}")
    a(f"""
    v_cmp_gt_u32 vcc, {ZERO_N16-nz*K2_THREADS}, v{TID}
    s_mov_b64 exec, vcc
    ds_write_b128 v49, v[44:47] offset:{nz*K2_THREADS*16}
    s_mov_b64 exec, -1
    v_lshrrev_b32 v54, 1, v{TID}
    v_and_b32 v55, 1, v{TID}
    v_lshrrev_b32 v56, 2, v54
    v_and_b32 v57, 3, v54
    v_lshlrev_b32 v57, 4, v57
    v_mov_b32 v58, 0x3f80
    v_mov_b32 v59, 0
    v_lshlrev_b64 v[58:59], v57, v[58:59]
    v_cmp_eq_u32 vcc, v56, v55
    s_nop 1
    v_cndmask_b32 v58, 0, v58, vcc
    v_cndmask_b32 v59, 0, v59, vcc
    v_lshlrev_b32 v60, 3, v{TID}
    v_cmp_gt_u32 vcc, 16, v{TID}
    s_mov_b64 exec, vcc
    ds_write_b64 v60, v[58:59] offset:{L_OHT}
    s_mov_b64 exec, -1
    K2_NOINIT:
    """)
    dma_consts(a, LANE, X0+2)
    a(f"""
    v_mov_b32 v139, 1
    s_waitcnt lgkmcnt(0)
    s_barrier
    s_waitcnt vmcnt(0)
    """)
    st(a, 2)
    a(f"""
    v_and_b32 v{C1}, 0xffff, v162
    v_and_b32 v162, 0xffff, v163
    v_and_b32 v{C2}, 0xffff, v164
    v_and_b32 v164, 0xffff, v165
    v_add_u32 v{S2}, {NQ*CH}, v{S1}
    v_add_u32 v{S1}, v{S1}, v{C1}
    v_add_u32 v{S2}, v{S2}, v{C2}
    v_sub_u32 v{C1}, v162, v{C1}
    v_sub_u32 v{C2}, v164, v{C2}
    v_cndmask_b32 v{C2}, 0, v{C2}, s[44:45]
    """)
    for g, (vc, vs) in enumerate(((C1,S1),(C2,S2))):
        a(f"""
        v_subrev_u32 v162, s56, v{vc}
        v_min_i32 v162, s57, v162
        v_sub_u32 v162, v162, v{QL}
        v_add3_u32 v{164+g}, v{vs}, v{QL}, s56
        v_mul_u32_u24 v{164+g}, 12, v{164+g}
        """)
        for k in range(KS):
            a(f"v_cmp_lt_i32 s[{SM+2*(g*KS+k)}:{SM+1+2*(g*KS+k)}], {4*k}, v162")
    if KORD:
        for (g, k) in [(0,0),(1,0),(0,3),(1,3),(0,1),(1,1),(0,2),(1,2),(0,6),(1,6),(0,4),(1,4),(0,5),(1,5),(0,7),(1,7),(0,8),(1,8)]:
            n = g*KS+k
            a(f"s_mov_b64 exec, s[{SM+2*n}:{SM+1+2*n}]")
            a(f"s_cbranch_execz K2_SKL{n}")
            a(f"buffer_load_dwordx3 {rr(REC+4*n,3)}, v{164+g}, s[20:23], 0 offen offset:{48*k} {RLP}")
            a(f"K2_SKL{n}:")
        a("s_mov_b64 exec, -1")
    else:
      for g in range(2):
        for k in range(KS):
            n = g*KS+k
            a(f"s_mov_b64 exec, s[{SM+2*n}:{SM+1+2*n}]")
            if k >= 3 or g: a(f"s_cbranch_execz K2_SKL{g}")
            a(f"buffer_load_dwordx3 {rr(REC+4*n,3)}, v{164+g}, s[20:23], 0 offen offset:{48*k} {RLP}")
        a(f"K2_SKL{g}:\ns_mov_b64 exec, -1")
    a(f"""
    v_mov_b32 v163, {L_MISC}
    v_max_u32 v162, v{C1}, v{C2}
    ds_max_u32 v163, v162
    s_cmp_eq_u32 s39, 0
    s_cbranch_scc1 K2_NOLD
    v_lshlrev_b32 v{X0+2}, 4, v{LANE}
    s_lshl_b32 s59, s32, 10
    s_add_u32 m0, s59, {L_HBUF+8*4096}
    s_add_u32 s14, s59, {WS_WIMG}
    buffer_load_dwordx4 v{X0+2}, s[20:23], s14 offen lds
    s_min_u32 s60, s32, 4
    s_lshl_b32 s59, s60, 10
    s_add_u32 s61, s59, {L_HBUF+8*4096+12288}
    s_add_u32 s14, s59, {WS_WIMG+12288}
    s_cmp_eq_u32 s60, 4
    s_cselect_b32 s14, {WS_WIMG+32*1024}, s14
    s_cselect_b32 m0, {L_HBUF+4096}, s61
    s_nop 0
    buffer_load_dwordx4 v{X0+2}, s[20:23], s14 offen lds
    s_cmp_gt_u32 s32, 7
    s_cselect_b32 s61, 4, 0
    s_sub_u32 s61, s32, s61
    s_lshl_b32 s59, s61, 4
    s_add_u32 s59, s59, s33
    v_lshrrev_b32 v{vIP}, 3, v{LANE}
    v_add_u32 v{vIP}, s59, v{vIP}
    v_add_u32 v{vIP+2}, 8, v{vIP}
    s_lshr_b32 s59, s61, 1
    s_lshl_b32 s59, s59, 13
    s_and_b32 s60, s61, 1
    s_lshl_b32 s60, s60, 11
    s_add_u32 s59, s59, s60
    s_add_u32 m0, s59, {L_HBUF}
    s_nop 0
    buffer_load_dwordx4 {rr(vIP,2)}, s[16:19], 0 idxen offen lds
    s_add_u32 m0, s59, {L_HBUF+1024}
    s_nop 0
    buffer_load_dwordx4 {rr(vIP+2,2)}, s[16:19], 0 idxen offen lds
    v_lshlrev_b32 v{X0+2}, 1, v{LANE}
    buffer_load_ushort v166, v{X0+2}, s[28:31], 0 offen
    v_add_u32 v{X0+2}, s33, v{TID}
    buffer_load_dwordx4 v[34:37], v{X0+2}, s[24:27], 0 idxen
    """)
    if WARM:
        a(f"""
        s_lshr_b32 s59, s2, 3
        s_mul_i32 s60, s59, 782
        v_add_u32 v{X0+2}, s60, v{TID}
        v_mov_b32 v{X0+3}, 0
        buffer_load_dword v167, {rr(X0+2,2)}, s[16:19], 0 idxen offen
        v_add_u32 v{X0+2}, 768, v{X0+2}
        v_cmp_gt_u32 vcc, 14, v{TID}
        s_mov_b64 exec, vcc
        buffer_load_dword v167, {rr(X0+2,2)}, s[16:19], 0 idxen offen
        v_cmp_gt_u32 vcc, 98, v{TID}
        s_mov_b64 exec, vcc
        s_mul_i32 s60, s59, 784
        v_lshl_add_u32 v{X0+2}, v{TID}, 3, s60
        buffer_load_dword v167, v{X0+2}, s[24:27], 0 idxen
        s_mov_b64 exec, -1
        """)
    a(f"""
    s_waitcnt vmcnt({9 if WARM else 6})
    s_branch K2_RECOK
    K2_NOLD:
    s_waitcnt vmcnt(0)
    K2_RECOK:
    """)
    st(a, 3)
    st(a, 4)
    for n in range(NK):
        a(f"s_mov_b64 exec, s[{SM+2*n}:{SM+1+2*n}]")
        if n % KS >= 3 or n >= KS: a(f"s_cbranch_execz K2_SKA{n//KS}")
        a(f"""
        v_lshrrev_b32 v{HA+n}, 18, v{REC+4*n+2}
        ds_add_rtn_u32 v{REC+4*n+3}, v{HA+n}, v139 offset:{L_HIST}
        """)
        if n % KS == KS-1: a(f"K2_SKA{n//KS}:")
    a(f"""
    s_mov_b64 exec, -1
    s_waitcnt {"lgkmcnt(0)" if B15 else "vmcnt(0) lgkmcnt(0)"}
    s_barrier
    """)
    st(a, 5)
    if WARM2:
        a(f"""
        s_cmp_eq_u32 s39, 0
        s_cbranch_scc1 K2_NOWARM
        s_mov_b32 m0, {L_SCRAP}
        s_lshr_b32 s59, s2, 3
        s_mul_i32 s60, s59, 782
        v_add_u32 v150, s60, v{TID}
        v_mov_b32 v151, 0
        buffer_load_dword v[150:151], s[16:19], 0 idxen offen lds
        v_add_u32 v152, 768, v150
        v_mov_b32 v153, 0
        v_cmp_gt_u32 vcc, 14, v{TID}
        s_mov_b64 exec, vcc
        buffer_load_dword v[152:153], s[16:19], 0 idxen offen lds
        v_cmp_gt_u32 vcc, 98, v{TID}
        s_mov_b64 exec, vcc
        s_mul_i32 s60, s59, 784
        v_lshl_add_u32 v154, v{TID}, 3, s60
        buffer_load_dword v154, s[24:27], 0 idxen lds
        s_mov_b64 exec, -1
        K2_NOWARM:
        """)
    a(f"""
    v_lshlrev_b32 v150, 3, v{LANE}
    ds_read_b64 v[152:153], v150 offset:{L_HIST}
    ds_read_b32 v154, v163
    s_waitcnt lgkmcnt(0)
    v_readfirstlane_b32 s58, v154
    v_add_u32 v155, v152, v153
    s_mov_b32 s61, 0
    K2_SCAN:
    v_mov_b32 v156, v155
    s_nop 1
    v_add_u32_dpp v156, v156, v156 row_shr:1 row_mask:0xf bank_mask:0xf
    s_nop 1
    v_add_u32_dpp v156, v156, v156 row_shr:2 row_mask:0xf bank_mask:0xf
    s_nop 1
    v_add_u32_dpp v156, v156, v156 row_shr:4 row_mask:0xf bank_mask:0xf
    s_nop 1
    v_add_u32_dpp v156, v156, v156 row_shr:8 row_mask:0xf bank_mask:0xf
    s_nop 1
    v_add_u32_dpp v156, v156, v156 row_bcast:15 row_mask:0xa bank_mask:0xf
    s_nop 1
    v_add_u32_dpp v156, v156, v156 row_bcast:31 row_mask:0xc bank_mask:0xf
    s_nop 1
    v_readlane_b32 s34, v156, 63
    s_cmp_lg_u32 s57, {RFAST}
    s_cbranch_scc1 K2_CAPOK
    s_cmp_gt_u32 s58, {RFAST}
    s_cbranch_scc1 K2_TOSLOW
    s_cmp_gt_u32 s34, {CAP}
    s_cbranch_scc0 K2_CAPOK
    K2_TOSLOW:
    s_mov_b32 s57, {RSLOW}
    s_barrier
    s_branch K2_ROUND
    K2_CAPOK:
    s_cmp_lg_u32 s61, 0
    s_cbranch_scc1 K2_SCANDONE
    v_mov_b32 v157, v155
    s_nop 1
    v_add_u32_dpp v157, v155, v155 quad_perm:[1,0,3,2] row_mask:0xf bank_mask:0xf
    v_cmp_gt_u32 vcc, 31, v157
    v_cmp_gt_u32 s[44:45], s34, v156
    s_and_b64 vcc, vcc, s[44:45]
    s_mov_b32 s44, 0xaaaaaaaa
    s_mov_b32 s45, 0xaaaaaaaa
    s_and_b64 vcc, vcc, s[44:45]
    {"" if "forcepad" in ABL else "s_cbranch_vccz K2_SCANDONE"}
    v_mov_b32 v151, v157
    s_nop 1
    v_add_u32_dpp v151, v157, v157 quad_perm:[2,3,0,1] row_mask:0xf bank_mask:0xf
    v_sub_u32 v151, 0, v151
    v_and_b32 v151, 31, v151
    s_mov_b32 s44, 0x88888888
    s_mov_b32 s45, 0x88888888
    v_cndmask_b32 v151, 0, v151, s[44:45]
    v_add_u32 v155, v155, v151
    s_mov_b32 s61, 1
    s_branch K2_SCAN
    K2_SCANDONE:
    v_sub_u32 v156, v156, v155
    v_add_u32 v157, v156, v152
    ds_write_b64 v150, v[156:157] offset:{L_PREF}
    """)
    for n in range(NK):
        a(f"s_mov_b64 exec, s[{SM+2*n}:{SM+1+2*n}]")
        if n % KS >= 3 or n >= KS: a(f"s_cbranch_execz K2_SKB{n//KS}")
        a(f"ds_read_b32 v{HA+n}, v{HA+n} offset:{L_PREF}")
        if n % KS == KS-1: a(f"K2_SKB{n//KS}:")
    a("s_waitcnt lgkmcnt(0)")
    st(a, 6)
    for n in range(NK):
        a(f"s_mov_b64 exec, s[{SM+2*n}:{SM+1+2*n}]")
        if n % KS >= 3 or n >= KS: a(f"s_cbranch_execz K2_SKC{n//KS}")
        a(f"""
        v_add_lshl_u32 v{HA+n}, v{HA+n}, v{REC+4*n+3}, 2
        ds_write_b32 v{HA+n}, v{REC+4*n+2} offset:{L_META}
        v_lshlrev_b32 v{HA+n}, 1, v{HA+n}
        ds_write_b64 v{HA+n}, {rr(REC+4*n,2)} offset:{L_REC}
        """)
        if n % KS == KS-1: a(f"K2_SKC{n//KS}:")
    a(f"""
    s_mov_b64 exec, -1
    s_cmp_lg_u32 s9, 0
    s_cbranch_scc1 K2_NOATAB
    s_mov_b32 s9, 1
    {"s_waitcnt vmcnt(0)" if B15 else ""}
    {"s_barrier" if B15 else ""}
    v_lshlrev_b32 v162, 4, v{TID}
    v_cmp_gt_u32 vcc, 104, v{TID}
    s_mov_b64 exec, vcc
    ds_write_b128 v162, v[34:37] offset:{L_PDT}
    s_mov_b64 exec, -1
    s_cmp_lg_u32 s32, 3
    s_cbranch_scc1 K2_NOWXF
    v_lshlrev_b32 v166, 16, v166
    v_mul_f32 v166, 0xbf317218, v166
    v_lshlrev_b32 v167, 2, v{LANE}
    ds_write_b32 v167, v166 offset:{L_WXF}
    K2_NOWXF:
    v_lshlrev_b32 v167, 4, v{LANE}
    v_add_u32 v167, {L_HBUF+8*4096}, v167
    s_cmp_lt_u32 s32, 4
    s_cbranch_scc1 K2_ATABEND
    s_and_b32 s60, s32, 1
    s_lshl_b32 s59, s60, 12
    s_add_u32 s61, s59, 16384
    v_subrev_u32 v162, s61, v{vHR}
    v_xor_b32 v164, 16, v162
    v_xor_b32 v165, 32, v162
    v_xor_b32 v166, 48, v162
    ds_read_b128 {rr(AH,4)}, v162
    ds_read_b128 {rr(AH+4,4)}, v164
    ds_read_b128 {rr(AH+8,4)}, v165
    ds_read_b128 {rr(AH+12,4)}, v166
    v_add_u32 v162, s59, v167
    """)
    for s_ in range(4):
        a(f"ds_read_b128 {rr(AW+4*s_,4)}, v162 offset:{8192+1024*s_}")
    a(f"""
    v_and_b32 v164, 31, v{LANE}
    v_lshrrev_b32 v165, 5, v{LANE}
    v_mul_u32_u24 v164, {ATAB_STRIDE}, v164
    v_lshl_add_u32 v164, v165, 3, v164
    s_lshr_b32 s59, s32, 1
    s_sub_u32 s59, s59, 2
    s_mul_i32 s60, s60, {32*ATAB_STRIDE}
    s_lshl_b32 s61, s59, 6
    s_add_u32 s61, s61, s60
    s_add_u32 s61, s61, {L_ATAB}
    v_add_u32 v164, s61, v164
    s_waitcnt lgkmcnt(0)
    """)
    a(mfma(AD, AH, AW, None))
    for s_ in range(1,4): a(mfma(AD, AH+4*s_, AW+4*s_, AD))
    a("s_nop 7\ns_nop 3")
    for j in range(4):
        a(f"""
        v_pk_mul_f32 {rr(AD+4*j,2)}, {rr(AD+4*j,2)}, s[46:47]
        v_pk_mul_f32 {rr(AD+4*j+2,2)}, {rr(AD+4*j+2,2)}, s[46:47]
        v_cvt_pk_bf16_f32 v{AD+4*j}, v{AD+4*j}, v{AD+1+4*j}
        v_cvt_pk_bf16_f32 v{AD+1+4*j}, v{AD+2+4*j}, v{AD+3+4*j}
        ds_write_b64 v164, {rr(AD+4*j,2)} offset:{16*j}
        """)
        if j == 0: a("s_cmp_eq_u32 s59, 3\ns_cbranch_scc1 K2_ATABEND")
    a("K2_ATABEND:")
    for o in range(8):
        a(f"ds_read_b128 {rr(vW2+4*o,4)}, v167 offset:{1024*o}")
    a(f"""
    v_lshlrev_b32 v162, 3, v{LANE}
    v_add_u32 v162, {L_HBUF+4096}, v162
    ds_read_b64 {rr(vWX,2)}, v162
    ds_read_b64 {rr(vWX+4,2)}, v162 offset:512
    K2_NOATAB:
    s_add_u32 s59, s34, 31
    s_lshr_b32 s59, s59, 5
    s_lshr_b32 s60, s32, 2
    s_and_b32 s61, s32, 3
    s_cmp_eq_u32 s60, 0
    s_cselect_b32 s35, 0, {4*WA}
    s_cselect_b32 s36, {WA}, {WB}
    s_cmp_eq_u32 s60, 2
    s_cselect_b32 s35, {4*WA+4*WB}, s35
    s_cselect_b32 s36, {WC}, s36
    s_mul_i32 s61, s61, s36
    s_add_u32 s35, s35, s61
    s_add_u32 s36, s36, s35
    s_mul_i32 s35, s35, s59
    s_mul_i32 s36, s36, s59
    s_lshr_b32 s35, s35, 8
    s_lshr_b32 s36, s36, 8
    s_cmp_eq_u32 s60, 0
    s_cbranch_scc0 K2_P1
    s_setprio 2
    K2_P1:
    s_cmp_eq_u32 s60, 1
    s_cbranch_scc0 K2_P2
    s_setprio 1
    K2_P2:
    s_lshl_b32 s68, s35, 5
    s_lshl_b32 s69, s36, 5
    s_min_u32 s69, s69, s34
    """)
    dma_consts(a, LANE, 44)
    a(f"""
    v_and_b32 v44, 31, v{LANE}
    v_lshrrev_b32 v45, 5, v{LANE}
    s_lshl_b32 s59, s35, 7
    v_lshl_add_u32 v{vMA}, v44, 2, s59
    v_lshrrev_b32 v46, 3, v{LANE}
    v_lshl_add_u32 v{vMS}, v46, 2, s59
    v_lshlrev_b32 v{vOHB}, 3, v45
    v_add_u32 v{vOHB}, {L_OHT}, v{vOHB}
    s_lshl_b32 s59, s32, 11
    s_add_u32 s59, s59, {L_STG}
    v_lshl_add_u32 v{vSGB}, v44, 6, s59
    v_bfe_u32 v46, v{LANE}, 2, 2
    v_lshl_add_u32 v46, v45, 2, v46
    v_lshlrev_b32 v{vSR}, 6, v46
    v_bfe_u32 v46, v{LANE}, 4, 1
    v_lshl_add_u32 v{vSR}, v46, 5, v{vSR}
    v_and_b32 v46, 3, v{LANE}
    v_lshl_add_u32 v{vSR}, v46, 3, v{vSR}
    v_add_u32 v{vSR}, s59, v{vSR}
    v_mov_b32 v{vZ}, 0
    s_mov_b32 s37, 0
    s_waitcnt lgkmcnt(0)
    s_barrier
    """)
    st(a, 7)
    a(f"""
    s_cmp_ge_u32 s35, s36
    s_cbranch_scc1 K2_MAINDONE
    """)
    if 'eatest' in ABL:
        a(f"""
        s_load_dwordx2 s[76:77], s[0:1], 16
        s_waitcnt lgkmcnt(0)
        s_or_b32 s77, s77, {256<<16}
        s_mov_b32 s78, {N}
        s_mov_b32 s79, 0x00020000
        """)
    for l in src_reads(0) + dl_read(): a(l)
    a("s_mov_b32 s73, 1\ns_mov_b32 s74, 1")
    for r in range(vD+16, vD+24, 2): a(f"v_mov_b64 {rr(r,2)}, 0")
    for r in range(vST, vST+8, 2): a(f"v_mov_b64 {rr(r,2)}, 0")
    for r in range(vXA, vXA+4, 2): a(f"v_mov_b64 {rr(r,2)}, 0")
    a(f"""
    s_waitcnt lgkmcnt(0)
    v_readfirstlane_b32 s70, v{vDL}
    v_cmp_ne_u32 vcc, 0xffff, v{vDL}
    s_mov_b64 s[44:45], vcc
    s_lshr_b32 s70, s70, 4
    s_lshl_b32 s59, s32, 2
    v_mov_b32 v{vT}, s59
    s_add_u32 s60, s70, 1
    v_mov_b32 v{vT+1}, s60
    ds_write_b32 v{vT}, v{vT+1} offset:{L_MISC+16}
    """)
    for l in dma() + ps_load() + src_reads(0) + pd_read(): a(l)
    a("s_and_b32 s59, s70, -2")
    rebase(a)
    wx_reload(a)
    a(f"s_waitcnt vmcnt({0})")
    for l in h_reads(): a(l)
    for l in xa_build(-128): a(l)
    a("s_waitcnt lgkmcnt(0)")
    for l in dma() + ps_load() + src_reads(128) + dl_read(): a(l)
    a("s_mov_b32 s39, 0")
    a(mfma(vD, vXA, vWX, None))
    for s_ in range(4): a(mfma(vD, vH+4*s_, vW2+4*s_, vD))
    a("s_nop 7\ns_nop 3")
    st(a, 8)
    a("K2_LOOP:")
    a(f"""
    s_waitcnt lgkmcnt(0)
    v_cmp_ne_u32 vcc, 0xffff, v{vDL}
    s_mov_b32 s42, 0
    s_add_u32 s59, s35, 1
    s_cmp_ge_u32 s59, s36
    s_cselect_b64 s[44:45], 0, vcc
    s_cbranch_scc1 K2_NOREBASE
    s_add_u32 s59, s59, 1
    s_lshl_b32 s59, s59, 5
    s_min_u32 s59, s59, s34
    s_cmp_le_u32 s59, s38
    s_cbranch_scc1 K2_NOREBASE
    s_mov_b32 s71, s37
    v_readfirstlane_b32 s59, v{vDL}
    s_mov_b32 s42, 1
    s_lshr_b32 s59, s59, 4
    s_and_b32 s59, s59, -2
    """)
    rebase(a)
    a("K2_NOREBASE:")
    for l in pd_read(): a(l)
    D0, D1 = vD, vD+16
    _sv = (dma, h_reads, unwrite, st_reads, xa_build, mfma, src_reads)
    if 'nodma' in ABL: dma = lambda: []
    if 'nohr' in ABL: h_reads = lambda dst=vH: []
    if 'nost' in ABL: st_reads = lambda: []; unwrite = lambda: []
    if 'noxa' in ABL: xa_build = lambda e: []
    if 'nomfma' in ABL: mfma = lambda *x: "s_nop 0"
    if 'nometa' in ABL: src_reads = lambda e=0: []
    slotsA = [
        mfma_z("s74", "A", vACC+16, D1, vST),
        [mfma(vACC+16, D1+4, vST+4, vACC+16)] + st_reads() + unwrite(),
        [mfma(D1, vH, vW2+16, None)],
        [mfma(D1, vH+4, vW2+20, D1)],
        [mfma(D1, vH+8, vW2+24, D1)],
        [mfma(D1, vH+12, vW2+28, D1), "s_waitcnt vmcnt(0)"] + h_reads(),
        [mfma(D1, vXA, vWX+4, D1)] + xa_build(-128),
        [],
    ]
    elementwise(a, 0, slotsA)
    a("""
    s_cmp_eq_u32 s39, 0
    s_cbranch_scc1 K2_NOFLUSH
    """)
    if 'noflush' not in ABL: flush(a, "s72")
    a("s_mov_b32 s73, 1\ns_mov_b32 s74, 1")
    a("""
    K2_NOFLUSH:
    s_mov_b32 s39, s42
    s_mov_b32 s72, s71
    s_cmp_eq_u32 s42, 0
    s_cbranch_scc1 K2_NOWX
    """)
    wx_reload(a)
    a("K2_NOWX:")
    slotsB = [
        ["s_waitcnt lgkmcnt(0)"] + mfma_z("s73", "B", vACC, D0, vST) + dma() + ps_load(),
        [mfma(vACC, D0+4, vST+4, vACC)] + src_reads(128) + dl_read(),
        [mfma(D0, vXA, vWX, None)],
        [mfma(D0, vH, vW2, D0)],
        [mfma(D0, vH+4, vW2+4, D0)],
        [mfma(D0, vH+8, vW2+8, D0)],
        [mfma(D0, vH+12, vW2+12, D0)],
        [],
    ]
    elementwise(a, 1, slotsB)
    dma, h_reads, unwrite, st_reads, xa_build, mfma, src_reads = _sv
    a("""
    s_add_u32 s35, s35, 1
    s_cmp_lt_u32 s35, s36
    s_cbranch_scc1 K2_LOOP
    """)
    for l in mfma_z("s74", "C", vACC+16, D1, vST): a(l)
    a(mfma(vACC+16, D1+4, vST+4, vACC+16))
    a("s_nop 7\ns_nop 3")
    flush(a, "s37")
    a(f"""
    K2_MAINDONE:
    s_waitcnt vmcnt(0) lgkmcnt(0)
    """)
    st(a, 9)
    lane_id(a, 140)
    a(f"""
    s_lshl_b32 s59, s32, 6
    v_add_u32 v141, s59, v140
    s_add_u32 s56, s56, s57
    s_cmp_lt_u32 s56, s58
    s_cbranch_scc0 K2_EPI
    s_barrier
    """)
    merge(a, "A")
    a(f"""
    s_barrier
    s_branch K2_ROUND
    K2_EPI:
    s_mov_b32 s24, s10
    s_mov_b32 s25, s11
    s_mov_b32 s26, {N*128}
    s_mov_b32 s27, 0x00020000
    """)
    vWH, vRES = 2, 34
    a(f"""
    s_cmp_gt_u32 s32, 7
    s_cbranch_scc1 K2_EPI_POS
    s_lshr_b32 s59, s32, 1
    s_lshl_b32 s59, s59, 5
    s_add_u32 s59, s59, s33
    v_lshrrev_b32 v{vIP}, 3, v140
    v_add_u32 v{vIP}, s59, v{vIP}
    v_add_u32 v{vIP+2}, 8, v{vIP}
    v_add_u32 v{vIP+4}, 16, v{vIP}
    v_add_u32 v{vIP+6}, 24, v{vIP}
    """)
    for l in dma(): a(l)
    a(f"""
    s_lshr_b32 s59, s32, 1
    s_and_b32 s60, s32, 1
    v_lshlrev_b32 v44, 4, v140
    s_lshl_b32 s14, s60, 13
    s_add_u32 s14, s14, {WS_WIMG+16*1024}
    s_add_u32 s61, s14, 4096
    """)
    for s_ in range(8):
        a(f"buffer_load_dwordx4 {rr(vWH+4*s_,4)}, v44, s[20:23], {'s14' if s_<4 else 's61'} offen offset:{1024*(s_%4)}")
    a(f"""
    s_mov_b32 s24, s10
    s_mov_b32 s25, s11
    s_mov_b32 s26, {N*128}
    s_mov_b32 s27, 0x00020000
    v_and_b32 v48, 31, v140
    v_lshrrev_b32 v49, 5, v140
    s_lshl_b32 s61, s59, 5
    v_add_u32 v50, s61, v48
    v_min_u32 v53, {NROWS-1}, v50
    v_mul_u32_u24 v53, {MACC_STRIDE}, v53
    v_lshl_add_u32 v53, v49, 7, v53
    v_add_u32 v53, {L_MACC}, v53
    v_bfe_u32 v54, v48, 1, 3
    s_lshl_b32 s61, s60, 2
    v_xor_b32 v54, s61, v54
    v_lshlrev_b32 v54, 4, v54
    v_lshl_add_u32 v54, v48, 7, v54
    v_lshl_add_u32 v54, v49, 3, v54
    v_add_u32 v54, s43, v54
    v_xor_b32 v55, 16, v54
    v_xor_b32 v59, 32, v54
    v_xor_b32 v60, 48, v54
    v_add_u32 v61, s33, v50
    v_lshlrev_b32 v61, 7, v61
    v_lshl_add_u32 v61, v49, 3, v61
    s_lshl_b32 s61, s60, 6
    v_add_u32 v61, s61, v61
    s_barrier
    """)
    merge(a, "B")
    a("s_barrier")
    if 'dumpm' in ABL:
        a(f"""
        s_add_u32 s64, s12, 0x2000000
        s_addc_u32 s65, s13, 0
        s_mov_b32 s66, 0x1000000
        s_mov_b32 s67, 0x00020000
        s_mul_i32 s68, s3, {98*MACC_STRIDE}
        v_lshlrev_b32 v62, 4, v141
        v_add_u32 v63, {L_MACC}, v62
        """)
        for r in range(4):
            a(f"""
            ds_read_b128 v[64:67], v63 offset:{r*8192}
            v_add_u32 v68, {r*8192}, v62
            v_cmp_gt_u32 vcc, {98*MACC_STRIDE}, v68
            s_waitcnt lgkmcnt(0)
            s_mov_b64 exec, vcc
            buffer_store_dwordx4 v[64:67], v68, s[64:67], s68 offen
            s_mov_b64 exec, -1
            s_nop 1
            """)
        a("s_waitcnt vmcnt(0)")
    st(a, 10)
    for s_ in range(4):
        a(f"ds_read_b128 {rr(74+8*s_,4)}, v53 offset:{32*s_}\nds_read_b128 {rr(78+8*s_,4)}, v53 offset:{32*s_+16}")
    a(f"s_waitcnt vmcnt({8})")
    for l in h_reads(): a(l)
    a(f"""
    ds_read_b64 {rr(vRES,2)}, v54
    ds_read_b64 {rr(vRES+2,2)}, v55
    ds_read_b64 {rr(vRES+4,2)}, v59
    ds_read_b64 {rr(vRES+6,2)}, v60
    s_waitcnt lgkmcnt(8)
    """)
    a("s_mov_b32 s64, 0xbf317218\ns_mov_b32 s65, 0xbf317218")
    for s_ in range(4):
        for i in range(4):
            a(f"v_pk_mul_f32 {rr(74+8*s_+2*i,2)}, {rr(74+8*s_+2*i,2)}, s[64:65]")
            a(f"v_cvt_pk_bf16_f32 v{122+4*s_+i}, v{74+8*s_+2*i}, v{75+8*s_+2*i}")
    a("s_waitcnt vmcnt(0) lgkmcnt(0)")
    a(mfma(74, vWH, vH, None))
    for s_ in range(1,4): a(mfma(74, vWH+4*s_, vH+4*s_, 74))
    for s_ in range(4): a(mfma(74, vWH+16+4*s_, 122+4*s_, 74))
    a(f"""
    v_cmp_gt_u32 vcc, {BN}, v50
    s_nop 7
    s_nop 3
    """)
    for r in range(0,16,2): a(f"v_pk_mul_f32 {rr(106+r,2)}, {rr(74+r,2)}, s[46:47]")
    for r in range(16): a(f"v_exp_f32 v{106+r}, v{106+r}")
    for j in range(4):
        for hh in range(2):
            src = vRES+2*j+hh
            a(f"v_lshlrev_b32 v{122+4*j+2*hh}, 16, v{src}\nv_and_b32 v{123+4*j+2*hh}, 0xffff0000, v{src}")
    for r in range(0,16,2): a(f"v_pk_add_f32 {rr(106+r,2)}, {rr(106+r,2)}, 1.0 op_sel_hi:[1,0]")
    for r in range(16): a(f"v_rcp_f32 v{106+r}, v{106+r}")
    a("s_nop 0")
    for r in range(0,16,2): a(f"v_pk_fma_f32 {rr(74+r,2)}, {rr(74+r,2)}, {rr(106+r,2)}, {rr(122+r,2)}")
    for r in range(0,16,2): a(f"v_cvt_pk_bf16_f32 v{96+r//2}, v{74+r}, v{75+r}")
    if OUTLDS:
        a(f"""
        v_mul_u32_u24 v62, 144, v50
        v_lshl_add_u32 v62, v49, 3, v62
        s_lshl_b32 s61, s60, 6
        v_add_u32 v62, s61, v62
        """)
        for j in range(4):
            a(f"ds_write_b64 v62, {rr(96+2*j,2)} offset:{L_REC+16*j}")
        a("s_waitcnt lgkmcnt(0)\ns_barrier")
        out_store(a)
    else:
        a("s_mov_b64 exec, vcc")
        for j in range(4):
            a(f"buffer_store_dwordx2 {rr(96+2*j,2)}, v61, s[24:27], 0 offen offset:{16*j} {OSP}")
    if DIAG: a("s_mov_b64 exec, -1")
    st(a, 11); st_rt(a, 12); st_dump(a)
    a(f"""
    s_endpgm
    K2_EPI_POS:
    v_subrev_u32 v50, 512, v141
    v_lshlrev_b32 v52, 4, v50
    v_add_u32 v51, s33, v50
    v_mul_u32_u24 v51, 6, v51
    v_min_u32 v53, {NROWS-1}, v50
    v_mul_u32_u24 v53, {MACC_STRIDE}, v53
    v_add_u32 v53, {L_MACC}, v53
    s_add_u32 s28, s10, {N*128}
    s_addc_u32 s29, s11, 0
    s_mov_b32 s30, {N*6}
    s_barrier
    """)
    merge(a, "C")
    a(f"""
    s_barrier
    v_cmp_gt_u32 vcc, {BN}, v50
    s_mov_b64 exec, vcc
    s_cbranch_execz {"K2_POSDONE" if OUTLDS else "K2_EXIT"}
    ds_read_b128 v[44:47], v53 offset:256
    ds_read_b128 v[56:59], v53 offset:272
    ds_read_b128 v[60:63], v52 offset:{L_PDT}
    s_waitcnt lgkmcnt(0)
    v_add_f32 v45, v45, v57
    v_add_f32 v46, v46, v58
    v_add_f32 v47, v47, v59
    v_add_f32 v60, v60, v45
    v_add_f32 v61, v61, v46
    v_add_f32 v62, v62, v47
    v_cvt_pk_bf16_f32 v60, v60, v61
    v_cvt_pk_bf16_f32 v62, v62, v62
    buffer_store_short v60, v51, s[28:31], 0 offen
    buffer_store_short_d16_hi v60, v51, s[28:31], 0 offen offset:2
    buffer_store_short v62, v51, s[28:31], 0 offen offset:4
    """)
    if OUTLDS:
        a("K2_POSDONE:\ns_mov_b64 exec, -1\ns_barrier")
        out_store(a)
    a(f"""
    K2_EXIT:
    s_endpgm
    """)
    return a.text()
```

```python
from common import *

REMAP = int(os.environ.get('REMAP','0'))
HT2 = int(os.environ.get('HT2','0'))
HT = int(os.environ.get('HT','0'))
LDP = os.environ.get('LDP','nt')
STP = os.environ.get('STP','sc0 sc1')
STP2 = os.environ.get('STP2','')
K1_THREADS = 832
K1_WAVES = 13
K1_GRID = 253
K1_LDS_HIST = 0
K1_LDS_REC = 4096
K1_LDS = K1_LDS_REC + CH*12

def gen_k1(name):
    a = Asm()
    a(f"""
    s_cmp_ge_u32 s2, {K1_GRID}
    s_cbranch_scc1 K1_EXIT
    s_cmp_ge_u32 s2, {P}
    s_cbranch_scc1 K1_WEIGHTS
    s_load_dwordx4 s[4:7], s[0:1], 8
    s_load_dwordx4 s[8:11], s[0:1], 24
    s_load_dwordx2 s[12:13], s[0:1], 80
    s_load_dwordx2 s[14:15], s[0:1], 0
    """)
    stamp_rt(a, 0, 119); stamp(a, 1, 119)
    a(f"""
    v_lshlrev_b32 v1, 2, v0
    v_mov_b32 v2, 0
    ds_write_b32 v1, v2
    v_cmp_gt_u32 vcc, 800, v0
    s_mov_b64 s[38:39], vcc
    v_lshlrev_b32 v1, 4, v0
    v_lshlrev_b32 v2, 5, v0
    v_mov_b32 v3, 1
    v_readfirstlane_b32 s40, v0
    s_mul_i32 s36, s2, {CH*4}
    s_mul_i32 s37, s2, {CH*8}
    s_waitcnt lgkmcnt(0)
    s_mov_b32 s16, s4
    s_mov_b32 s17, s5
    s_mov_b32 s18, {N*6}
    s_mov_b32 s19, 0x00020000
    s_mov_b32 s20, s6
    s_mov_b32 s21, s7
    s_mov_b32 s22, {E*8}
    s_mov_b32 s23, 0x00020000
    s_mov_b32 s24, s8
    s_mov_b32 s25, s9
    s_mov_b32 s26, {E*4}
    s_mov_b32 s27, 0x00020000
    s_mov_b32 s28, s10
    s_mov_b32 s29, s11
    s_mov_b32 s30, {E*4}
    s_mov_b32 s31, 0x00020000
    s_mov_b32 s32, s12
    s_mov_b32 s33, s13
    s_mov_b32 s34, 0x1200000
    s_mov_b32 s35, 0x00020000
    s_mov_b64 exec, s[38:39]
    """)
    if REMAP:
        a(f"""
        v_lshlrev_b32 v2, 3, v0
        s_add_u32 s46, s36, 6400
        s_add_u32 s47, s37, 12800
        buffer_load_dwordx2 v[4:5], v2, s[28:31], s36 offen {LDP}
        buffer_load_dwordx2 v[6:7], v2, s[28:31], s46 offen {LDP}
        s_barrier
        buffer_load_dwordx2 v[8:9], v2, s[24:27], s36 offen {LDP}
        buffer_load_dwordx2 v[10:11], v2, s[24:27], s46 offen {LDP}
        buffer_load_dwordx4 v[12:15], v1, s[20:23], s37 offen {LDP}
        buffer_load_dwordx4 v[16:19], v1, s[20:23], s47 offen {LDP}
        """)
    else:
        a(f"""
        buffer_load_dwordx4 v[4:7], v1, s[28:31], s36 offen {LDP}
        s_barrier
        buffer_load_dwordx4 v[8:11], v1, s[24:27], s36 offen {LDP}
        buffer_load_dwordx4 v[12:15], v2, s[20:23], s37 offen {LDP}
        buffer_load_dwordx4 v[16:19], v2, s[20:23], s37 offen offset:16 {LDP}
        """)
    a(f"""
    v_subrev_u32 v30, 128, v0
    v_mul_u32_u24 v31, 6, v30
    s_mul_i32 s41, s2, 600
    v_cmp_gt_u32 vcc, 100, v30
    s_mov_b64 s[44:45], vcc
    s_mov_b64 exec, vcc
    buffer_load_ushort v32, v31, s[16:19], s41 offen
    buffer_load_ushort v33, v31, s[16:19], s41 offen offset:2
    buffer_load_ushort v34, v31, s[16:19], s41 offen offset:4
    """)
    if HT:
        a(f"""
        s_mov_b32 s48, s14
        s_mov_b32 s49, s15
        s_mov_b32 s50, {N*128}
        s_mov_b32 s51, 0x00020000
        v_lshlrev_b32 v36, 7, v30
        s_mul_i32 s41, s2, 12800
        buffer_load_dword v37, v36, s[48:51], s41 offen
        """)
    a(f"""
    s_mov_b64 exec, s[38:39]
    s_waitcnt vmcnt({(7 if HT else 6)+(1 if REMAP else 0)})
    """)
    stamp(a, 2, 119)
    for i in range(4):
        a(f"""
        v_mul_u32_u24 v{44+i}, 85599, v{4+i}
        v_lshrrev_b32 v{44+i}, 22, v{44+i}
        v_lshrrev_b32 v{68+i}, 1, v{44+i}
        v_lshlrev_b32 v{44+i}, 2, v{44+i}
        ds_add_rtn_u32 v{48+i}, v{44+i}, v3
        v_mul_u32_u24 v{68+i}, {BN}, v{68+i}
        v_sub_u32 v{68+i}, v{4+i}, v{68+i}
        """)
    a("""
    s_waitcnt lgkmcnt(0)
    s_barrier
    """)
    stamp(a, 3, 119)
    a(f"""
    s_cmp_ge_u32 s40, 64
    s_cbranch_scc1 K1_NOSCAN
    v_lshlrev_b32 v80, 5, v0
    ds_read_b128 v[84:87], v80
    ds_read_b128 v[88:91], v80 offset:16
    s_waitcnt lgkmcnt(0)
    v_add_u32 v92, v84, v85
    v_add_u32 v93, v92, v86
    v_add_u32 v94, v93, v87
    v_add_u32 v95, v94, v88
    v_add_u32 v96, v95, v89
    v_add_u32 v97, v96, v90
    v_add_u32 v98, v97, v91
    v_mov_b32 v99, v98
    s_nop 1
    v_add_u32_dpp v99, v99, v99 row_shr:1 row_mask:0xf bank_mask:0xf
    s_nop 1
    v_add_u32_dpp v99, v99, v99 row_shr:2 row_mask:0xf bank_mask:0xf
    s_nop 1
    v_add_u32_dpp v99, v99, v99 row_shr:4 row_mask:0xf bank_mask:0xf
    s_nop 1
    v_add_u32_dpp v99, v99, v99 row_shr:8 row_mask:0xf bank_mask:0xf
    s_nop 1
    v_add_u32_dpp v99, v99, v99 row_bcast:15 row_mask:0xa bank_mask:0xf
    s_nop 1
    v_add_u32_dpp v99, v99, v99 row_bcast:31 row_mask:0xc bank_mask:0xf
    v_sub_u32 v100, v99, v98
    v_add_u32 v101, v100, v84
    v_add_u32 v102, v100, v92
    v_add_u32 v103, v100, v93
    v_add_u32 v104, v100, v94
    v_add_u32 v105, v100, v95
    v_add_u32 v106, v100, v96
    v_add_u32 v107, v100, v97
    ds_write_b128 v80, v[100:103]
    ds_write_b128 v80, v[104:107] offset:16
    v_lshl_or_b32 v108, v101, 16, v100
    v_lshl_or_b32 v109, v103, 16, v102
    v_lshl_or_b32 v110, v105, 16, v104
    v_lshl_or_b32 v111, v107, 16, v106
    s_mul_i32 s41, s2, {TAB_STRIDE}
    s_add_u32 s41, s41, {WS_TAB}
    buffer_store_dwordx4 v[108:111], v1, s[32:35], s41 offen {STP2}
    v_mov_b32 v112, {CH | (CH<<16)}
    v_mov_b32 v113, v112
    v_mov_b32 v114, v112
    v_mov_b32 v115, v112
    s_mov_b64 exec, 1
    buffer_store_dwordx4 v[112:115], v1, s[32:35], s41 offen offset:1024 {STP2}
    s_mov_b64 exec, -1
    s_waitcnt lgkmcnt(0)
    K1_NOSCAN:
    s_barrier
    """)
    stamp(a, 4, 119)
    for i in range(4):
        a(f"ds_read_b32 v{80+i}, v{44+i}")
    a("s_waitcnt vmcnt(0)")
    stamp(a, 5, 119)
    for i in range(4):
        a(f"v_lshl_or_b32 v{68+i}, v{68+i}, 20, v{8+i}")
    a("s_waitcnt lgkmcnt(0)")
    for i in range(4):
        a(f"""
        v_add_u32 v{80+i}, v{80+i}, v{48+i}
        v_mul_u32_u24 v{80+i}, 12, v{80+i}
        v_add_u32 v{80+i}, {K1_LDS_REC}, v{80+i}
        ds_write2_b32 v{80+i}, v{12+2*i}, v{13+2*i} offset0:0 offset1:1
        ds_write_b32 v{80+i}, v{68+i} offset:8
        """)
    a(f"""
    s_mov_b64 exec, s[44:45]
    v_lshlrev_b32 v32, 16, v32
    v_lshlrev_b32 v33, 16, v33
    v_lshlrev_b32 v34, 16, v34
    v_mov_b32 v35, 0
    v_lshlrev_b32 v31, 4, v30
    s_mul_i32 s41, s2, 1600
    s_add_u32 s41, s41, {WS_POSF}
    buffer_store_dwordx4 v[32:35], v31, s[32:35], s41 offen {STP2}
    """)
    if HT2:
        a(f"""
        s_mov_b32 s48, s14
        s_mov_b32 s49, s15
        s_mov_b32 s50, {N*128}
        s_mov_b32 s51, 0x00020000
        v_lshlrev_b32 v36, 7, v30
        s_mul_i32 s41, s2, 12800
        buffer_load_dword v37, v36, s[48:51], s41 offen
        buffer_load_dword v38, v36, s[48:51], s41 offen offset:64
        """)
    a(f"""
    s_mov_b64 exec, s[38:39]
    s_waitcnt lgkmcnt(0)
    s_barrier
    """)
    stamp(a, 6, 119)
    a(f"""
    ds_read_b128 v[4:7], v1 offset:{K1_LDS_REC}
    ds_read_b128 v[8:11], v1 offset:{K1_LDS_REC+12800}
    ds_read_b128 v[12:15], v1 offset:{K1_LDS_REC+25600}
    s_mul_i32 s42, s2, {CH*12}
    s_add_u32 s43, s42, 12800
    s_add_u32 s44, s42, 25600
    s_waitcnt lgkmcnt(2)
    buffer_store_dwordx4 v[4:7], v1, s[32:35], s42 offen {STP}
    s_waitcnt lgkmcnt(1)
    buffer_store_dwordx4 v[8:11], v1, s[32:35], s43 offen {STP}
    s_waitcnt lgkmcnt(0)
    buffer_store_dwordx4 v[12:15], v1, s[32:35], s44 offen {STP}
    """)
    stamp(a, 7, 119)
    if DIAG: a("s_waitcnt vmcnt(0)")
    stamp(a, 8, 119); stamp_rt(a, 9, 119)
    stamp_dump(a, 10, 119, 0, "s[32:35]", 30)
    for _ in range(int(os.environ.get('K1SLEEP','0'))):
        a("s_sleep 36")
    a(f"""
    K1_EXIT:
    s_endpgm
    """)
    a(f"""
    K1_WEIGHTS:
    s_load_dwordx2 s[4:5], s[0:1], 40
    s_load_dwordx2 s[6:7], s[0:1], 56
    s_load_dwordx2 s[12:13], s[0:1], 80
    v_lshrrev_b32 v1, 6, v0
    s_nop 0
    v_readfirstlane_b32 s40, v1
    s_sub_u32 s41, s2, {P}
    s_mul_i32 s41, s41, 13
    s_add_u32 s40, s40, s41
    s_cmp_gt_u32 s40, 32
    s_cbranch_scc1 K1_EXIT
    v_and_b32 v1, 63, v0
    v_and_b32 v2, 31, v1
    v_lshrrev_b32 v3, 5, v1
    s_waitcnt lgkmcnt(0)
    s_mov_b32 s32, s12
    s_mov_b32 s33, s13
    s_mov_b32 s34, 0x1200000
    s_mov_b32 s35, 0x00020000
    s_cmp_lt_u32 s40, 16
    s_cselect_b32 s16, s4, s6
    s_cselect_b32 s17, s5, s7
    s_mov_b32 s47, {128*128}
    s_cselect_b32 s18, {133*128}, s47
    s_mov_b32 s19, 0x00020000
    s_cmp_eq_u32 s40, 32
    s_cbranch_scc1 K1_WXC
    s_cmp_lt_u32 s40, 16
    s_cbranch_scc0 K1_WH
    s_cmp_lt_u32 s40, 8
    s_cselect_b32 s42, 64, 0
    s_lshr_b32 s43, s40, 2
    s_and_b32 s43, s43, 1
    s_and_b32 s44, s40, 3
    s_branch K1_WGO
    K1_WH:
    s_sub_u32 s45, s40, 16
    s_lshr_b32 s43, s45, 3
    s_and_b32 s44, s45, 3
    s_and_b32 s45, s45, 4
    s_lshl_b32 s42, s45, 4
    K1_WGO:
    ; K0 = s42 + 8*s44 ; C0 = 32*s43
    s_lshl_b32 s44, s44, 3
    s_add_u32 s42, s42, s44
    s_lshl_b32 s42, s42, 7
    s_lshl_b32 s43, s43, 6
    s_add_u32 s42, s42, s43
    v_lshlrev_b32 v4, 12, v3
    v_lshl_add_u32 v4, v2, 1, v4
    """)
    for j in range(8):
        a(f"buffer_load_ushort v{8+j}, v4, s[16:19], s42 offen offset:{128*j}")
    a(f"""
    s_lshl_b32 s46, s40, 10
    s_add_u32 s46, s46, {WS_WIMG}
    v_lshlrev_b32 v5, 4, v1
    s_cmp_lt_u32 s40, 8
    s_cselect_b32 s47, 0xbfb8aa3b, 1.0
    s_waitcnt vmcnt(0)
    """)
    for j in range(8):
        a(f"v_lshlrev_b32 v{8+j}, 16, v{8+j}\nv_mul_f32 v{8+j}, s47, v{8+j}")
    a(f"""
    v_cvt_pk_bf16_f32 v16, v8, v9
    v_cvt_pk_bf16_f32 v17, v10, v11
    v_cvt_pk_bf16_f32 v18, v12, v13
    v_cvt_pk_bf16_f32 v19, v14, v15
    buffer_store_dwordx4 v[16:19], v5, s[32:35], s46 offen
    s_endpgm
    K1_WXC:
    s_mov_b32 s16, s4
    s_mov_b32 s17, s5
    s_mov_b32 s18, {133*128}
    s_mov_b32 s42, {128*128}
    v_lshlrev_b32 v4, 1, v2
    """)
    for t in range(2):
        for r in range(5):
            a(f"buffer_load_ushort v{8+5*t+r}, v4, s[16:19], s42 offen offset:{128*r+64*t}")
    a(f"""
    v_cmp_eq_u32 vcc, 0, v3
    v_lshlrev_b32 v5, 3, v1
    s_mov_b32 s46, {WS_WIMG + 32*1024}
    s_waitcnt vmcnt(0)
    """)
    for r in range(8,18):
        a(f"v_lshlrev_b32 v{r}, 16, v{r}\nv_mul_f32 v{r}, 0xbfb8aa3b, v{r}")
    for t in range(2):
        b = 8+5*t
        a(f"""
        v_cvt_pk_bf16_f32 v20, v{b+1}, v{b+2}
        v_cvt_pk_bf16_f32 v21, v{b+3}, v{b+4}
        v_cvt_pk_bf16_f32 v26, v{b}, 0
        v_lshlrev_b32 v26, 16, v26
        v_sub_f32 v27, v{b}, v26
        v_cvt_pk_bf16_f32 v{b}, v26, v27
        v_cndmask_b32 v{22+2*t}, v{b}, v20, vcc
        v_cndmask_b32 v{23+2*t}, 0, v21, vcc
        """)
    a("""
    buffer_store_dwordx2 v[22:23], v5, s[32:35], s46 offen
    buffer_store_dwordx2 v[24:25], v5, s[32:35], s46 offen offset:512
    s_endpgm
    """)
    return a.text()
```
